```python
import torch

def _softmax(x, axis=-1):
    return torch.softmax(x, dim=axis)
def _gelu(x):
    return torch.nn.functional.gelu(x, approximate="tanh")
def _silu(x):
    return torch.nn.functional.silu(x)
def _sigmoid(x):
    return torch.sigmoid(x)
def _layernorm(x, axis=-1, eps=1e-5):
    m = x.mean(dim=axis, keepdim=True)
    v = x.var(dim=axis, keepdim=True, unbiased=False)
    return (x - m) / torch.sqrt(v + eps)
def _scatter_add(tgt, idx, src, axis=0):
    return tgt.clone().index_add_(axis, idx, src)
def _segment_sum(src, seg, n):
    out = torch.zeros((n,) + src.shape[1:], dtype=src.dtype)
    return out.index_add_(0, seg, src)
def _pad(x, pw):
    flat = tuple(v for pair in reversed(pw) for v in pair)
    return torch.nn.functional.pad(x, flat)

kernel_name = 'standalone__structured_sparse_n_m__ragged'

def setup_inputs():

    _w = (lambda a: (lambda t: t.to(torch.bfloat16) if t.is_floating_point() else t)(torch.as_tensor(a)))
    B, S, D = 4, 4096, 1024
    assert D % 4 == 0, "d_model must be divisible by M=4 for 2:4 sparsity"
    return {
        "x": _w((lambda *s: torch.randn(*s, dtype=torch.bfloat16) * 0.05)(B, S, D)),
        "w": _w((lambda *s: torch.randn(*s, dtype=torch.bfloat16) * 0.05)(D, D)),
        "b": _w((lambda *s: torch.randn(*s, dtype=torch.bfloat16) * 0.05)(D)),
    }

def reference(x, w, b):
    B, S, D = x.shape
    N, M = 2, 4
    G = D // M
    wg = w.reshape(G, M, D)
    mag = torch.abs(wg)
    order = torch.argsort(mag, 1)
    thr = (lambda x, i, axis: torch.take_along_dim(x, i, dim=axis))(mag, order[:, M - N:M - N + 1, :], 1)
    mask = (lambda x, dt: x.to(dt))(mag >= thr, w.dtype)
    wp = (wg * mask).reshape(D, D)
    return torch.einsum("bsd,df->bsf", x, wp) + b
```

```python
import sys

KNAME = "standalone__structured_sparse_n_m__ragged_kernel"

A_OFF = 0
IDX_OFF = 1 << 20
CNT_OFF = (1 << 20) + (128 << 10)
LIST_OFF = 2 << 20
CAPB = 32768
WS_USED = 4 << 20

NSLOT = 5
SLOTB = 32768
NCHUNK = 16
OOB = 0x40000000

out = []


def e(s=""):
    out.append(s)


def vr(a, n=1):
    return f"v{a}" if n == 1 else f"v[{a}:{a+n-1}]"


def ar(a, n=1):
    return f"a{a}" if n == 1 else f"a[{a}:{a+n-1}]"


def sr(a, n=1):
    return f"s{a}" if n == 1 else f"s[{a}:{a+n-1}]"


def gen_prep():
    e(".globl prep_kernel")
    e(".p2align 8")
    e(".type prep_kernel,@function")
    e("prep_kernel:")
    e("  s_cmp_ge_u32 s2, 64")
    e("  s_cbranch_scc1 Lp_end")
    e("  s_load_dwordx2 s[4:5], s[0:1], 8")
    e("  s_load_dwordx2 s[6:7], s[0:1], 40")
    e("  v_lshrrev_b32 v1, 6, v0")
    e("  v_and_b32 v2, 63, v0")
    e("  v_readfirstlane_b32 s3, v1")
    e("  s_lshr_b32 s8, s2, 2")
    e("  s_and_b32 s9, s2, 3")
    e("  s_lshr_b32 s10, s3, 2")
    e("  s_lshl_b32 s11, s9, 2")
    e("  s_add_u32 s10, s10, s11")
    e("  s_and_b32 s11, s3, 3")
    e("  s_lshl_b32 s12, s10, 6")
    e("  s_lshl_b32 s13, s11, 4")
    e("  s_add_u32 s12, s12, s13")
    e("  s_lshl_b32 s13, s12, 11")
    e("  s_lshl_b32 s14, s8, 7")
    e("  s_add_u32 s13, s13, s14")
    e("  v_lshlrev_b32 v3, 1, v2")
    e("  s_waitcnt lgkmcnt(0)")
    e("  s_mov_b32 s16, s4")
    e("  s_mov_b32 s17, s5")
    e("  s_mov_b32 s18, 0x200000")
    e("  s_mov_b32 s19, 0x00020000")
    e("  s_mov_b32 s20, s6")
    e("  s_mov_b32 s21, s7")
    e(f"  s_mov_b32 s22, {WS_USED}")
    e("  s_mov_b32 s23, 0x00020000")
    for i in range(8):
        e(f"  buffer_load_ushort v{4+i}, v3, s[16:19], s13 offen")
        e(f"  buffer_load_ushort v{12+i}, v3, s[16:19], s13 offen offset:2048")
        if i < 7:
            e("  s_add_u32 s13, s13, 4096")
    e("  v_lshrrev_b32 v40, 5, v2")
    e("  v_bfe_u32 v41, v2, 2, 1")
    e("  v_lshl_or_b32 v40, v40, 1, v41")
    e("  v_bfe_u32 v41, v2, 3, 2")
    e("  v_and_b32 v42, 3, v2")
    e("  v_lshl_or_b32 v41, v41, 2, v42")
    e("  v_lshlrev_b32 v42, 10, v40")
    e("  v_lshl_add_u32 v42, v41, 4, v42")
    e("  s_lshl_b32 s24, s8, 4")
    e("  s_add_u32 s24, s24, s10")
    e("  s_lshl_b32 s24, s24, 12")
    e("  s_lshr_b32 s25, s11, 1")
    e("  s_lshl_b32 s25, s25, 8")
    e("  s_add_u32 s24, s24, s25")
    e("  s_and_b32 s25, s11, 1")
    e("  s_lshl_b32 s26, s25, 3")
    e("  s_add_u32 s24, s24, s26")
    e("  v_lshlrev_b32 v43, 11, v40")
    e("  v_lshl_add_u32 v43, v41, 4, v43")
    e("  s_lshl_b32 s26, s8, 13")
    e(f"  s_add_u32 s26, s26, {IDX_OFF}")
    e("  s_lshr_b32 s27, s10, 3")
    e("  s_lshl_b32 s27, s27, 10")
    e("  s_add_u32 s26, s26, s27")
    e("  s_lshr_b32 s27, s11, 1")
    e("  s_lshl_b32 s27, s27, 8")
    e("  s_add_u32 s26, s26, s27")
    e("  s_lshr_b32 s27, s10, 1")
    e("  s_and_b32 s27, s27, 3")
    e("  s_lshl_b32 s27, s27, 2")
    e("  s_add_u32 s26, s26, s27")
    e("  s_and_b32 s27, s10, 1")
    e("  s_lshl_b32 s27, s27, 1")
    e("  s_add_u32 s26, s26, s27")
    e("  s_add_u32 s26, s26, s25")
    e("  v_lshlrev_b32 v44, 16, v2")
    e("  s_waitcnt vmcnt(0)")
    for i in range(8):
        e(f"  v_lshl_or_b32 v{4+i}, v{12+i}, 16, v{4+i}")
    A, B, C, Dd, H1, L1, H2, L2, T, THR, M, I0, I1, M1, M2, P0 = 46, 47, 48, 49, 50, 51, 52, 53, 54, 55, 56, 57, 58, 59, 60, 62
    for g in range(4):
        lo, hi = 4 + 2 * g, 5 + 2 * g
        e(f"  v_and_b32 v{A}, 0x7fff, v{lo}")
        e(f"  v_bfe_u32 v{B}, v{lo}, 16, 15")
        e(f"  v_and_b32 v{C}, 0x7fff, v{hi}")
        e(f"  v_bfe_u32 v{Dd}, v{hi}, 16, 15")
        e(f"  v_max_u32 v{H1}, v{A}, v{B}")
        e(f"  v_min_u32 v{L1}, v{A}, v{B}")
        e(f"  v_max_u32 v{H2}, v{C}, v{Dd}")
        e(f"  v_min_u32 v{L2}, v{C}, v{Dd}")
        e(f"  v_min_u32 v{T}, v{H1}, v{H2}")
        e(f"  v_max3_u32 v{THR}, v{T}, v{L1}, v{L2}")
        e(f"  v_add_u32 v{THR}, -1, v{THR}")
        e(f"  v_sub_u32 v{A}, v{THR}, v{A}")
        e(f"  v_sub_u32 v{B}, v{THR}, v{B}")
        e(f"  v_sub_u32 v{C}, v{THR}, v{C}")
        e(f"  v_sub_u32 v{Dd}, v{THR}, v{Dd}")
        e(f"  v_lshrrev_b32 v{M}, 31, v{A}")
        e(f"  v_lshrrev_b32 v{B}, 30, v{B}")
        e(f"  v_and_or_b32 v{M}, v{B}, 2, v{M}")
        e(f"  v_lshrrev_b32 v{C}, 29, v{C}")
        e(f"  v_and_or_b32 v{M}, v{C}, 4, v{M}")
        e(f"  v_lshrrev_b32 v{Dd}, 28, v{Dd}")
        e(f"  v_and_or_b32 v{M}, v{Dd}, 8, v{M}")
        e(f"  v_ffbl_b32 v{I0}, v{M}")
        e(f"  v_add_u32 v{T}, -1, v{M}")
        e(f"  v_and_b32 v{M1}, v{M}, v{T}")
        e(f"  v_ffbl_b32 v{I1}, v{M1}")
        e(f"  v_add_u32 v{T}, -1, v{M1}")
        e(f"  v_and_b32 v{M2}, v{M1}, v{T}")
        e(f"  v_lshlrev_b32 v{T}, 4, v{I0}")
        e(f"  v_lshrrev_b64 v[{P0}:{P0+1}], v{T}, v[{lo}:{hi}]")
        e(f"  v_and_b32 v{A}, 0xffff, v{P0}")
        e(f"  v_lshlrev_b32 v{T}, 4, v{I1}")
        e(f"  v_lshrrev_b64 v[{P0}:{P0+1}], v{T}, v[{lo}:{hi}]")
        e(f"  v_lshl_or_b32 v{20+g}, v{P0}, 16, v{A}")
        e(f"  v_lshl_or_b32 v{24+g}, v{I1}, 2, v{I0}")
        mcur = M2
        for which in range(2):
            E = 28 + 2 * g + which
            e(f"  v_ffbl_b32 v{I0}, v{mcur}")
            e(f"  v_lshlrev_b32 v{T}, 4, v{I0}")
            e(f"  v_lshrrev_b64 v[{P0}:{P0+1}], v{T}, v[{lo}:{hi}]")
            e(f"  v_and_b32 v{A}, 0xffff, v{P0}")
            e(f"  v_and_b32 v{B}, 0x7fff, v{P0}")
            e(f"  v_min_u32 v{B}, v{B}, v{mcur}")
            e(f"  v_add_u32 v{C}, s12, v{I0}")
            e(f"  v_add_u32 v{C}, {4*g}, v{C}")
            e(f"  v_lshl_or_b32 v{C}, v{C}, 22, v44")
            e(f"  v_or_b32 v{C}, v{C}, v{A}")
            e(f"  v_cmp_ne_u32 vcc, 0, v{B}")
            if which == 0:
                e(f"  v_add_u32 v{T}, -1, v{M2}")
                e(f"  v_and_b32 v{M1}, v{M2}, v{T}")
            else:
                e("  s_nop 1")
            e(f"  v_cndmask_b32 v{E}, 0, v{C}, vcc")
            mcur = M1
    for eh in range(2):
        e(f"  buffer_store_dwordx2 v[{20+2*eh}:{21+2*eh}], v42, s[20:23], s24 offen offset:{512*eh}")
        e(f"  v_lshl_or_b32 v{46+eh}, v{25+2*eh}, 4, v{24+2*eh}")
        e(f"  buffer_store_byte v{46+eh}, v43, s[20:23], s26 offen offset:{512*eh}")
    e("  s_mov_b32 s28, 0")
    for i in range(8):
        e(f"  v_cmp_ne_u32 s[{32+2*i}:{33+2*i}], 0, v{28+i}")
    e("  s_nop 3")
    for i in range(8):
        e(f"  s_bcnt1_i32_b64 s29, s[{32+2*i}:{33+2*i}]")
        e("  s_add_u32 s28, s28, s29")
    e("  v_mov_b32 v46, s28")
    e("  s_lshl_b32 s29, s3, 2")
    e("  v_mov_b32 v47, s29")
    e("  ds_write_b32 v47, v46")
    e("  v_mov_b32 v47, 0")
    e("  s_waitcnt lgkmcnt(0)")
    e("  s_barrier")
    for i in range(4):
        e(f"  ds_read_b128 v[{48+4*i}:{51+4*i}], v47 offset:{16*i}")
    e("  s_waitcnt lgkmcnt(0)")
    e("  s_mov_b32 s28, 0")
    e("  s_mov_b32 s30, 0")
    for i in range(16):
        e(f"  v_readfirstlane_b32 s29, v{48+i}")
        e("  s_add_u32 s30, s30, s29")
        e(f"  s_cmp_gt_u32 s3, {i}")
        e("  s_cselect_b32 s29, s29, 0")
        e("  s_add_u32 s28, s28, s29")
    e("  s_lshl_b32 s31, s2, 15")
    e(f"  s_add_u32 s31, s31, {LIST_OFF}")
    for i in range(8):
        lo, hi = 32 + 2 * i, 33 + 2 * i
        e(f"  v_mbcnt_lo_u32_b32 v46, s{lo}, 0")
        e(f"  v_mbcnt_hi_u32_b32 v46, s{hi}, v46")
        e("  v_add_u32 v46, s28, v46")
        e("  v_lshlrev_b32 v46, 2, v46")
        e(f"  s_mov_b64 exec, s[{lo}:{hi}]")
        e(f"  s_cbranch_execz Lp_skip{i}")
        e(f"  buffer_store_dword v{28+i}, v46, s[20:23], s31 offen")
        e(f"Lp_skip{i}:")
        e("  s_mov_b64 exec, -1")
        e(f"  s_bcnt1_i32_b64 s29, s[{lo}:{hi}]")
        e("  s_add_u32 s28, s28, s29")
    e("  s_cmp_lg_u32 s3, 0")
    e("  s_cbranch_scc1 Lp_end")
    e("  v_mov_b32 v46, s30")
    e("  s_lshl_b32 s29, s2, 2")
    e(f"  s_add_u32 s29, s29, {CNT_OFF}")
    e("  v_mov_b32 v47, 0")
    e("  s_mov_b64 exec, 1")
    e("  buffer_store_dword v46, v47, s[20:23], s29 offen")
    e("Lp_end:")
    e("  s_endpgm")


V_M, V_Q = 1, 2
V_DMA = 3
V_ST = 7
V_RB = 8
V_RC = 12
V_IDX = 16
V_BIAS = 48
V_ACC = 64
V_B = 96
V_AP = 128
V_GB = 192
V_GC = 224
V_GT = 232
V_BP = 240
V_T = 244
V_E = 244
V_AT = 232
V_BF = 0
V_X0, V_X1, V_X2 = 252, 253, 254
V_LO16 = 240
NRES = 4

S_X, S_OUT, S_WS, S_BIAS = 16, 20, 24, 28
S_W = 32
S_SLOT = 33
S_CUR = 34
S_DSLOT = 35
S_DGOFF = 36
S_OOFF = 37
S_CNT = 38
S_NG = 39
S_C0 = 40
S_P1, S_P2, S_P3, S_PT = 44, 45, 46, 47
S_D1, S_D2, S_D3 = 48, 49, 50
S_LB = 51
S_T0, S_T1, S_T2 = 52, 53, 54
S_M0A = 55
S_ROWB = 56
S_G = 57
S_GCUR = 58
S_DC = 59


def build_group_load(gexpr_sgpr=None, g=None):
    for jj in range(8):
        e(f"  v_lshlrev_b32 v{V_X0}, 3, v{V_Q}")
        if g is not None:
            e(f"  v_add_u32 v{V_X0}, {32*g+jj}, v{V_X0}")
        else:
            e(f"  s_lshl_b32 s{S_T0}, s{gexpr_sgpr}, 5")
            e(f"  s_add_u32 s{S_T0}, s{S_T0}, {jj}")
            e(f"  v_add_u32 v{V_X0}, s{S_T0}, v{V_X0}")
        e(f"  v_lshlrev_b32 v{V_X1}, 2, v{V_X0}")
        for (p, d) in ((S_P1, S_D1), (S_P2, S_D2), (S_P3, S_D3)):
            e(f"  v_cmp_le_u32 vcc, s{p}, v{V_X0}")
            e(f"  v_mov_b32 v{V_X2}, s{d}")
            e("  s_nop 0")
            e(f"  v_cndmask_b32 v{V_X2}, 0, v{V_X2}, vcc")
            e(f"  v_add_u32 v{V_X1}, v{V_X1}, v{V_X2}")
        e(f"  v_cmp_le_u32 vcc, s{S_PT}, v{V_X0}")
        e(f"  v_mov_b32 v{V_X2}, {OOB}")
        e("  s_nop 0")
        e(f"  v_cndmask_b32 v{V_X1}, v{V_X1}, v{V_X2}, vcc")
        e(f"  buffer_load_dword v{V_E+jj}, v{V_X1}, s[{S_WS}:{S_WS+3}], s{S_LB} offen")


def build_group_addr(dst):
    for jj in range(8):
        e(f"  v_lshrrev_b32 v{V_X0}, 21, v{V_E+jj}")
        e(f"  v_and_b32 v{V_X0}, 0x7fe, v{V_X0}")
        e(f"  v_lshlrev_b32 v{V_X1}, 4, v{V_M}")
        e(f"  v_xor_b32 v{V_X0}, v{V_X0}, v{V_X1}")
        e(f"  v_lshl_add_u32 v{dst+jj}, v{V_M}, 11, v{V_X0}")


def build_group_afrag(fs, dst):
    cst = 32 * (fs >> 1) + 4 * (fs & 1)
    for jj in range(8):
        e(f"  v_bfe_u32 v{V_X0}, v{V_E+jj}, 16, 6")
        e(f"  v_sub_u32 v{V_X0}, v{V_X0}, v{V_BF}")
        e(f"  v_cmp_eq_u32 vcc, {cst}, v{V_X0}")
        if jj & 1 == 0:
            e(f"  v_and_b32 v{V_X1}, 0xffff, v{V_E+jj}")
            e("  s_nop 0")
            e(f"  v_cndmask_b32 v{dst+(jj>>1)}, 0, v{V_X1}, vcc")
        else:
            e(f"  v_lshlrev_b32 v{V_X1}, 16, v{V_E+jj}")
            e("  s_nop 0")
            e(f"  v_cndmask_b32 v{V_X1}, 0, v{V_X1}, vcc")
            e(f"  v_or_b32 v{dst+(jj>>1)}, v{dst+(jj>>1)}, v{V_X1}")


def dma_chunk(lines):
    for ip in range(2):
        lines.append(f"  s_add_u32 s{S_T0}, s{S_DSLOT}, s{S_M0A}")
        if ip:
            lines.append(f"  s_add_u32 s{S_T0}, s{S_T0}, 4096")
        lines.append(f"  s_mov_b32 m0, s{S_T0}")
        lines.append("  s_nop 0")
        for i2 in range(2):
            for hh in range(2):
                i = 2 * ip + i2
                lines.append(f"  buffer_load_dwordx4 v{V_DMA+i}, s[{S_X}:{S_X+3}], s{S_DGOFF} offen offset:{i2*2048+hh*1024} lds")


def dma_advance(lines):
    lines.append(f"  s_add_u32 s{S_DSLOT}, s{S_DSLOT}, {SLOTB}")
    lines.append(f"  s_cmp_eq_u32 s{S_DSLOT}, {NSLOT*SLOTB}")
    lines.append(f"  s_cselect_b32 s{S_DSLOT}, 0, s{S_DSLOT}")
    lines.append(f"  s_add_u32 s{S_DC}, s{S_DC}, 1")
    lines.append(f"  s_add_u32 s{S_DGOFF}, s{S_DGOFF}, 32768")
    lines.append(f"  s_cmp_ge_u32 s{S_DC}, {NCHUNK}")
    lines.append(f"  s_cselect_b32 s{S_DGOFF}, {OOB}, s{S_DGOFF}")


class I:
    def __init__(self, text, tag=None, wait=None, optional=False):
        self.text, self.tag, self.wait, self.optional = text, tag, wait, optional


def rd(ks):
    p = ks & 1
    b = V_B + 8 * (ks & 3)
    off = (ks >> 1) * 256
    return [I(f"  ds_read_b128 v[{b}:{b+3}], v{V_RC+2*p} offset:{off}", tag=("R", ks)),
            I(f"  ds_read_b128 v[{b+4}:{b+7}], v{V_RC+2*p+1} offset:{off}", tag=("R", ks))]


def gather(g, optional=False):
    L = []
    for jj in range(8):
        L.append(I(f"  v_add_u32 v{V_GC+jj}, s{S_GCUR}, v{V_GB+8*g+jj}"))
    for jj in range(8):
        L.append(I(f"  ds_read_u16 v{V_GT+jj}, v{V_GC+jj}", tag=("G", g), optional=optional))
    return L


def res_mfma(g, acc, first):
    L = []
    for d in range(4):
        L.append(I(f"  v_lshl_or_b32 v{V_BP+d}, v{V_GT+2*d+1}, 16, v{V_GT+2*d}"))
    L.append(I("  s_nop 1"))
    for fs in range(4):
        c = V_BIAS + 4 * fs if first else acc + 4 * fs
        L.append(I(f"  v_mfma_f32_16x16x32_bf16 v[{acc+4*fs}:{acc+4*fs+3}], v[{V_AP+16*g+4*fs}:{V_AP+16*g+4*fs+3}], "
                   f"v[{V_BP}:{V_BP+3}], v[{c}:{c+3}]"))
    return L


def epilogue(acc):
    L = []
    for j in range(2):
        for d in range(4):
            fs = 2 * j + (d >> 1)
            r = 2 * (d & 1)
            L.append(I(f"  v_cvt_pk_bf16_f32 v{V_T+4*j+d}, v{acc+4*fs+r}, v{acc+4*fs+r+1}"))
        L.append(I(f"  buffer_store_dwordx4 v[{V_T+4*j}:{V_T+4*j+3}], v{V_ST}, s[{S_OUT}:{S_OUT+3}], s{S_OOFF} offen offset:{64*j}"))
    return L


def body(par):
    X = V_ACC + 16 * par
    Y = V_ACC + 16 * (1 - par)
    L = []
    L.append(I("WAIT", wait=("G", 0)))
    L += res_mfma(0, X, True)
    for ks in range(16):
        fill = []
        if ks == 13:
            pre = [I("  s_waitcnt vmcnt(22)"), I("  s_barrier")]
            pre += [I(f"  v_add_u32 v{V_RC+i}, s{S_CUR}, v{V_RB+i}") for i in range(4)]
        else:
            pre = []
        fill += rd((ks + 3) & 15)
        if ks == 0:
            fill += epilogue(Y)[:5]
        if ks == 1:
            fill += epilogue(Y)[5:]
            fill += [I(f"  s_add_u32 s{S_OOFF}, s{S_OOFF}, 32768")]
        if ks == 1:
            fill += gather(1)
        if ks == 5:
            fill += gather(2)
        if ks == 9:
            fill += [I(f"  s_cmp_gt_u32 s{S_NG}, 3"), I(f"  s_cbranch_scc0 Lg2a_{par}")]
            fill += gather(3, optional=True)
            fill += [I(f"Lg2a_{par}:")]
        if ks == 13:
            dl = []
            dma_chunk(dl)
            dma_advance(dl)
            fill += [I(t) for t in dl]
        if ks == 14:
            fill += [I(f"  s_mov_b32 s{S_GCUR}, s{S_CUR}"),
                     I(f"  s_add_u32 s{S_CUR}, s{S_CUR}, {SLOTB}"),
                     I(f"  s_cmp_eq_u32 s{S_CUR}, {NSLOT*SLOTB}"),
                     I(f"  s_cselect_b32 s{S_CUR}, 0, s{S_CUR}")]
            fill += gather(0)
        post = []
        if ks == 4:
            post += [I("WAIT", wait=("G", 1))] + res_mfma(1, X, False)
        if ks == 8:
            post += [I("WAIT", wait=("G", 2))] + res_mfma(2, X, False)
        if ks == 12:
            post += [I(f"  s_cmp_gt_u32 s{S_NG}, 3"), I(f"  s_cbranch_scc0 Lg2b_{par}"),
                     I("WAIT", wait=("G", 3))] + res_mfma(3, X, False) + [I(f"Lg2b_{par}:")]
            post += [I(f"  s_cmp_gt_u32 s{S_NG}, 4"), I(f"  s_cbranch_scc1 Lslow_{par}"), I(f"Lslowback_{par}:")]
        L += pre
        L.append(I("WAIT", wait=("R", ks)))
        mf = []
        for fs in range(4):
            a = (ks * 4 + fs) * 4
            b = V_B + 8 * (ks & 3)
            mf.append(I(f"  v_smfmac_f32_16x16x64_bf16 v[{X+4*fs}:{X+4*fs+3}], a[{a}:{a+3}], v[{b}:{b+7}], "
                        f"v{V_IDX+fs*8+(ks>>1)}" + (" abid:1" if ks & 1 else "")))
        has_label = any(f.text.endswith(":") for f in fill)
        if has_label:
            L.append(mf[0]); L.append(fill[0]); L.append(mf[1]); L.append(fill[1]); L.append(mf[2]); L.append(mf[3])
            L += fill[2:]
        else:
            n = len(fill)
            per = [(n + 3 - i) // 4 for i in range(4)]
            pos = 0
            for i in range(4):
                L.append(mf[i])
                L += fill[pos:pos + per[i]]
                pos += per[i]
        L += post
    return L


def resolve_waits(seq_prev, seq):
    full = seq_prev + seq
    res = []
    for i, ins in enumerate(seq):
        if ins.text != "WAIT":
            res.append(ins.text)
            continue
        p = len(seq_prev) + i
        n = 0
        found = False
        for j in range(p - 1, -1, -1):
            t = full[j]
            if t.tag is None:
                continue
            if t.tag == ins.wait:
                found = True
                break
            if not t.optional:
                n += 1
        assert found, ins.wait
        assert n <= 15, (ins.wait, n)
        res.append(f"  s_waitcnt lgkmcnt({n})")
    return res


def slow_path(par):
    X = V_ACC + 16 * par
    e(f"Lslow_{par}:")
    e(f"  s_mov_b32 s{S_G}, {NRES}")
    e(f"Lslowloop_{par}:")
    build_group_load(gexpr_sgpr=S_G)
    e("  s_waitcnt vmcnt(0)")
    build_group_addr(V_GC)
    for jj in range(8):
        e(f"  v_add_u32 v{V_GC+jj}, s{S_GCUR}, v{V_GC+jj}")
    for jj in range(8):
        e(f"  ds_read_u16 v{V_GT+jj}, v{V_GC+jj}")
    e("  s_waitcnt lgkmcnt(0)")
    for d in range(4):
        e(f"  v_lshl_or_b32 v{V_BP+d}, v{V_GT+2*d+1}, 16, v{V_GT+2*d}")
    for fs in range(4):
        build_group_afrag(fs, V_AT)
        e("  s_nop 1")
        e(f"  v_mfma_f32_16x16x32_bf16 v[{X+4*fs}:{X+4*fs+3}], v[{V_AT}:{V_AT+3}], v[{V_BP}:{V_BP+3}], v[{X+4*fs}:{X+4*fs+3}]")
        e("  s_nop 7")
    e(f"  s_add_u32 s{S_G}, s{S_G}, 1")
    e(f"  s_cmp_lt_u32 s{S_G}, s{S_NG}")
    e(f"  s_cbranch_scc1 Lslowloop_{par}")
    e(f"  s_branch Lslowback_{par}")


def gen_main():
    e(f".globl {KNAME}")
    e(".p2align 8")
    e(f".type {KNAME},@function")
    e(f"{KNAME}:")
    e("  s_cmp_ge_u32 s2, 256")
    e("  s_cbranch_scc1 Lm_end")
    e("  s_load_dwordx4 s[4:7], s[0:1], 0")
    e("  s_load_dwordx4 s[8:11], s[0:1], 16")
    e("  s_load_dwordx2 s[14:15], s[0:1], 40")
    e("  v_lshrrev_b32 v3, 6, v0")
    e("  v_and_b32 v0, 63, v0")
    e(f"  v_readfirstlane_b32 s{S_W}, v3")
    e(f"  v_and_b32 v{V_M}, 15, v0")
    e(f"  v_lshrrev_b32 v{V_Q}, 4, v0")
    e(f"  v_lshlrev_b32 v{V_LO16}, 4, v0")
    e(f"  s_and_b32 s{S_T0}, s2, 7")
    e(f"  s_lshr_b32 s{S_T1}, s2, 3")
    e(f"  s_and_b32 s{S_T2}, s{S_T1}, 3")
    e(f"  s_lshr_b32 s{S_T1}, s{S_T1}, 2")
    e(f"  s_lshl_b32 s{S_T1}, s{S_T1}, 3")
    e(f"  s_add_u32 s{S_T1}, s{S_T1}, s{S_T0}")
    e(f"  s_lshl_b32 s{S_ROWB}, s{S_T1}, 19")
    e(f"  s_lshl_b32 s{S_SLOT}, s{S_T2}, 2")
    e(f"  s_add_u32 s{S_SLOT}, s{S_SLOT}, s{S_W}")
    e(f"  s_lshl_b32 s{S_M0A}, s{S_W}, 13")
    e("  s_waitcnt lgkmcnt(0)")
    for (srd, lo, size) in ((S_X, 4, 1 << 25), (S_OUT, 10, 1 << 25), (S_WS, 14, WS_USED), (S_BIAS, 8, 2048)):
        e(f"  s_mov_b32 s{srd}, s{lo}")
        e(f"  s_mov_b32 s{srd+1}, s{lo+1}")
        e(f"  s_mov_b32 s{srd+2}, {size}")
        e(f"  s_mov_b32 s{srd+3}, 0x00020000")
    e(f"  s_lshl_b32 s{S_T0}, s{S_SLOT}, 4")
    e(f"  s_add_u32 s{S_T0}, s{S_T0}, {CNT_OFF}")
    e(f"  s_load_dwordx4 s[{S_C0}:{S_C0+3}], s[14:15], s{S_T0}")
    for i in range(4):
        e(f"  s_lshl_b32 s{S_T0}, s{S_W}, 2")
        e(f"  s_add_u32 s{S_T0}, s{S_T0}, {i}")
        e(f"  v_xor_b32 v{V_X0}, s{S_T0}, v0")
        e(f"  v_and_b32 v{V_X0}, 15, v{V_X0}")
        e(f"  v_and_or_b32 v{V_X0}, v0, 48, v{V_X0}")
        e(f"  v_lshlrev_b32 v{V_X0}, 4, v{V_X0}")
        e(f"  s_add_u32 s{S_T1}, s{S_M0A}, {(i>>1)*4096}")
        e(f"  v_add_u32 v{V_DMA+i}, s{S_T1}, v{V_X0}")
    e(f"  s_mov_b32 s{S_DSLOT}, 0")
    e(f"  s_mov_b32 s{S_DGOFF}, s{S_ROWB}")
    e(f"  s_mov_b32 s{S_DC}, 0")
    for c in range(1):
        dl = []
        dma_chunk(dl)
        dma_advance(dl)
        for t in dl:
            e(t)
    e(f"  s_lshl_b32 s{S_T0}, s{S_SLOT}, 13")
    e(f"  s_add_u32 s{S_T0}, s{S_T0}, {IDX_OFF}")
    for j in range(8):
        if j == 4:
            e(f"  s_add_u32 s{S_T0}, s{S_T0}, 4096")
        e(f"  buffer_load_dwordx4 v[{V_IDX+4*j}:{V_IDX+4*j+3}], v{V_LO16}, s[{S_WS}:{S_WS+3}], s{S_T0} offen offset:{(j&3)*1024}")
    e(f"  v_lshlrev_b32 v{V_X0}, 4, v{V_Q}")
    e(f"  s_lshl_b32 s{S_T0}, s{S_SLOT}, 7")
    for j in range(2):
        e(f"  buffer_load_dwordx4 v[{V_GC+4*j}:{V_GC+4*j+3}], v{V_X0}, s[{S_BIAS}:{S_BIAS+3}], s{S_T0} offen offset:{64*j}")
    e(f"  s_lshl_b32 s{S_T0}, s{S_SLOT}, 16")
    for ks in range(16):
        for fs in range(4):
            a = (ks * 4 + fs) * 4
            e(f"  buffer_load_dwordx4 a[{a}:{a+3}], v{V_LO16}, s[{S_WS}:{S_WS+3}], s{S_T0} offen offset:{fs*1024}")
        if ks < 15:
            e(f"  s_add_u32 s{S_T0}, s{S_T0}, 4096")
        if ks in (3, 7, 11):
            dl = []
            dma_chunk(dl)
            dma_advance(dl)
            e(f"  s_mov_b32 s{S_T2}, s{S_T0}")
            for t in dl:
                e(t)
            e(f"  s_mov_b32 s{S_T0}, s{S_T2}")
    e(f"  v_lshlrev_b32 v{V_ST}, 11, v{V_M}")
    e(f"  v_lshl_add_u32 v{V_ST}, v{V_Q}, 4, v{V_ST}")
    for p in range(2):
        for h in range(2):
            e(f"  v_lshlrev_b32 v{V_X0}, 1, v{V_Q}")
            e(f"  v_add_u32 v{V_X0}, {p*8+h}, v{V_X0}")
            e(f"  v_xor_b32 v{V_X0}, v{V_X0}, v{V_M}")
            e(f"  v_lshlrev_b32 v{V_X0}, 4, v{V_X0}")
            e(f"  v_lshl_add_u32 v{V_RB+2*p+h}, v{V_M}, 11, v{V_X0}")
            e(f"  v_mov_b32 v{V_RC+2*p+h}, v{V_RB+2*p+h}")
    e(f"  v_lshrrev_b32 v{V_X0}, 2, v{V_M}")
    e(f"  v_and_b32 v{V_BF}, 3, v{V_M}")
    e(f"  v_lshl_or_b32 v{V_BF}, v{V_X0}, 3, v{V_BF}")
    e("  s_waitcnt lgkmcnt(0)")
    e(f"  s_mov_b32 s{S_P1}, s{S_C0}")
    e(f"  s_add_u32 s{S_P2}, s{S_P1}, s{S_C0+1}")
    e(f"  s_add_u32 s{S_P3}, s{S_P2}, s{S_C0+2}")
    e(f"  s_add_u32 s{S_PT}, s{S_P3}, s{S_C0+3}")
    for i, d in enumerate((S_D1, S_D2, S_D3)):
        e(f"  s_lshl_b32 s{S_T0}, s{S_C0+i}, 2")
        e(f"  s_sub_u32 s{d}, {CAPB}, s{S_T0}")
    e(f"  s_add_u32 s{S_NG}, s{S_PT}, 31")
    e(f"  s_lshr_b32 s{S_NG}, s{S_NG}, 5")
    e(f"  s_lshl_b32 s{S_LB}, s{S_SLOT}, 17")
    e(f"  s_add_u32 s{S_LB}, s{S_LB}, {LIST_OFF}")
    for g in range(NRES):
        build_group_load(g=g)
        e("  s_waitcnt vmcnt(0)")
        build_group_addr(V_GB + 8 * g)
        for fs in range(4):
            build_group_afrag(fs, V_AP + 16 * g + 4 * fs)
    for j in range(2):
        for d in range(4):
            fs = 2 * j + (d >> 1)
            r = 2 * (d & 1)
            e(f"  v_lshlrev_b32 v{V_BIAS+4*fs+r}, 16, v{V_GC+4*j+d}")
            e(f"  v_and_b32 v{V_BIAS+4*fs+r+1}, 0xffff0000, v{V_GC+4*j+d}")
    e("  s_waitcnt vmcnt(0)")
    e("  s_barrier")
    e(f"  s_mov_b32 s{S_GCUR}, 0")
    e(f"  s_mov_b32 s{S_CUR}, {SLOTB}")
    e(f"  s_mov_b32 s{S_OOFF}, {OOB}")
    e(f"  s_mov_b32 s{S_CNT}, 0")
    for ks in range(2):
        for ins in rd(ks):
            e(ins.text)
    for ins in gather(0):
        e(ins.text)
    for ins in rd(2):
        e(ins.text)
    b0, b1 = body(0), body(1)
    t0 = resolve_waits(b1, b0)
    t1 = resolve_waits(b0, b1)
    e("Lloop:")
    for t in t0:
        e(t)
    e(f"  s_cmp_eq_u32 s{S_CNT}, 0")
    e(f"  s_lshl_b32 s{S_T0}, s{S_SLOT}, 7")
    e(f"  s_add_u32 s{S_T0}, s{S_T0}, s{S_ROWB}")
    e(f"  s_cmp_eq_u32 s{S_CNT}, 0")
    e(f"  s_cselect_b32 s{S_OOFF}, s{S_T0}, s{S_OOFF}")
    for t in t1:
        e(t)
    e(f"  s_add_u32 s{S_CNT}, s{S_CNT}, 1")
    e(f"  s_cmp_lt_u32 s{S_CNT}, {NCHUNK//2}")
    e("  s_cbranch_scc1 Lloop")
    e("  s_nop 7")
    e("  s_nop 1")
    for ins in epilogue(V_ACC + 16):
        e(ins.text)
    e("Lm_end:")
    e("  s_endpgm")
    slow_path(0)
    slow_path(1)


def main():
    e("; Kernarg layout: 0 x, 8 w, 16 b, 24 out, 32 debug, 40 ws")
    e("; @launch kernel=prep_kernel grid=(64,1,1) block=(1024,1,1) lds=256")
    e(f"; @launch kernel={KNAME} grid=(256,1,1) block=(256,1,1) lds={NSLOT*SLOTB}")
    e('.amdgcn_target "amdgcn-amd-amdhsa--gfx950"')
    e(".text")
    gen_prep()
    gen_main()
    e('.section .rodata,"a"')
    e(".p2align 6")
    e(".amdhsa_kernel prep_kernel")
    e("  .amdhsa_next_free_vgpr 64")
    e("  .amdhsa_next_free_sgpr 64")
    e("  .amdhsa_accum_offset 64")
    e("  .amdhsa_group_segment_fixed_size 0")
    e("  .amdhsa_kernarg_size 48")
    e("  .amdhsa_user_sgpr_count 2")
    e("  .amdhsa_user_sgpr_kernarg_segment_ptr 1")
    e("  .amdhsa_system_sgpr_workgroup_id_x 1")
    e(".end_amdhsa_kernel")
    e(".p2align 6")
    e(f".amdhsa_kernel {KNAME}")
    e("  .amdhsa_next_free_vgpr 512")
    e("  .amdhsa_next_free_sgpr 64")
    e("  .amdhsa_accum_offset 256")
    e("  .amdhsa_group_segment_fixed_size 0")
    e("  .amdhsa_kernarg_size 48")
    e("  .amdhsa_user_sgpr_count 2")
    e("  .amdhsa_user_sgpr_kernarg_segment_ptr 1")
    e("  .amdhsa_system_sgpr_workgroup_id_x 1")
    e(".end_amdhsa_kernel")
    path = sys.argv[1] if len(sys.argv) > 1 else "standalone__structured_sparse_n_m__ragged.s"
    open(path, "w").write("\n".join(out) + "\n")


if __name__ == "__main__":
    main()
```

```python
import sys, os

DBG = int(os.environ.get("DBG", "0"))
NODMA = int(os.environ.get("NODMA", "0"))
NORES = int(os.environ.get("NORES", "0"))
NOST = int(os.environ.get("NOST", "0"))
DMAF = os.environ.get("DMAF", " nt")
WLF = os.environ.get("WLF", " nt")
ALF = os.environ.get("ALF", "")

KNAME = "standalone__structured_sparse_n_m__ragged_kernel"

A_OFF = 0
IDX_OFF = 1 << 20
CNT_OFF = (1 << 20) + (128 << 10)
LIST_OFF = 2 << 20
CAPB = 65536
WS_USED = 8 << 20

NSLOT = 5
ROWB = NSLOT * 2048
NCHUNK = 16
OOB = 0x40000000
NRES = 4

out = []


def e(s=""):
    out.append(s)


def gen_prep():
    e(".globl prep_kernel")
    e(".p2align 8")
    e(".type prep_kernel,@function")
    e("prep_kernel:")
    e("  s_cmp_ge_u32 s2, 64")
    e("  s_cbranch_scc1 Lp_end")
    e("  s_load_dwordx2 s[4:5], s[0:1], 8")
    e("  s_load_dwordx2 s[6:7], s[0:1], 40")
    e("  v_lshrrev_b32 v1, 6, v0")
    e("  v_and_b32 v2, 63, v0")
    e("  v_readfirstlane_b32 s3, v1")
    e("  s_lshr_b32 s8, s2, 2")
    e("  s_and_b32 s9, s2, 3")
    e("  s_lshr_b32 s10, s3, 2")
    e("  s_lshl_b32 s11, s9, 2")
    e("  s_add_u32 s10, s10, s11")
    e("  s_and_b32 s11, s3, 3")
    e("  s_lshl_b32 s12, s10, 6")
    e("  s_lshl_b32 s13, s11, 4")
    e("  s_add_u32 s12, s12, s13")
    e("  s_lshl_b32 s13, s12, 11")
    e("  s_lshl_b32 s14, s8, 7")
    e("  s_add_u32 s13, s13, s14")
    e("  v_lshlrev_b32 v3, 1, v2")
    e("  s_waitcnt lgkmcnt(0)")
    e("  s_mov_b32 s16, s4")
    e("  s_mov_b32 s17, s5")
    e("  s_mov_b32 s18, 0x200000")
    e("  s_mov_b32 s19, 0x00020000")
    e("  s_mov_b32 s20, s6")
    e("  s_mov_b32 s21, s7")
    e(f"  s_mov_b32 s22, {WS_USED}")
    e("  s_mov_b32 s23, 0x00020000")
    for i in range(8):
        e(f"  buffer_load_ushort v{4+i}, v3, s[16:19], s13 offen{WLF}")
        e(f"  buffer_load_ushort v{12+i}, v3, s[16:19], s13 offen offset:2048{WLF}")
        if i < 7:
            e("  s_add_u32 s13, s13, 4096")
    e("  v_lshrrev_b32 v40, 5, v2")
    e("  v_bfe_u32 v41, v2, 2, 1")
    e("  v_lshl_or_b32 v40, v40, 1, v41")
    e("  v_bfe_u32 v41, v2, 3, 2")
    e("  v_and_b32 v42, 3, v2")
    e("  v_lshl_or_b32 v41, v41, 2, v42")
    e("  v_lshlrev_b32 v42, 10, v40")
    e("  v_lshl_add_u32 v42, v41, 4, v42")
    e("  s_lshl_b32 s24, s8, 4")
    e("  s_add_u32 s24, s24, s10")
    e("  s_lshl_b32 s24, s24, 12")
    e("  s_lshr_b32 s25, s11, 1")
    e("  s_lshl_b32 s25, s25, 8")
    e("  s_add_u32 s24, s24, s25")
    e("  s_and_b32 s25, s11, 1")
    e("  s_lshl_b32 s26, s25, 3")
    e("  s_add_u32 s24, s24, s26")
    e("  v_lshlrev_b32 v43, 11, v40")
    e("  v_lshl_add_u32 v43, v41, 4, v43")
    e("  s_lshl_b32 s26, s8, 13")
    e(f"  s_add_u32 s26, s26, {IDX_OFF}")
    e("  s_lshr_b32 s27, s10, 3")
    e("  s_lshl_b32 s27, s27, 10")
    e("  s_add_u32 s26, s26, s27")
    e("  s_lshr_b32 s27, s11, 1")
    e("  s_lshl_b32 s27, s27, 8")
    e("  s_add_u32 s26, s26, s27")
    e("  s_lshr_b32 s27, s10, 1")
    e("  s_and_b32 s27, s27, 3")
    e("  s_lshl_b32 s27, s27, 2")
    e("  s_add_u32 s26, s26, s27")
    e("  s_and_b32 s27, s10, 1")
    e("  s_lshl_b32 s27, s27, 1")
    e("  s_add_u32 s26, s26, s27")
    e("  s_add_u32 s26, s26, s25")
    e("  v_lshlrev_b32 v44, 16, v2")
    for i in range(8):
        e(f"  v_mov_b32 v{28+i}, 0")
    e("  s_waitcnt vmcnt(0)")
    for i in range(8):
        e(f"  v_lshl_or_b32 v{4+i}, v{12+i}, 16, v{4+i}")
    A, B, C, Dd, H1, L1, H2, L2, T, THR, M, I0, I1, M1, M2, P0 = 46, 47, 48, 49, 50, 51, 52, 53, 54, 55, 56, 57, 58, 59, 60, 62
    for g in range(4):
        lo, hi = 4 + 2 * g, 5 + 2 * g
        e(f"  v_and_b32 v{A}, 0x7fff, v{lo}")
        e(f"  v_bfe_u32 v{B}, v{lo}, 16, 15")
        e(f"  v_and_b32 v{C}, 0x7fff, v{hi}")
        e(f"  v_bfe_u32 v{Dd}, v{hi}, 16, 15")
        e(f"  v_max_u32 v{H1}, v{A}, v{B}")
        e(f"  v_min_u32 v{L1}, v{A}, v{B}")
        e(f"  v_max_u32 v{H2}, v{C}, v{Dd}")
        e(f"  v_min_u32 v{L2}, v{C}, v{Dd}")
        e(f"  v_min_u32 v{T}, v{H1}, v{H2}")
        e(f"  v_max3_u32 v{THR}, v{T}, v{L1}, v{L2}")
        e(f"  v_add_u32 v{THR}, -1, v{THR}")
        e(f"  v_sub_u32 v{A}, v{THR}, v{A}")
        e(f"  v_sub_u32 v{B}, v{THR}, v{B}")
        e(f"  v_sub_u32 v{C}, v{THR}, v{C}")
        e(f"  v_sub_u32 v{Dd}, v{THR}, v{Dd}")
        e(f"  v_lshrrev_b32 v{M}, 31, v{A}")
        e(f"  v_lshrrev_b32 v{B}, 30, v{B}")
        e(f"  v_and_or_b32 v{M}, v{B}, 2, v{M}")
        e(f"  v_lshrrev_b32 v{C}, 29, v{C}")
        e(f"  v_and_or_b32 v{M}, v{C}, 4, v{M}")
        e(f"  v_lshrrev_b32 v{Dd}, 28, v{Dd}")
        e(f"  v_and_or_b32 v{M}, v{Dd}, 8, v{M}")
        e(f"  v_ffbl_b32 v{I0}, v{M}")
        e(f"  v_add_u32 v{T}, -1, v{M}")
        e(f"  v_and_b32 v{M1}, v{M}, v{T}")
        e(f"  v_ffbl_b32 v{I1}, v{M1}")
        e(f"  v_add_u32 v{T}, -1, v{M1}")
        e(f"  v_and_b32 v{M2}, v{M1}, v{T}")
        e(f"  v_cmp_ne_u32 vcc, 0, v{M2}")
        e(f"  v_lshlrev_b32 v{T}, 4, v{I0}")
        e(f"  v_lshrrev_b64 v[{P0}:{P0+1}], v{T}, v[{lo}:{hi}]")
        e(f"  v_and_b32 v{A}, 0xffff, v{P0}")
        e(f"  v_lshlrev_b32 v{T}, 4, v{I1}")
        e(f"  v_lshrrev_b64 v[{P0}:{P0+1}], v{T}, v[{lo}:{hi}]")
        e(f"  v_lshl_or_b32 v{20+g}, v{P0}, 16, v{A}")
        e(f"  v_lshl_or_b32 v{24+g}, v{I1}, 2, v{I0}")
        e("  s_cmp_eq_u64 vcc, 0")
        e(f"  s_cbranch_scc1 Lp_nores{g}")
        mcur = M2
        for which in range(2):
            E = 28 + 2 * g + which
            e(f"  v_ffbl_b32 v{I0}, v{mcur}")
            e(f"  v_lshlrev_b32 v{T}, 4, v{I0}")
            e(f"  v_lshrrev_b64 v[{P0}:{P0+1}], v{T}, v[{lo}:{hi}]")
            e(f"  v_and_b32 v{A}, 0xffff, v{P0}")
            e(f"  v_and_b32 v{B}, 0x7fff, v{P0}")
            e(f"  v_min_u32 v{B}, v{B}, v{mcur}")
            e(f"  v_add_u32 v{C}, s12, v{I0}")
            e(f"  v_add_u32 v{C}, {4*g}, v{C}")
            e(f"  v_lshl_or_b32 v{C}, v{C}, 22, v44")
            e(f"  v_or_b32 v{C}, v{C}, v{A}")
            e(f"  v_cmp_ne_u32 vcc, 0, v{B}")
            if which == 0:
                e(f"  v_add_u32 v{T}, -1, v{M2}")
                e(f"  v_and_b32 v{M1}, v{M2}, v{T}")
            else:
                e("  s_nop 1")
            e(f"  v_cndmask_b32 v{E}, 0, v{C}, vcc")
            mcur = M1
        e(f"Lp_nores{g}:")
    for eh in range(2):
        e(f"  buffer_store_dwordx2 v[{20+2*eh}:{21+2*eh}], v42, s[20:23], s24 offen offset:{512*eh}")
        e(f"  v_lshl_or_b32 v{46+eh}, v{25+2*eh}, 4, v{24+2*eh}")
        e(f"  buffer_store_byte v{46+eh}, v43, s[20:23], s26 offen offset:{512*eh}")
    e("  s_mov_b32 s28, 0")
    for i in range(8):
        e(f"  v_cmp_ne_u32 s[{32+2*i}:{33+2*i}], 0, v{28+i}")
    e("  s_nop 3")
    for i in range(8):
        e(f"  s_bcnt1_i32_b64 s29, s[{32+2*i}:{33+2*i}]")
        e("  s_add_u32 s28, s28, s29")
    e("  v_mov_b32 v46, s28")
    e("  s_lshl_b32 s29, s3, 2")
    e("  v_mov_b32 v47, s29")
    e("  ds_write_b32 v47, v46")
    e("  v_mov_b32 v47, 0")
    e("  s_waitcnt lgkmcnt(0)")
    e("  s_barrier")
    for i in range(4):
        e(f"  ds_read_b128 v[{48+4*i}:{51+4*i}], v47 offset:{16*i}")
    e("  s_waitcnt lgkmcnt(0)")
    e("  s_mov_b32 s28, 0")
    e("  s_mov_b32 s30, 0")
    for i in range(16):
        e(f"  v_readfirstlane_b32 s29, v{48+i}")
        e("  s_add_u32 s30, s30, s29")
        e(f"  s_cmp_gt_u32 s3, {i}")
        e("  s_cselect_b32 s29, s29, 0")
        e("  s_add_u32 s28, s28, s29")
    e("  s_lshl_b32 s31, s2, 16")
    e(f"  s_add_u32 s31, s31, {LIST_OFF}")
    for i in range(8):
        lo, hi = 32 + 2 * i, 33 + 2 * i
        e(f"  s_cmp_eq_u64 s[{lo}:{hi}], 0")
        e(f"  s_cbranch_scc1 Lp_skip{i}")
        e(f"  v_mbcnt_lo_u32_b32 v46, s{lo}, 0")
        e(f"  v_mbcnt_hi_u32_b32 v46, s{hi}, v46")
        e("  v_add_u32 v46, s28, v46")
        e("  v_lshrrev_b32 v47, 2, v46")
        e("  v_lshlrev_b32 v47, 5, v47")
        e("  v_and_b32 v46, 3, v46")
        e("  v_lshl_add_u32 v48, v46, 2, v47")
        e("  v_lshl_add_u32 v49, v46, 1, v47")
        e(f"  v_lshrrev_b32 v50, 21, v{28+i}")
        e("  v_and_b32 v50, 0x7fe, v50")
        e(f"  v_bfe_u32 v51, v{28+i}, 16, 6")
        e(f"  s_mov_b64 exec, s[{lo}:{hi}]")
        e("  buffer_store_dword v50, v48, s[20:23], s31 offen")
        e(f"  buffer_store_short v{28+i}, v49, s[20:23], s31 offen offset:16")
        e("  buffer_store_short v51, v49, s[20:23], s31 offen offset:24")
        e("  s_mov_b64 exec, -1")
        e(f"  s_bcnt1_i32_b64 s29, s[{lo}:{hi}]")
        e("  s_add_u32 s28, s28, s29")
        e(f"Lp_skip{i}:")
    e("  s_cmp_lg_u32 s3, 0")
    e("  s_cbranch_scc1 Lp_end")
    e("  s_add_u32 s29, s30, 3")
    e("  s_lshr_b32 s29, s29, 2")
    e("  s_lshl_b32 s28, s29, 2")
    e("  v_add_u32 v46, s30, v2")
    e("  v_cmp_gt_u32 vcc, s28, v46")
    e("  v_lshrrev_b32 v47, 2, v46")
    e("  v_lshlrev_b32 v47, 5, v47")
    e("  v_and_b32 v46, 3, v46")
    e("  v_lshl_add_u32 v48, v46, 2, v47")
    e("  v_lshl_add_u32 v49, v46, 1, v47")
    e("  v_mov_b32 v50, 0")
    e("  v_mov_b32 v51, s29")
    e("  s_lshl_b32 s29, s2, 2")
    e(f"  s_add_u32 s29, s29, {CNT_OFF}")
    e("  s_mov_b64 s[32:33], vcc")
    e("  s_cmp_eq_u64 s[32:33], 0")
    e("  s_cbranch_scc1 Lp_nopad")
    e("  s_mov_b64 exec, s[32:33]")
    e("  buffer_store_dword v50, v48, s[20:23], s31 offen")
    e("  buffer_store_short v50, v49, s[20:23], s31 offen offset:16")
    e("  buffer_store_short v50, v49, s[20:23], s31 offen offset:24")
    e("Lp_nopad:")
    e("  s_mov_b64 exec, 1")
    e("  buffer_store_dword v51, v50, s[20:23], s29 offen")
    e("Lp_end:")
    e("  s_endpgm")


V_BF2 = 0
V_M, V_Q = 1, 2
V_DMA = 3
V_ST = 7
V_RB = 8
V_GX = 12
V_X0, V_X1, V_X2 = 13, 14, 15
V_IDX = 16
V_BIAS = 48
V_ACC = 64
V_B = 96
V_AP = 128
V_GB = 192
V_GT = 224
V_BP = 232
V_T = 236
V_SV = 244
V_AT = 252
V_LO16 = 232
V_LANE = 233

S_X, S_OUT, S_WS, S_BIAS = 16, 20, 24, 28
S_W = 32
S_SLOT = 33
S_DGOFF = 36
S_OOFF = 37
S_CNT = 38
S_NG = 39
S_C0 = 40
S_P1, S_P2, S_P3, S_PT = 44, 45, 46, 47
S_D1, S_D2, S_D3 = 48, 49, 50
S_LB = 51
S_T0, S_T1, S_T2 = 52, 53, 54
S_ROWB = 56
S_G = 57
S_DC = 59
S_M0R = 60
S_K1, S_KM1 = 64, 65
S_AOFF = 66
S_STAMP = 70


class I:
    def __init__(self, text, lds=None, vm=None, opt=False, wl=None, wv=None):
        self.text, self.lds, self.vm, self.opt, self.wl, self.wv = text, lds, vm, opt, wl, wv
        self.nl = None
        self.nv = None


def W(wl=None, wv=None):
    return I("WAIT", wl=wl, wv=wv)


def stamp(i):
    if DBG:
        return [I("  s_memtime s[68:69]"), I("  s_waitcnt lgkmcnt(0)"), I(f"  s_mov_b32 s{S_STAMP+i}, s68")]
    return []


def unit_addr(L, const=None, sg=None):
    L.append(I(f"  v_lshlrev_b32 v{V_X0}, 1, v{V_Q}"))
    if sg is None:
        L.append(I(f"  v_add_u32 v{V_X0}, {const}, v{V_X0}"))
    else:
        L.append(I(f"  s_lshl_b32 s{S_T0}, s{sg}, 3"))
        L.append(I(f"  s_add_u32 s{S_T0}, s{S_T0}, {const}"))
        L.append(I(f"  v_add_u32 v{V_X0}, s{S_T0}, v{V_X0}"))
    L.append(I(f"  v_lshlrev_b32 v{V_X1}, 5, v{V_X0}"))
    for (p, d) in ((S_P1, S_D1), (S_P2, S_D2), (S_P3, S_D3)):
        L.append(I(f"  v_sub_u32 v{V_X2}, s{p}, v{V_X0}"))
        L.append(I(f"  v_ashrrev_i32 v{V_X2}, 31, v{V_X2}"))
        L.append(I(f"  v_and_b32 v{V_X2}, s{d}, v{V_X2}"))
        L.append(I(f"  v_add_u32 v{V_X1}, v{V_X1}, v{V_X2}"))
    L.append(I(f"  v_sub_u32 v{V_X2}, s{S_PT}, v{V_X0}"))
    L.append(I(f"  v_ashrrev_i32 v{V_X2}, 31, v{V_X2}"))
    L.append(I(f"  v_and_b32 v{V_X2}, {OOB}, v{V_X2}"))
    L.append(I(f"  v_or_b32 v{V_X1}, v{V_X1}, v{V_X2}"))


def afrag(L, fs, vvff, dst):
    cst = 32 * (fs >> 1) + 4 * (fs & 1)
    cst2 = cst | (cst << 16)
    for i in range(2):
        for j in range(2):
            vv, ff = vvff + 4 * i + j, vvff + 4 * i + 2 + j
            d = dst + 2 * i + j
            if cst2:
                L.append(I(f"  v_xor_b32 v{d}, {cst2}, v{ff}"))
                L.append(I(f"  v_pk_min_u16 v{d}, v{d}, s{S_K1}"))
            else:
                L.append(I(f"  v_pk_min_u16 v{d}, v{ff}, s{S_K1}"))
            L.append(I(f"  v_pk_add_u16 v{d}, v{d}, s{S_KM1}"))
            L.append(I(f"  v_and_b32 v{d}, v{d}, v{vv}"))


def dma_part(part, slot, rel):
    i, hh = part >> 1, part & 1
    L = []
    if hh == 0:
        L.append(I(f"  s_add_u32 m0, s{S_M0R+i}, {slot*2048}"))
        L.append(I("  s_nop 0"))
    L.append(I(f"  buffer_load_dwordx4 v{V_DMA+i}, s[{S_X}:{S_X+3}], s{S_DGOFF} offen offset:{hh*1024}{DMAF} lds",
               vm=("D", rel)))
    return L


def dma_advance():
    return [I(f"  s_add_u32 s{S_DC}, s{S_DC}, 1"),
            I(f"  s_add_u32 s{S_DGOFF}, s{S_DGOFF}, 32768"),
            I(f"  s_cmp_ge_u32 s{S_DC}, {NCHUNK}"),
            I(f"  s_cselect_b32 s{S_DGOFF}, {OOB}, s{S_DGOFF}")]


def rd(ks, slot, rel):
    p = ks & 1
    b = V_B + 8 * (ks & 3)
    off = slot * 2048 + (ks >> 1) * 256
    return [I(f"  ds_read_b128 v[{b}:{b+3}], v{V_RB+2*p} offset:{off}", lds=("R", ks, rel)),
            I(f"  ds_read_b128 v[{b+4}:{b+7}], v{V_RB+2*p+1} offset:{off}", lds=("R", ks, rel))]


def gather(g, slot, rel, opt=False):
    return [I(f"  ds_read_u16 v{V_GT+jj}, v{V_GB+8*g+jj} offset:{slot*2048}", lds=("G", g, rel), opt=opt)
            for jj in range(8)]


def res_mfma(g, acc, first):
    L = []
    for d in range(4):
        L.append(I(f"  v_lshl_or_b32 v{V_BP+d}, v{V_GT+2*d+1}, 16, v{V_GT+2*d}"))
    L.append(I("  s_nop 1"))
    for fs in range(4):
        c = V_BIAS + 4 * fs if first else acc + 4 * fs
        L.append(I(f"  v_mfma_f32_16x16x32_bf16 v[{acc+4*fs}:{acc+4*fs+3}], v[{V_AP+16*g+4*fs}:{V_AP+16*g+4*fs+3}], "
                   f"v[{V_BP}:{V_BP+3}], v[{c}:{c+3}]"))
    return L


def epilogue(acc):
    L = []
    for j in range(2):
        for d in range(4):
            fs = 2 * j + (d >> 1)
            r = 2 * (d & 1)
            L.append(I(f"  v_cvt_pk_bf16_f32 v{V_T+4*j+d}, v{acc+4*fs+r}, v{acc+4*fs+r+1}"))
        if not NOST:
            L.append(I(f"  buffer_store_dwordx4 v[{V_T+4*j}:{V_T+4*j+3}], v{V_ST}, s[{S_OUT}:{S_OUT+3}], s{S_OOFF} offen offset:{64*j}",
                       vm=("S", 0)))
    L.append(I(f"  s_add_u32 s{S_OOFF}, s{S_OOFF}, 32768"))
    return L


def a_load(ks):
    L = []
    for fs in range(4):
        a = (ks * 4 + fs) * 4
        L.append(I(f"  buffer_load_dwordx4 a[{a}:{a+3}], v{V_LO16A}, s[{S_WS}:{S_WS+3}], s{S_AOFF} offen offset:{fs*1024}{ALF}",
                   vm=("A", ks)))
    L.append(I(f"  s_add_u32 s{S_AOFF}, s{S_AOFF}, 4096"))
    return L


V_LO16A = 244
A_PRE = 6


def body(name, slot, buf, prev_epi, own_epi, first=False):
    X = V_ACC + 16 * buf
    Y = V_ACC + 16 * (1 - buf)
    nslot = (slot + 1) % NSLOT
    L = []
    L.append(W(wl=("G", 0, 0)))
    L += res_mfma(0, X, True)
    for ks in range(16):
        pre, fill, post = [], [], []
        if ks == 13:
            pre = [W(wv=("D", 1)), I("  s_barrier")]
        if ks + 3 < 16:
            fill += rd(ks + 3, slot, 0)
        else:
            fill += rd(ks + 3 - 16, nslot, 1)
        if prev_epi:
            ep = epilogue(Y)
            if ks == 6:
                fill += ep[:5]
            if ks == 8:
                fill += ep[5:]
        if not first:
            part = (ks - 13) % 16
            if part < 8 and not NODMA:
                if ks >= 13:
                    fill += dma_part(part, (slot + 4) % NSLOT, 4)
                else:
                    fill += dma_part(part, (slot + 3) % NSLOT, 3)
                if part == 7:
                    fill += dma_advance()
        else:
            if ks + A_PRE < 16:
                fill += a_load(ks + A_PRE)
            if 4 <= ks < 12:
                c = 2 + (ks - 4) // 4
                for part in (2 * ((ks - 4) % 4), 2 * ((ks - 4) % 4) + 1):
                    fill += dma_part(part, c, c)
                    if part == 7:
                        fill += dma_advance()
            if ks >= 13:
                fill += dma_part(ks - 13, 4, 4)
        if not NORES:
            if ks in (1, 2):
                fill += gather(1, slot, 0)[4 * (ks - 1):4 * ks]
            if ks in (5, 6):
                fill += gather(2, slot, 0)[4 * (ks - 5):4 * (ks - 4)]
            if ks == 9:
                post += [I(f"  s_cmp_gt_u32 s{S_NG}, 3"), I(f"  s_cbranch_scc0 Lg3a_{name}")]
                post += gather(3, slot, 0, opt=True)
                post += [I(f"Lg3a_{name}:")]
            if ks == 4:
                post += [W(wl=("G", 1, 0))] + res_mfma(1, X, False)
            if ks == 8:
                post += [W(wl=("G", 2, 0))] + res_mfma(2, X, False)
            if ks == 12:
                post += [I(f"  s_cmp_gt_u32 s{S_NG}, 3"), I(f"  s_cbranch_scc0 Lg3b_{name}"),
                         W(wl=("G", 3, 0))] + res_mfma(3, X, False) + [I(f"Lg3b_{name}:")]
                post += [I(f"  s_cmp_gt_u32 s{S_NG}, 4"), I(f"  s_cbranch_scc1 Lslow_{name}"), I(f"Lslowback_{name}:")]
        if ks in (14, 15):
            fill += gather(0, nslot, 1)[4 * (ks - 14):4 * (ks - 13)]
        L += pre
        L.append(W(wl=("R", ks, 0), wv=("A", ks) if first else None))
        mf = []
        for fs in range(4):
            a = (ks * 4 + fs) * 4
            b = V_B + 8 * (ks & 3)
            mf.append(I(f"  v_smfmac_f32_16x16x64_bf16 v[{X+4*fs}:{X+4*fs+3}], a[{a}:{a+3}], v[{b}:{b+7}], "
                        f"v{V_IDX+fs*8+(ks>>1)}" + (" abid:1" if ks & 1 else "")))
        n = len(fill)
        per = [(n + 3 - i) // 4 for i in range(4)]
        pos = 0
        for i in range(4):
            L.append(mf[i])
            L += fill[pos:pos + per[i]]
            pos += per[i]
        L += post
    if own_epi:
        L += [I("  s_nop 7")] + epilogue(X)
    return L


def slow_path(name, slot, buf, first=False):
    X = V_ACC + 16 * buf
    L = []
    L.append(I(f"Lslow_{name}:"))
    L.append(I(f"  s_mov_b32 s{S_G}, {NRES}"))
    L.append(I(f"Lslowloop_{name}:"))
    for i in range(2):
        unit_addr(L, const=i, sg=S_G)
        L.append(I(f"  buffer_load_dwordx4 v[{V_T+4*i}:{V_T+4*i+3}], v{V_X1}, s[{S_WS}:{S_WS+3}], s{S_LB} offen"))
        L.append(I(f"  buffer_load_dwordx4 v[{V_SV+4*i}:{V_SV+4*i+3}], v{V_X1}, s[{S_WS}:{S_WS+3}], s{S_LB} offen offset:16"))
    L.append(I("  s_waitcnt vmcnt(0)"))
    for jj in range(8):
        L.append(I(f"  v_xor_b32 v{V_T+jj}, v{V_T+jj}, v{V_GX}"))
    for jj in range(8):
        L.append(I(f"  ds_read_u16 v{V_GT+jj}, v{V_T+jj} offset:{slot*2048}"))
    for i in range(2):
        for j in range(2):
            L.append(I(f"  v_xor_b32 v{V_SV+4*i+2+j}, v{V_SV+4*i+2+j}, v{V_BF2}"))
    L.append(I("  s_waitcnt lgkmcnt(0)"))
    for d in range(4):
        L.append(I(f"  v_lshl_or_b32 v{V_BP+d}, v{V_GT+2*d+1}, 16, v{V_GT+2*d}"))
    for fs in range(4):
        afrag(L, fs, V_SV, V_AT)
        L.append(I("  s_nop 1"))
        L.append(I(f"  v_mfma_f32_16x16x32_bf16 v[{X+4*fs}:{X+4*fs+3}], v[{V_AT}:{V_AT+3}], v[{V_BP}:{V_BP+3}], v[{X+4*fs}:{X+4*fs+3}]"))
        L.append(I("  s_nop 7"))
    L.append(I(f"  s_add_u32 s{S_G}, s{S_G}, 1"))
    L.append(I(f"  s_cmp_lt_u32 s{S_G}, s{S_NG}"))
    L.append(I(f"  s_cbranch_scc1 Lslowloop_{name}"))
    L.append(I(f"  s_branch Lslowback_{name}"))
    return L


def resolve(seq):
    lds, vm = [], []
    for blk, c in seq:
        for ins in blk:
            if ins.lds is not None:
                t = ins.lds
                lds.append(((t[0], t[1], c + t[2]), ins.opt))
            if ins.vm is not None:
                t = ins.vm
                vm.append(((t[0], t[1] + (c if t[0] in ("D",) else 0)), ins.opt))
            if ins.text == "WAIT":
                if ins.wl is not None:
                    key = (ins.wl[0], ins.wl[1], c + ins.wl[2])
                    n, found = 0, False
                    for tag, opt in reversed(lds):
                        if tag == key:
                            found = True
                            break
                        if not opt:
                            n += 1
                    assert found, (key, c)
                    n = min(n, 15)
                    ins.nl = n if ins.nl is None else min(ins.nl, n)
                if ins.wv is not None:
                    key = (ins.wv[0], ins.wv[1] + (c if ins.wv[0] in ("D",) else 0))
                    n, found = 0, False
                    for tag, opt in reversed(vm):
                        if tag == key:
                            found = True
                            break
                        if not opt:
                            n += 1
                    assert found or NODMA, (key, c)
                    n = min(n, 63)
                    ins.nv = n if ins.nv is None else min(ins.nv, n)


def emit(blk):
    for ins in blk:
        if ins.text == "WAIT":
            parts = []
            if ins.nv is not None:
                parts.append(f"vmcnt({ins.nv})")
            if ins.nl is not None:
                parts.append(f"lgkmcnt({ins.nl})")
            e("  s_waitcnt " + " ".join(parts))
        else:
            e(ins.text)


def gen_main():
    e(f".globl {KNAME}")
    e(".p2align 8")
    e(f".type {KNAME},@function")
    e(f"{KNAME}:")
    P = []

    def p(t, **kw):
        P.append(I(t, **kw))

    p("  s_cmp_ge_u32 s2, 256")
    p("  s_cbranch_scc1 Lm_end")
    P.extend(stamp(0))
    p("  s_load_dwordx4 s[4:7], s[0:1], 0")
    p("  s_load_dwordx4 s[8:11], s[0:1], 16")
    p("  s_load_dwordx2 s[14:15], s[0:1], 40")
    p("  v_lshrrev_b32 v3, 6, v0")
    p(f"  v_and_b32 v{V_LANE}, 63, v0")
    p(f"  v_readfirstlane_b32 s{S_W}, v3")
    p(f"  v_and_b32 v{V_M}, 15, v{V_LANE}")
    p(f"  v_lshrrev_b32 v{V_Q}, 4, v{V_LANE}")
    p(f"  v_lshlrev_b32 v{V_LO16A}, 4, v{V_LANE}")
    p(f"  s_and_b32 s{S_T0}, s2, 7")
    p(f"  s_lshr_b32 s{S_T1}, s2, 3")
    p(f"  s_and_b32 s{S_T2}, s{S_T1}, 3")
    p(f"  s_lshr_b32 s{S_T1}, s{S_T1}, 2")
    p(f"  s_lshl_b32 s{S_T1}, s{S_T1}, 3")
    p(f"  s_add_u32 s{S_T1}, s{S_T1}, s{S_T0}")
    p(f"  s_lshl_b32 s{S_ROWB}, s{S_T1}, 19")
    p(f"  s_lshl_b32 s{S_SLOT}, s{S_T2}, 2")
    p(f"  s_add_u32 s{S_SLOT}, s{S_SLOT}, s{S_W}")
    p(f"  s_mul_i32 s{S_M0R}, s{S_W}, {4*ROWB}")
    for i in range(1, 4):
        p(f"  s_add_u32 s{S_M0R+i}, s{S_M0R}, {i*ROWB}")
    p(f"  s_mov_b32 s{S_K1}, 0x00010001")
    p(f"  s_mov_b32 s{S_KM1}, -1")
    for i in range(4):
        p(f"  s_lshl_b32 s{S_T0}, s{S_W}, 2")
        p(f"  s_add_u32 s{S_T0}, s{S_T0}, {i}")
        p(f"  v_xor_b32 v{V_X0}, s{S_T0}, v{V_LANE}")
        p(f"  v_and_b32 v{V_X0}, 15, v{V_X0}")
        p(f"  v_and_or_b32 v{V_X0}, v{V_LANE}, 48, v{V_X0}")
        p(f"  v_lshlrev_b32 v{V_X0}, 4, v{V_X0}")
        p(f"  s_lshl_b32 s{S_T1}, s{S_T0}, 11")
        p(f"  v_add_u32 v{V_DMA+i}, s{S_T1}, v{V_X0}")
    p("  s_waitcnt lgkmcnt(0)")
    for (srd, lo, size) in ((S_X, 4, 1 << 25), (S_OUT, 10, 1 << 25), (S_WS, 14, WS_USED), (S_BIAS, 8, 2048)):
        p(f"  s_mov_b32 s{srd}, s{lo}")
        p(f"  s_mov_b32 s{srd+1}, s{lo+1}")
        p(f"  s_mov_b32 s{srd+2}, {size}")
        p(f"  s_mov_b32 s{srd+3}, 0x00020000")
    p(f"  s_lshl_b32 s{S_T0}, s{S_SLOT}, 4")
    p(f"  s_add_u32 s{S_T0}, s{S_T0}, {CNT_OFF}")
    p(f"  s_load_dwordx4 s[{S_C0}:{S_C0+3}], s[14:15], s{S_T0}")
    p(f"  s_mov_b32 s{S_DGOFF}, s{S_ROWB}")
    p(f"  s_mov_b32 s{S_DC}, 0")
    for part in range(8):
        P.extend(dma_part(part, 0, 0))
    P.extend(dma_advance())
    p(f"  s_lshl_b32 s{S_T0}, s{S_SLOT}, 13")
    p(f"  s_add_u32 s{S_T0}, s{S_T0}, {IDX_OFF}")
    for j in range(8):
        if j == 4:
            p(f"  s_add_u32 s{S_T0}, s{S_T0}, 4096")
        p(f"  buffer_load_dwordx4 v[{V_IDX+4*j}:{V_IDX+4*j+3}], v{V_LO16A}, s[{S_WS}:{S_WS+3}], s{S_T0} offen offset:{(j&3)*1024}{ALF}",
          vm=("I", 0))
    p(f"  v_lshlrev_b32 v{V_X0}, 4, v{V_Q}")
    p(f"  s_lshl_b32 s{S_T0}, s{S_SLOT}, 7")
    for j in range(2):
        p(f"  buffer_load_dwordx4 v[{V_GT+4*j}:{V_GT+4*j+3}], v{V_X0}, s[{S_BIAS}:{S_BIAS+3}], s{S_T0} offen offset:{64*j}",
          vm=("B", 0))
    p(f"  s_lshl_b32 s{S_AOFF}, s{S_SLOT}, 16")
    for ks in range(3):
        P.extend(a_load(ks))
    p(f"  v_lshlrev_b32 v{V_ST}, 11, v{V_M}")
    p(f"  v_lshl_add_u32 v{V_ST}, v{V_Q}, 4, v{V_ST}")
    p(f"  s_movk_i32 s{S_T0}, {ROWB}")
    p(f"  v_mul_lo_u32 v{V_X1}, v{V_M}, s{S_T0}")
    for pp in range(2):
        for h in range(2):
            p(f"  v_lshlrev_b32 v{V_X0}, 1, v{V_Q}")
            p(f"  v_add_u32 v{V_X0}, {pp*8+h}, v{V_X0}")
            p(f"  v_xor_b32 v{V_X0}, v{V_X0}, v{V_M}")
            p(f"  v_lshl_add_u32 v{V_RB+2*pp+h}, v{V_X0}, 4, v{V_X1}")
    p(f"  v_lshl_or_b32 v{V_GX}, v{V_M}, 4, v{V_X1}")
    p(f"  v_lshrrev_b32 v{V_X0}, 2, v{V_M}")
    p(f"  v_and_b32 v{V_BF2}, 3, v{V_M}")
    p(f"  v_lshl_or_b32 v{V_BF2}, v{V_X0}, 3, v{V_BF2}")
    p(f"  v_lshl_or_b32 v{V_BF2}, v{V_BF2}, 16, v{V_BF2}")
    p("  s_waitcnt lgkmcnt(0)")
    p(f"  s_add_u32 s{S_P1}, s{S_C0}, -1")
    p(f"  s_add_u32 s{S_P2}, s{S_P1}, s{S_C0+1}")
    p(f"  s_add_u32 s{S_P3}, s{S_P2}, s{S_C0+2}")
    p(f"  s_add_u32 s{S_PT}, s{S_P3}, s{S_C0+3}")
    for i, d in enumerate((S_D1, S_D2, S_D3)):
        p(f"  s_lshl_b32 s{S_T0}, s{S_C0+i}, 5")
        p(f"  s_sub_u32 s{d}, {CAPB}, s{S_T0}")
    p(f"  s_add_u32 s{S_NG}, s{S_PT}, 8")
    p(f"  s_lshr_b32 s{S_NG}, s{S_NG}, 3")
    p(f"  s_lshl_b32 s{S_LB}, s{S_SLOT}, 18")
    p(f"  s_add_u32 s{S_LB}, s{S_LB}, {LIST_OFF}")
    for g in range(NRES):
        for i in range(2):
            unit_addr(P, const=8 * g + i)
            p(f"  buffer_load_dwordx4 v[{V_GB+8*g+4*i}:{V_GB+8*g+4*i+3}], v{V_X1}, s[{S_WS}:{S_WS+3}], s{S_LB} offen",
              vm=("U", g))
            p(f"  buffer_load_dwordx4 v[{V_B+8*g+4*i}:{V_B+8*g+4*i+3}], v{V_X1}, s[{S_WS}:{S_WS+3}], s{S_LB} offen offset:16",
              vm=("U", g))
    for ks in range(3, A_PRE):
        P.extend(a_load(ks))
    for part in range(8):
        P.extend(dma_part(part, 1, 1))
    P.extend(dma_advance())
    P.extend(stamp(1))
    P.append(W(wv=("B", 0)))
    for j in range(2):
        for d in range(4):
            fs = 2 * j + (d >> 1)
            r = 2 * (d & 1)
            p(f"  v_lshlrev_b32 v{V_BIAS+4*fs+r}, 16, v{V_GT+4*j+d}")
            p(f"  v_and_b32 v{V_BIAS+4*fs+r+1}, 0xffff0000, v{V_GT+4*j+d}")
    for g in range(NRES):
        P.append(W(wv=("U", g)))
        for jj in range(8):
            p(f"  v_xor_b32 v{V_GB+8*g+jj}, v{V_GB+8*g+jj}, v{V_GX}")
        for i in range(2):
            for j in range(2):
                r = V_B + 8 * g + 4 * i + 2 + j
                p(f"  v_xor_b32 v{r}, v{r}, v{V_BF2}")
        for fs in range(4):
            afrag(P, fs, V_B + 8 * g, V_AP + 16 * g + 4 * fs)
    P.extend(stamp(2))
    P.append(W(wv=("D", 0)))
    p("  s_barrier")
    p(f"  s_lshl_b32 s{S_OOFF}, s{S_SLOT}, 7")
    p(f"  s_add_u32 s{S_OOFF}, s{S_OOFF}, s{S_ROWB}")
    p(f"  s_mov_b32 s{S_CNT}, 0")
    P.extend(rd(0, 0, 0))
    P.extend(rd(1, 0, 0))
    P.extend(gather(0, 0, 0)[:4])
    P.extend(rd(2, 0, 0))
    P.extend(gather(0, 0, 0)[4:])
    P.extend(stamp(3))

    F = body("f", 0, 0, False, True, first=True)
    F.extend(stamp(4))
    slots = [1, 2, 3, 4, 0]
    bufs = [1, 0, 1, 0, 1]
    LB = []
    for i, (sl, bf) in enumerate(zip(slots, bufs)):
        LB.append(body(f"b{i}", sl, bf, i > 0, i == 4))
    seq = [(P, 0), (F, 0)]
    c = 1
    for it in range(3):
        for blk in LB:
            seq.append((blk, c))
            c += 1
    resolve(seq)
    emit(P)
    emit(F)
    e("Lloop:")
    for blk in LB:
        emit(blk)
    e(f"  s_add_u32 s{S_CNT}, s{S_CNT}, 1")
    e(f"  s_cmp_lt_u32 s{S_CNT}, 3")
    e("  s_cbranch_scc1 Lloop")
    if DBG:
        emit(stamp(5))
        e("  s_waitcnt vmcnt(0)")
        emit(stamp(6))
        e("  s_load_dwordx2 s[12:13], s[0:1], 32")
        e("  s_waitcnt lgkmcnt(0)")
        e("  s_mov_b32 s84, s12")
        e("  s_mov_b32 s85, s13")
        e("  s_mov_b32 s86, 256")
        e("  s_mov_b32 s87, 0x00020000")
        e("  s_and_b32 s88, s2, 63")
        e("  s_cmp_lg_u32 s88, 0")
        e("  s_cbranch_scc1 Lm_end")
        e(f"  s_cmp_lg_u32 s{S_W}, 0")
        e("  s_cbranch_scc1 Lm_end")
        e("  s_lshr_b32 s88, s2, 6")
        e("  s_lshl_b32 s88, s88, 5")
        e("  v_mov_b32 v1, 0")
        e("  s_mov_b64 exec, 1")
        for i in range(7):
            if i:
                e(f"  s_sub_u32 s68, s{S_STAMP+i}, s{S_STAMP}")
            else:
                e(f"  s_mov_b32 s68, s{S_STAMP}")
            e("  v_mov_b32 v2, s68")
            e(f"  buffer_store_dword v2, v1, s[84:87], s88 offen offset:{4*i}")
    e("Lm_end:")
    e("  s_endpgm")
    if not NORES:
        emit(slow_path("f", 0, 0, first=True))
        for i, (sl, bf) in enumerate(zip(slots, bufs)):
            emit(slow_path(f"b{i}", sl, bf))


def main():
    e("; Kernarg layout: 0 x, 8 w, 16 b, 24 out, 32 debug, 40 ws")
    e("; @launch kernel=prep_kernel grid=(64,1,1) block=(1024,1,1) lds=256")
    e(f"; @launch kernel={KNAME} grid=(256,1,1) block=(256,1,1) lds={16*ROWB}")
    e('.amdgcn_target "amdgcn-amd-amdhsa--gfx950"')
    e(".text")
    gen_prep()
    gen_main()
    e('.section .rodata,"a"')
    e(".p2align 6")
    e(".amdhsa_kernel prep_kernel")
    e("  .amdhsa_next_free_vgpr 64")
    e("  .amdhsa_next_free_sgpr 64")
    e("  .amdhsa_accum_offset 64")
    e("  .amdhsa_group_segment_fixed_size 0")
    e("  .amdhsa_kernarg_size 48")
    e("  .amdhsa_user_sgpr_count 2")
    e("  .amdhsa_user_sgpr_kernarg_segment_ptr 1")
    e("  .amdhsa_system_sgpr_workgroup_id_x 1")
    e(".end_amdhsa_kernel")
    e(".p2align 6")
    e(f".amdhsa_kernel {KNAME}")
    e("  .amdhsa_next_free_vgpr 512")
    e("  .amdhsa_next_free_sgpr 96")
    e("  .amdhsa_accum_offset 256")
    e("  .amdhsa_group_segment_fixed_size 0")
    e("  .amdhsa_kernarg_size 48")
    e("  .amdhsa_user_sgpr_count 2")
    e("  .amdhsa_user_sgpr_kernarg_segment_ptr 1")
    e("  .amdhsa_system_sgpr_workgroup_id_x 1")
    e(".end_amdhsa_kernel")
    path = sys.argv[1] if len(sys.argv) > 1 else "standalone__structured_sparse_n_m__ragged.s"
    open(path, "w").write("\n".join(out) + "\n")


if __name__ == "__main__":
    main()
```

```python
import sys, os

DBG = int(os.environ.get("DBG", "0"))
NODMA = int(os.environ.get("NODMA", "0"))
NORES = int(os.environ.get("NORES", "0"))
NOST = int(os.environ.get("NOST", "0"))
DMAF = os.environ.get("DMAF", " nt")
WLF = os.environ.get("WLF", " nt")
ALF = os.environ.get("ALF", "")

KNAME = "standalone__structured_sparse_n_m__ragged_kernel"

A_OFF = 0
IDX_OFF = 1 << 20
CNT_OFF = (1 << 20) + (128 << 10)
LIST_OFF = 2 << 20
CAPB = 65536
WS_USED = 8 << 20

NSLOT = 5
ROWB = NSLOT * 2048
NCHUNK = 16
OOB = 0x40000000
NRES = 4

out = []


def e(s=""):
    out.append(s)


def gen_prep():
    e(".globl prep_kernel")
    e(".p2align 8")
    e(".type prep_kernel,@function")
    e("prep_kernel:")
    e("  s_cmp_ge_u32 s2, 64")
    e("  s_cbranch_scc1 Lp_end")
    e("  s_load_dwordx2 s[4:5], s[0:1], 8")
    e("  s_load_dwordx2 s[6:7], s[0:1], 40")
    e("  v_lshrrev_b32 v1, 6, v0")
    e("  v_and_b32 v2, 63, v0")
    e("  v_readfirstlane_b32 s3, v1")
    e("  s_lshr_b32 s8, s2, 2")
    e("  s_and_b32 s9, s2, 3")
    e("  s_lshr_b32 s10, s3, 2")
    e("  s_lshl_b32 s11, s9, 2")
    e("  s_add_u32 s10, s10, s11")
    e("  s_and_b32 s11, s3, 3")
    e("  s_lshl_b32 s12, s10, 6")
    e("  s_lshl_b32 s13, s11, 4")
    e("  s_add_u32 s12, s12, s13")
    e("  s_lshl_b32 s13, s12, 11")
    e("  s_lshl_b32 s14, s8, 7")
    e("  s_add_u32 s13, s13, s14")
    e("  v_lshlrev_b32 v3, 1, v2")
    e("  s_waitcnt lgkmcnt(0)")
    e("  s_mov_b32 s16, s4")
    e("  s_mov_b32 s17, s5")
    e("  s_mov_b32 s18, 0x200000")
    e("  s_mov_b32 s19, 0x00020000")
    e("  s_mov_b32 s20, s6")
    e("  s_mov_b32 s21, s7")
    e(f"  s_mov_b32 s22, {WS_USED}")
    e("  s_mov_b32 s23, 0x00020000")
    for i in range(8):
        e(f"  buffer_load_ushort v{4+i}, v3, s[16:19], s13 offen{WLF}")
        e(f"  buffer_load_ushort v{12+i}, v3, s[16:19], s13 offen offset:2048{WLF}")
        if i < 7:
            e("  s_add_u32 s13, s13, 4096")
    e("  v_lshrrev_b32 v40, 5, v2")
    e("  v_bfe_u32 v41, v2, 2, 1")
    e("  v_lshl_or_b32 v40, v40, 1, v41")
    e("  v_bfe_u32 v41, v2, 3, 2")
    e("  v_and_b32 v42, 3, v2")
    e("  v_lshl_or_b32 v41, v41, 2, v42")
    e("  v_lshlrev_b32 v42, 10, v40")
    e("  v_lshl_add_u32 v42, v41, 4, v42")
    e("  s_lshl_b32 s24, s8, 4")
    e("  s_add_u32 s24, s24, s10")
    e("  s_lshl_b32 s24, s24, 12")
    e("  s_lshr_b32 s25, s11, 1")
    e("  s_lshl_b32 s25, s25, 8")
    e("  s_add_u32 s24, s24, s25")
    e("  s_and_b32 s25, s11, 1")
    e("  s_lshl_b32 s26, s25, 3")
    e("  s_add_u32 s24, s24, s26")
    e("  v_lshlrev_b32 v43, 11, v40")
    e("  v_lshl_add_u32 v43, v41, 4, v43")
    e("  s_lshl_b32 s26, s8, 13")
    e(f"  s_add_u32 s26, s26, {IDX_OFF}")
    e("  s_lshr_b32 s27, s10, 3")
    e("  s_lshl_b32 s27, s27, 10")
    e("  s_add_u32 s26, s26, s27")
    e("  s_lshr_b32 s27, s11, 1")
    e("  s_lshl_b32 s27, s27, 8")
    e("  s_add_u32 s26, s26, s27")
    e("  s_lshr_b32 s27, s10, 1")
    e("  s_and_b32 s27, s27, 3")
    e("  s_lshl_b32 s27, s27, 2")
    e("  s_add_u32 s26, s26, s27")
    e("  s_and_b32 s27, s10, 1")
    e("  s_lshl_b32 s27, s27, 1")
    e("  s_add_u32 s26, s26, s27")
    e("  s_add_u32 s26, s26, s25")
    e("  v_lshlrev_b32 v44, 16, v2")
    for i in range(8):
        e(f"  v_mov_b32 v{28+i}, 0")
    e("  s_waitcnt vmcnt(0)")
    for i in range(8):
        e(f"  v_lshl_or_b32 v{4+i}, v{12+i}, 16, v{4+i}")
    A, B, C, Dd, H1, L1, H2, L2, T, THR, M, I0, I1, M1, M2, P0 = 46, 47, 48, 49, 50, 51, 52, 53, 54, 55, 56, 57, 58, 59, 60, 62
    for g in range(4):
        lo, hi = 4 + 2 * g, 5 + 2 * g
        e(f"  v_and_b32 v{A}, 0x7fff, v{lo}")
        e(f"  v_bfe_u32 v{B}, v{lo}, 16, 15")
        e(f"  v_and_b32 v{C}, 0x7fff, v{hi}")
        e(f"  v_bfe_u32 v{Dd}, v{hi}, 16, 15")
        e(f"  v_max_u32 v{H1}, v{A}, v{B}")
        e(f"  v_min_u32 v{L1}, v{A}, v{B}")
        e(f"  v_max_u32 v{H2}, v{C}, v{Dd}")
        e(f"  v_min_u32 v{L2}, v{C}, v{Dd}")
        e(f"  v_min_u32 v{T}, v{H1}, v{H2}")
        e(f"  v_max3_u32 v{THR}, v{T}, v{L1}, v{L2}")
        e(f"  v_add_u32 v{THR}, -1, v{THR}")
        e(f"  v_sub_u32 v{A}, v{THR}, v{A}")
        e(f"  v_sub_u32 v{B}, v{THR}, v{B}")
        e(f"  v_sub_u32 v{C}, v{THR}, v{C}")
        e(f"  v_sub_u32 v{Dd}, v{THR}, v{Dd}")
        e(f"  v_lshrrev_b32 v{M}, 31, v{A}")
        e(f"  v_lshrrev_b32 v{B}, 30, v{B}")
        e(f"  v_and_or_b32 v{M}, v{B}, 2, v{M}")
        e(f"  v_lshrrev_b32 v{C}, 29, v{C}")
        e(f"  v_and_or_b32 v{M}, v{C}, 4, v{M}")
        e(f"  v_lshrrev_b32 v{Dd}, 28, v{Dd}")
        e(f"  v_and_or_b32 v{M}, v{Dd}, 8, v{M}")
        e(f"  v_ffbl_b32 v{I0}, v{M}")
        e(f"  v_add_u32 v{T}, -1, v{M}")
        e(f"  v_and_b32 v{M1}, v{M}, v{T}")
        e(f"  v_ffbl_b32 v{I1}, v{M1}")
        e(f"  v_add_u32 v{T}, -1, v{M1}")
        e(f"  v_and_b32 v{M2}, v{M1}, v{T}")
        e(f"  v_cmp_ne_u32 vcc, 0, v{M2}")
        e(f"  v_lshlrev_b32 v{T}, 4, v{I0}")
        e(f"  v_lshrrev_b64 v[{P0}:{P0+1}], v{T}, v[{lo}:{hi}]")
        e(f"  v_and_b32 v{A}, 0xffff, v{P0}")
        e(f"  v_lshlrev_b32 v{T}, 4, v{I1}")
        e(f"  v_lshrrev_b64 v[{P0}:{P0+1}], v{T}, v[{lo}:{hi}]")
        e(f"  v_lshl_or_b32 v{20+g}, v{P0}, 16, v{A}")
        e(f"  v_lshl_or_b32 v{24+g}, v{I1}, 2, v{I0}")
        e("  s_cmp_eq_u64 vcc, 0")
        e(f"  s_cbranch_scc1 Lp_nores{g}")
        mcur = M2
        for which in range(2):
            E = 28 + 2 * g + which
            e(f"  v_ffbl_b32 v{I0}, v{mcur}")
            e(f"  v_lshlrev_b32 v{T}, 4, v{I0}")
            e(f"  v_lshrrev_b64 v[{P0}:{P0+1}], v{T}, v[{lo}:{hi}]")
            e(f"  v_and_b32 v{A}, 0xffff, v{P0}")
            e(f"  v_and_b32 v{B}, 0x7fff, v{P0}")
            e(f"  v_min_u32 v{B}, v{B}, v{mcur}")
            e(f"  v_add_u32 v{C}, s12, v{I0}")
            e(f"  v_add_u32 v{C}, {4*g}, v{C}")
            e(f"  v_lshl_or_b32 v{C}, v{C}, 22, v44")
            e(f"  v_or_b32 v{C}, v{C}, v{A}")
            e(f"  v_cmp_ne_u32 vcc, 0, v{B}")
            if which == 0:
                e(f"  v_add_u32 v{T}, -1, v{M2}")
                e(f"  v_and_b32 v{M1}, v{M2}, v{T}")
            else:
                e("  s_nop 1")
            e(f"  v_cndmask_b32 v{E}, 0, v{C}, vcc")
            mcur = M1
        e(f"Lp_nores{g}:")
    for eh in range(2):
        e(f"  buffer_store_dwordx2 v[{20+2*eh}:{21+2*eh}], v42, s[20:23], s24 offen offset:{512*eh}")
        e(f"  v_lshl_or_b32 v{46+eh}, v{25+2*eh}, 4, v{24+2*eh}")
        e(f"  buffer_store_byte v{46+eh}, v43, s[20:23], s26 offen offset:{512*eh}")
    e("  s_mov_b32 s28, 0")
    for i in range(8):
        e(f"  v_cmp_ne_u32 s[{32+2*i}:{33+2*i}], 0, v{28+i}")
    e("  s_nop 3")
    for i in range(8):
        e(f"  s_bcnt1_i32_b64 s29, s[{32+2*i}:{33+2*i}]")
        e("  s_add_u32 s28, s28, s29")
    e("  v_mov_b32 v46, s28")
    e("  s_lshl_b32 s29, s3, 2")
    e("  v_mov_b32 v47, s29")
    e("  ds_write_b32 v47, v46")
    e("  v_mov_b32 v47, 0")
    e("  s_waitcnt lgkmcnt(0)")
    e("  s_barrier")
    for i in range(4):
        e(f"  ds_read_b128 v[{48+4*i}:{51+4*i}], v47 offset:{16*i}")
    e("  s_waitcnt lgkmcnt(0)")
    e("  s_mov_b32 s28, 0")
    e("  s_mov_b32 s30, 0")
    for i in range(16):
        e(f"  v_readfirstlane_b32 s29, v{48+i}")
        e("  s_add_u32 s30, s30, s29")
        e(f"  s_cmp_gt_u32 s3, {i}")
        e("  s_cselect_b32 s29, s29, 0")
        e("  s_add_u32 s28, s28, s29")
    e("  s_lshl_b32 s31, s2, 16")
    e(f"  s_add_u32 s31, s31, {LIST_OFF}")
    for i in range(8):
        lo, hi = 32 + 2 * i, 33 + 2 * i
        e(f"  s_cmp_eq_u64 s[{lo}:{hi}], 0")
        e(f"  s_cbranch_scc1 Lp_skip{i}")
        e(f"  v_mbcnt_lo_u32_b32 v46, s{lo}, 0")
        e(f"  v_mbcnt_hi_u32_b32 v46, s{hi}, v46")
        e("  v_add_u32 v46, s28, v46")
        e("  v_lshrrev_b32 v47, 2, v46")
        e("  v_lshlrev_b32 v47, 5, v47")
        e("  v_and_b32 v46, 3, v46")
        e("  v_lshl_add_u32 v48, v46, 2, v47")
        e("  v_lshl_add_u32 v49, v46, 1, v47")
        e(f"  v_lshrrev_b32 v50, 21, v{28+i}")
        e("  v_and_b32 v50, 0x7fe, v50")
        e(f"  v_bfe_u32 v51, v{28+i}, 16, 6")
        e(f"  s_mov_b64 exec, s[{lo}:{hi}]")
        e("  buffer_store_dword v50, v48, s[20:23], s31 offen")
        e(f"  buffer_store_short v{28+i}, v49, s[20:23], s31 offen offset:16")
        e("  buffer_store_short v51, v49, s[20:23], s31 offen offset:24")
        e("  s_mov_b64 exec, -1")
        e(f"  s_bcnt1_i32_b64 s29, s[{lo}:{hi}]")
        e("  s_add_u32 s28, s28, s29")
        e(f"Lp_skip{i}:")
    e("  s_cmp_lg_u32 s3, 0")
    e("  s_cbranch_scc1 Lp_end")
    e("  s_add_u32 s29, s30, 3")
    e("  s_lshr_b32 s29, s29, 2")
    e("  s_lshl_b32 s28, s29, 2")
    e("  v_add_u32 v46, s30, v2")
    e("  v_cmp_gt_u32 vcc, s28, v46")
    e("  v_lshrrev_b32 v47, 2, v46")
    e("  v_lshlrev_b32 v47, 5, v47")
    e("  v_and_b32 v46, 3, v46")
    e("  v_lshl_add_u32 v48, v46, 2, v47")
    e("  v_lshl_add_u32 v49, v46, 1, v47")
    e("  v_mov_b32 v50, 0")
    e("  v_mov_b32 v51, s29")
    e("  s_lshl_b32 s29, s2, 2")
    e(f"  s_add_u32 s29, s29, {CNT_OFF}")
    e("  s_mov_b64 s[32:33], vcc")
    e("  s_cmp_eq_u64 s[32:33], 0")
    e("  s_cbranch_scc1 Lp_nopad")
    e("  s_mov_b64 exec, s[32:33]")
    e("  buffer_store_dword v50, v48, s[20:23], s31 offen")
    e("  buffer_store_short v50, v49, s[20:23], s31 offen offset:16")
    e("  buffer_store_short v50, v49, s[20:23], s31 offen offset:24")
    e("Lp_nopad:")
    e("  s_mov_b64 exec, 1")
    e("  buffer_store_dword v51, v50, s[20:23], s29 offen")
    e("Lp_end:")
    e("  s_endpgm")


V_BF2 = 0
V_M, V_Q = 1, 2
V_DMA = 3
V_ST = 7
V_RB = 8
V_GX = 12
V_X0, V_X1, V_X2 = 13, 14, 15
V_IDX = 16
V_BIAS = 48
V_ACC = 64
V_B = 96
V_AP = 128
V_GB = 192
V_GT = 224
V_BP = 232
V_T = 236
V_SV = 244
V_AT = 252
V_LO16 = 232
V_LANE = 233

S_X, S_OUT, S_WS, S_BIAS = 16, 20, 24, 28
S_W = 32
S_SLOT = 33
S_DGOFF = 36
S_OOFF = 37
S_CNT = 38
S_NG = 39
S_C0 = 40
S_P1, S_P2, S_P3, S_PT = 44, 45, 46, 47
S_D1, S_D2, S_D3 = 48, 49, 50
S_LB = 51
S_T0, S_T1, S_T2 = 52, 53, 54
S_ROWB = 56
S_G = 57
S_DC = 59
S_M0R = 60
S_K1, S_KM1 = 64, 65
S_AOFF = 66
S_STAMP = 70


class I:
    def __init__(self, text, lds=None, vm=None, opt=False, wl=None, wv=None):
        self.text, self.lds, self.vm, self.opt, self.wl, self.wv = text, lds, vm, opt, wl, wv
        self.nl = None
        self.nv = None


def W(wl=None, wv=None):
    return I("WAIT", wl=wl, wv=wv)


def stamp(i):
    if DBG and i == 0:
        return [I("  s_memrealtime s[98:99]"), I(f"  s_memtime s[68:69]"), I("  s_waitcnt lgkmcnt(0)"), I(f"  s_mov_b32 s{S_STAMP+i}, s68")]
    if DBG:
        return [I("  s_memtime s[68:69]"), I("  s_waitcnt lgkmcnt(0)"), I(f"  s_mov_b32 s{S_STAMP+i}, s68")]
    return []


def unit_addr(L, const=None, sg=None):
    L.append(I(f"  v_lshlrev_b32 v{V_X0}, 1, v{V_Q}"))
    if sg is None:
        L.append(I(f"  v_add_u32 v{V_X0}, {const}, v{V_X0}"))
    else:
        L.append(I(f"  s_lshl_b32 s{S_T0}, s{sg}, 3"))
        L.append(I(f"  s_add_u32 s{S_T0}, s{S_T0}, {const}"))
        L.append(I(f"  v_add_u32 v{V_X0}, s{S_T0}, v{V_X0}"))
    L.append(I(f"  v_lshlrev_b32 v{V_X1}, 5, v{V_X0}"))
    for (p, d) in ((S_P1, S_D1), (S_P2, S_D2), (S_P3, S_D3)):
        L.append(I(f"  v_sub_u32 v{V_X2}, s{p}, v{V_X0}"))
        L.append(I(f"  v_ashrrev_i32 v{V_X2}, 31, v{V_X2}"))
        L.append(I(f"  v_and_b32 v{V_X2}, s{d}, v{V_X2}"))
        L.append(I(f"  v_add_u32 v{V_X1}, v{V_X1}, v{V_X2}"))
    L.append(I(f"  v_sub_u32 v{V_X2}, s{S_PT}, v{V_X0}"))
    L.append(I(f"  v_ashrrev_i32 v{V_X2}, 31, v{V_X2}"))
    L.append(I(f"  v_and_b32 v{V_X2}, {OOB}, v{V_X2}"))
    L.append(I(f"  v_or_b32 v{V_X1}, v{V_X1}, v{V_X2}"))


def afrag(L, fs, vvff, dst):
    cst = 32 * (fs >> 1) + 4 * (fs & 1)
    cst2 = cst | (cst << 16)
    for i in range(2):
        for j in range(2):
            vv, ff = vvff + 4 * i + j, vvff + 4 * i + 2 + j
            d = dst + 2 * i + j
            if cst2:
                L.append(I(f"  v_xor_b32 v{d}, {cst2}, v{ff}"))
                L.append(I(f"  v_pk_min_u16 v{d}, v{d}, s{S_K1}"))
            else:
                L.append(I(f"  v_pk_min_u16 v{d}, v{ff}, s{S_K1}"))
            L.append(I(f"  v_pk_add_u16 v{d}, v{d}, s{S_KM1}"))
            L.append(I(f"  v_and_b32 v{d}, v{d}, v{vv}"))


def dma_part(part, slot, rel):
    i, hh = part >> 1, part & 1
    L = []
    if hh == 0:
        L.append(I(f"  s_add_u32 m0, s{S_M0R+i}, {slot*2048}"))
        L.append(I("  s_nop 0"))
    L.append(I(f"  buffer_load_dwordx4 v{V_DMA+i}, s[{S_X}:{S_X+3}], s{S_DGOFF} offen offset:{hh*1024}{DMAF} lds",
               vm=("D", rel)))
    return L


def dma_advance():
    return [I(f"  s_add_u32 s{S_DC}, s{S_DC}, 1"),
            I(f"  s_add_u32 s{S_DGOFF}, s{S_DGOFF}, 32768"),
            I(f"  s_cmp_ge_u32 s{S_DC}, {NCHUNK}"),
            I(f"  s_cselect_b32 s{S_DGOFF}, {OOB}, s{S_DGOFF}")]


def rd(ks, slot, rel):
    p = ks & 1
    b = V_B + 8 * (ks & 3)
    off = slot * 2048 + (ks >> 1) * 256
    return [I(f"  ds_read_b128 v[{b}:{b+3}], v{V_RB+2*p} offset:{off}", lds=("R", ks, rel)),
            I(f"  ds_read_b128 v[{b+4}:{b+7}], v{V_RB+2*p+1} offset:{off}", lds=("R", ks, rel))]


def gather(g, slot, rel, opt=False):
    return [I(f"  ds_read_u16 v{V_GT+jj}, v{V_GB+8*g+jj} offset:{slot*2048}", lds=("G", g, rel), opt=opt)
            for jj in range(8)]


def res_mfma(g, acc, first):
    L = []
    for d in range(4):
        L.append(I(f"  v_lshl_or_b32 v{V_BP+d}, v{V_GT+2*d+1}, 16, v{V_GT+2*d}"))
    L.append(I("  s_nop 1"))
    for fs in range(4):
        c = V_BIAS + 4 * fs if first else acc + 4 * fs
        L.append(I(f"  v_mfma_f32_16x16x32_bf16 v[{acc+4*fs}:{acc+4*fs+3}], v[{V_AP+16*g+4*fs}:{V_AP+16*g+4*fs+3}], "
                   f"v[{V_BP}:{V_BP+3}], v[{c}:{c+3}]"))
    return L


def epilogue(acc):
    L = []
    for j in range(2):
        for d in range(4):
            fs = 2 * j + (d >> 1)
            r = 2 * (d & 1)
            L.append(I(f"  v_cvt_pk_bf16_f32 v{V_T+4*j+d}, v{acc+4*fs+r}, v{acc+4*fs+r+1}"))
        if not NOST:
            L.append(I(f"  buffer_store_dwordx4 v[{V_T+4*j}:{V_T+4*j+3}], v{V_ST}, s[{S_OUT}:{S_OUT+3}], s{S_OOFF} offen offset:{64*j}",
                       vm=("S", 0)))
    L.append(I(f"  s_add_u32 s{S_OOFF}, s{S_OOFF}, 32768"))
    return L


def a_load(ks):
    L = []
    for fs in range(4):
        a = (ks * 4 + fs) * 4
        L.append(I(f"  buffer_load_dwordx4 a[{a}:{a+3}], v{V_LO16A}, s[{S_WS}:{S_WS+3}], s{S_AOFF} offen offset:{fs*1024}{ALF}",
                   vm=("A", ks)))
    L.append(I(f"  s_add_u32 s{S_AOFF}, s{S_AOFF}, 4096"))
    return L


V_LO16A = 244
A_PRE = 6


def body(name, slot, buf, prev_epi, own_epi, first=False):
    X = V_ACC + 16 * buf
    Y = V_ACC + 16 * (1 - buf)
    nslot = (slot + 1) % NSLOT
    L = []
    L.append(W(wl=("G", 0, 0)))
    L += res_mfma(0, X, True)
    for ks in range(16):
        pre, fill, post = [], [], []
        if ks == 13:
            pre = [W(wv=("D", 1)), I("  s_barrier")]
        if ks + 3 < 16:
            fill += rd(ks + 3, slot, 0)
        else:
            fill += rd(ks + 3 - 16, nslot, 1)
        if prev_epi:
            ep = epilogue(Y)
            if ks == 6:
                fill += ep[:5]
            if ks == 8:
                fill += ep[5:]
        if not first:
            part = (ks - 13) % 16
            if part < 8 and not NODMA:
                if ks >= 13:
                    fill += dma_part(part, (slot + 4) % NSLOT, 4)
                else:
                    fill += dma_part(part, (slot + 3) % NSLOT, 3)
                if part == 7:
                    fill += dma_advance()
        else:
            if ks + A_PRE < 16:
                fill += a_load(ks + A_PRE)
            if 4 <= ks < 12:
                c = 2 + (ks - 4) // 4
                for part in (2 * ((ks - 4) % 4), 2 * ((ks - 4) % 4) + 1):
                    fill += dma_part(part, c, c)
                    if part == 7:
                        fill += dma_advance()
            if ks >= 13:
                fill += dma_part(ks - 13, 4, 4)
        if not NORES:
            if ks in (1, 2):
                fill += gather(1, slot, 0)[4 * (ks - 1):4 * ks]
            if ks in (5, 6):
                fill += gather(2, slot, 0)[4 * (ks - 5):4 * (ks - 4)]
            if ks == 9:
                post += [I(f"  s_cmp_gt_u32 s{S_NG}, 3"), I(f"  s_cbranch_scc0 Lg3a_{name}")]
                post += gather(3, slot, 0, opt=True)
                post += [I(f"Lg3a_{name}:")]
            if ks == 4:
                post += [W(wl=("G", 1, 0))] + res_mfma(1, X, False)
            if ks == 8:
                post += [W(wl=("G", 2, 0))] + res_mfma(2, X, False)
            if ks == 12:
                post += [I(f"  s_cmp_gt_u32 s{S_NG}, 3"), I(f"  s_cbranch_scc0 Lg3b_{name}"),
                         W(wl=("G", 3, 0))] + res_mfma(3, X, False) + [I(f"Lg3b_{name}:")]
                post += [I(f"  s_cmp_gt_u32 s{S_NG}, 4"), I(f"  s_cbranch_scc1 Lslow_{name}"), I(f"Lslowback_{name}:")]
        if ks in (14, 15):
            fill += gather(0, nslot, 1)[4 * (ks - 14):4 * (ks - 13)]
        L += pre
        L.append(W(wl=("R", ks, 0), wv=("A", ks) if first else None))
        mf = []
        for fs in range(4):
            a = (ks * 4 + fs) * 4
            b = V_B + 8 * (ks & 3)
            mf.append(I(f"  v_smfmac_f32_16x16x64_bf16 v[{X+4*fs}:{X+4*fs+3}], a[{a}:{a+3}], v[{b}:{b+7}], "
                        f"v{V_IDX+fs*8+(ks>>1)}" + (" abid:1" if ks & 1 else "")))
        n = len(fill)
        per = [(n + 3 - i) // 4 for i in range(4)]
        pos = 0
        for i in range(4):
            L.append(mf[i])
            L += fill[pos:pos + per[i]]
            pos += per[i]
        L += post
    if own_epi:
        L += [I("  s_nop 7")] + epilogue(X)
    return L


def slow_path(name, slot, buf, first=False):
    X = V_ACC + 16 * buf
    L = []
    L.append(I(f"Lslow_{name}:"))
    L.append(I(f"  s_mov_b32 s{S_G}, {NRES}"))
    L.append(I(f"Lslowloop_{name}:"))
    for i in range(2):
        unit_addr(L, const=i, sg=S_G)
        L.append(I(f"  buffer_load_dwordx4 v[{V_T+4*i}:{V_T+4*i+3}], v{V_X1}, s[{S_WS}:{S_WS+3}], s{S_LB} offen"))
        L.append(I(f"  buffer_load_dwordx4 v[{V_SV+4*i}:{V_SV+4*i+3}], v{V_X1}, s[{S_WS}:{S_WS+3}], s{S_LB} offen offset:16"))
    L.append(I("  s_waitcnt vmcnt(0)"))
    for jj in range(8):
        L.append(I(f"  v_xor_b32 v{V_T+jj}, v{V_T+jj}, v{V_GX}"))
    for jj in range(8):
        L.append(I(f"  ds_read_u16 v{V_GT+jj}, v{V_T+jj} offset:{slot*2048}"))
    for i in range(2):
        for j in range(2):
            L.append(I(f"  v_xor_b32 v{V_SV+4*i+2+j}, v{V_SV+4*i+2+j}, v{V_BF2}"))
    L.append(I("  s_waitcnt lgkmcnt(0)"))
    for d in range(4):
        L.append(I(f"  v_lshl_or_b32 v{V_BP+d}, v{V_GT+2*d+1}, 16, v{V_GT+2*d}"))
    for fs in range(4):
        afrag(L, fs, V_SV, V_AT)
        L.append(I("  s_nop 1"))
        L.append(I(f"  v_mfma_f32_16x16x32_bf16 v[{X+4*fs}:{X+4*fs+3}], v[{V_AT}:{V_AT+3}], v[{V_BP}:{V_BP+3}], v[{X+4*fs}:{X+4*fs+3}]"))
        L.append(I("  s_nop 7"))
    L.append(I(f"  s_add_u32 s{S_G}, s{S_G}, 1"))
    L.append(I(f"  s_cmp_lt_u32 s{S_G}, s{S_NG}"))
    L.append(I(f"  s_cbranch_scc1 Lslowloop_{name}"))
    L.append(I(f"  s_branch Lslowback_{name}"))
    return L


def resolve(seq):
    lds, vm = [], []
    for blk, c in seq:
        for ins in blk:
            if ins.lds is not None:
                t = ins.lds
                lds.append(((t[0], t[1], c + t[2]), ins.opt))
            if ins.vm is not None:
                t = ins.vm
                vm.append(((t[0], t[1] + (c if t[0] in ("D",) else 0)), ins.opt))
            if ins.text == "WAIT":
                if ins.wl is not None:
                    key = (ins.wl[0], ins.wl[1], c + ins.wl[2])
                    n, found = 0, False
                    for tag, opt in reversed(lds):
                        if tag == key:
                            found = True
                            break
                        if not opt:
                            n += 1
                    assert found, (key, c)
                    n = min(n, 15)
                    ins.nl = n if ins.nl is None else min(ins.nl, n)
                if ins.wv is not None:
                    key = (ins.wv[0], ins.wv[1] + (c if ins.wv[0] in ("D",) else 0))
                    n, found = 0, False
                    for tag, opt in reversed(vm):
                        if tag == key:
                            found = True
                            break
                        if not opt:
                            n += 1
                    assert found or NODMA, (key, c)
                    n = min(n, 63)
                    ins.nv = n if ins.nv is None else min(ins.nv, n)


def emit(blk):
    for ins in blk:
        if ins.text == "WAIT":
            parts = []
            if ins.nv is not None:
                parts.append(f"vmcnt({ins.nv})")
            if ins.nl is not None:
                parts.append(f"lgkmcnt({ins.nl})")
            e("  s_waitcnt " + " ".join(parts))
        else:
            e(ins.text)


def gen_main():
    e(f".globl {KNAME}")
    e(".p2align 8")
    e(f".type {KNAME},@function")
    e(f"{KNAME}:")
    P = []

    def p(t, **kw):
        P.append(I(t, **kw))

    p("  s_cmp_ge_u32 s2, 256")
    p("  s_cbranch_scc1 Lm_end")
    P.extend(stamp(0))
    p("  s_load_dwordx4 s[4:7], s[0:1], 0")
    p("  s_load_dwordx4 s[8:11], s[0:1], 16")
    p("  s_load_dwordx2 s[14:15], s[0:1], 40")
    p("  v_lshrrev_b32 v3, 6, v0")
    p(f"  v_and_b32 v{V_LANE}, 63, v0")
    p(f"  v_readfirstlane_b32 s{S_W}, v3")
    p(f"  v_and_b32 v{V_M}, 15, v{V_LANE}")
    p(f"  v_lshrrev_b32 v{V_Q}, 4, v{V_LANE}")
    p(f"  v_lshlrev_b32 v{V_LO16A}, 4, v{V_LANE}")
    p(f"  s_and_b32 s{S_T0}, s2, 7")
    p(f"  s_lshr_b32 s{S_T1}, s2, 3")
    p(f"  s_and_b32 s{S_T2}, s{S_T1}, 3")
    p(f"  s_lshr_b32 s{S_T1}, s{S_T1}, 2")
    p(f"  s_lshl_b32 s{S_T1}, s{S_T1}, 3")
    p(f"  s_add_u32 s{S_T1}, s{S_T1}, s{S_T0}")
    p(f"  s_lshl_b32 s{S_ROWB}, s{S_T1}, 19")
    p(f"  s_lshl_b32 s{S_SLOT}, s{S_T2}, 2")
    p(f"  s_add_u32 s{S_SLOT}, s{S_SLOT}, s{S_W}")
    p(f"  s_mul_i32 s{S_M0R}, s{S_W}, {4*ROWB}")
    for i in range(1, 4):
        p(f"  s_add_u32 s{S_M0R+i}, s{S_M0R}, {i*ROWB}")
    p(f"  s_mov_b32 s{S_K1}, 0x00010001")
    p(f"  s_mov_b32 s{S_KM1}, -1")
    for i in range(4):
        p(f"  s_lshl_b32 s{S_T0}, s{S_W}, 2")
        p(f"  s_add_u32 s{S_T0}, s{S_T0}, {i}")
        p(f"  v_xor_b32 v{V_X0}, s{S_T0}, v{V_LANE}")
        p(f"  v_and_b32 v{V_X0}, 15, v{V_X0}")
        p(f"  v_and_or_b32 v{V_X0}, v{V_LANE}, 48, v{V_X0}")
        p(f"  v_lshlrev_b32 v{V_X0}, 4, v{V_X0}")
        p(f"  s_lshl_b32 s{S_T1}, s{S_T0}, 11")
        p(f"  v_add_u32 v{V_DMA+i}, s{S_T1}, v{V_X0}")
    p("  s_waitcnt lgkmcnt(0)")
    for (srd, lo, size) in ((S_X, 4, 1 << 25), (S_OUT, 10, 1 << 25), (S_WS, 14, WS_USED), (S_BIAS, 8, 2048)):
        p(f"  s_mov_b32 s{srd}, s{lo}")
        p(f"  s_mov_b32 s{srd+1}, s{lo+1}")
        p(f"  s_mov_b32 s{srd+2}, {size}")
        p(f"  s_mov_b32 s{srd+3}, 0x00020000")
    p(f"  s_lshl_b32 s{S_T0}, s{S_SLOT}, 4")
    p(f"  s_add_u32 s{S_T0}, s{S_T0}, {CNT_OFF}")
    p(f"  s_load_dwordx4 s[{S_C0}:{S_C0+3}], s[14:15], s{S_T0}")
    p(f"  s_mov_b32 s{S_DGOFF}, s{S_ROWB}")
    p(f"  s_mov_b32 s{S_DC}, 0")
    for part in range(8):
        P.extend(dma_part(part, 0, 0))
    P.extend(dma_advance())
    p(f"  s_lshl_b32 s{S_T0}, s{S_SLOT}, 13")
    p(f"  s_add_u32 s{S_T0}, s{S_T0}, {IDX_OFF}")
    for j in range(8):
        if j == 4:
            p(f"  s_add_u32 s{S_T0}, s{S_T0}, 4096")
        p(f"  buffer_load_dwordx4 v[{V_IDX+4*j}:{V_IDX+4*j+3}], v{V_LO16A}, s[{S_WS}:{S_WS+3}], s{S_T0} offen offset:{(j&3)*1024}{ALF}",
          vm=("I", 0))
    p(f"  v_lshlrev_b32 v{V_X0}, 4, v{V_Q}")
    p(f"  s_lshl_b32 s{S_T0}, s{S_SLOT}, 7")
    for j in range(2):
        p(f"  buffer_load_dwordx4 v[{V_GT+4*j}:{V_GT+4*j+3}], v{V_X0}, s[{S_BIAS}:{S_BIAS+3}], s{S_T0} offen offset:{64*j}",
          vm=("B", 0))
    p(f"  s_lshl_b32 s{S_AOFF}, s{S_SLOT}, 16")
    for ks in range(3):
        P.extend(a_load(ks))
    p(f"  v_lshlrev_b32 v{V_ST}, 11, v{V_M}")
    p(f"  v_lshl_add_u32 v{V_ST}, v{V_Q}, 4, v{V_ST}")
    p(f"  s_movk_i32 s{S_T0}, {ROWB}")
    p(f"  v_mul_lo_u32 v{V_X1}, v{V_M}, s{S_T0}")
    for pp in range(2):
        for h in range(2):
            p(f"  v_lshlrev_b32 v{V_X0}, 1, v{V_Q}")
            p(f"  v_add_u32 v{V_X0}, {pp*8+h}, v{V_X0}")
            p(f"  v_xor_b32 v{V_X0}, v{V_X0}, v{V_M}")
            p(f"  v_lshl_add_u32 v{V_RB+2*pp+h}, v{V_X0}, 4, v{V_X1}")
    p(f"  v_lshl_or_b32 v{V_GX}, v{V_M}, 4, v{V_X1}")
    p(f"  v_lshrrev_b32 v{V_X0}, 2, v{V_M}")
    p(f"  v_and_b32 v{V_BF2}, 3, v{V_M}")
    p(f"  v_lshl_or_b32 v{V_BF2}, v{V_X0}, 3, v{V_BF2}")
    p(f"  v_lshl_or_b32 v{V_BF2}, v{V_BF2}, 16, v{V_BF2}")
    p("  s_waitcnt lgkmcnt(0)")
    p(f"  s_add_u32 s{S_P1}, s{S_C0}, -1")
    p(f"  s_add_u32 s{S_P2}, s{S_P1}, s{S_C0+1}")
    p(f"  s_add_u32 s{S_P3}, s{S_P2}, s{S_C0+2}")
    p(f"  s_add_u32 s{S_PT}, s{S_P3}, s{S_C0+3}")
    for i, d in enumerate((S_D1, S_D2, S_D3)):
        p(f"  s_lshl_b32 s{S_T0}, s{S_C0+i}, 5")
        p(f"  s_sub_u32 s{d}, {CAPB}, s{S_T0}")
    p(f"  s_add_u32 s{S_NG}, s{S_PT}, 8")
    p(f"  s_lshr_b32 s{S_NG}, s{S_NG}, 3")
    p(f"  s_lshl_b32 s{S_LB}, s{S_SLOT}, 18")
    p(f"  s_add_u32 s{S_LB}, s{S_LB}, {LIST_OFF}")
    for g in range(NRES):
        for i in range(2):
            unit_addr(P, const=8 * g + i)
            p(f"  buffer_load_dwordx4 v[{V_GB+8*g+4*i}:{V_GB+8*g+4*i+3}], v{V_X1}, s[{S_WS}:{S_WS+3}], s{S_LB} offen",
              vm=("U", g))
            p(f"  buffer_load_dwordx4 v[{V_B+8*g+4*i}:{V_B+8*g+4*i+3}], v{V_X1}, s[{S_WS}:{S_WS+3}], s{S_LB} offen offset:16",
              vm=("U", g))
    for ks in range(3, A_PRE):
        P.extend(a_load(ks))
    for part in range(8):
        P.extend(dma_part(part, 1, 1))
    P.extend(dma_advance())
    P.extend(stamp(1))
    P.append(W(wv=("B", 0)))
    for j in range(2):
        for d in range(4):
            fs = 2 * j + (d >> 1)
            r = 2 * (d & 1)
            p(f"  v_lshlrev_b32 v{V_BIAS+4*fs+r}, 16, v{V_GT+4*j+d}")
            p(f"  v_and_b32 v{V_BIAS+4*fs+r+1}, 0xffff0000, v{V_GT+4*j+d}")
    for g in range(NRES):
        P.append(W(wv=("U", g)))
        for jj in range(8):
            p(f"  v_xor_b32 v{V_GB+8*g+jj}, v{V_GB+8*g+jj}, v{V_GX}")
        for i in range(2):
            for j in range(2):
                r = V_B + 8 * g + 4 * i + 2 + j
                p(f"  v_xor_b32 v{r}, v{r}, v{V_BF2}")
        for fs in range(4):
            afrag(P, fs, V_B + 8 * g, V_AP + 16 * g + 4 * fs)
    P.extend(stamp(2))
    P.append(W(wv=("D", 0)))
    p("  s_barrier")
    p(f"  s_lshl_b32 s{S_OOFF}, s{S_SLOT}, 7")
    p(f"  s_add_u32 s{S_OOFF}, s{S_OOFF}, s{S_ROWB}")
    p(f"  s_mov_b32 s{S_CNT}, 0")
    P.extend(rd(0, 0, 0))
    P.extend(rd(1, 0, 0))
    P.extend(gather(0, 0, 0)[:4])
    P.extend(rd(2, 0, 0))
    P.extend(gather(0, 0, 0)[4:])
    P.extend(stamp(3))

    F = body("f", 0, 0, False, True, first=True)
    F.extend(stamp(4))
    slots = [1, 2, 3, 4, 0]
    bufs = [1, 0, 1, 0, 1]
    LB = []
    for i, (sl, bf) in enumerate(zip(slots, bufs)):
        LB.append(body(f"b{i}", sl, bf, i > 0, i == 4))
    seq = [(P, 0), (F, 0)]
    c = 1
    for it in range(3):
        for blk in LB:
            seq.append((blk, c))
            c += 1
    resolve(seq)
    emit(P)
    emit(F)
    e("Lloop:")
    for blk in LB:
        emit(blk)
    e(f"  s_add_u32 s{S_CNT}, s{S_CNT}, 1")
    e(f"  s_cmp_lt_u32 s{S_CNT}, 3")
    e("  s_cbranch_scc1 Lloop")
    if DBG:
        emit(stamp(5))
        e("  s_waitcnt vmcnt(0)")
        emit(stamp(6))
        e("  s_memrealtime s[100:101]")
        e("  s_load_dwordx2 s[12:13], s[0:1], 32")
        e("  s_waitcnt lgkmcnt(0)")
        e("  s_mov_b32 s84, s12")
        e("  s_mov_b32 s85, s13")
        e("  s_mov_b32 s86, 256")
        e("  s_mov_b32 s87, 0x00020000")
        e("  s_and_b32 s88, s2, 63")
        e("  s_cmp_lg_u32 s88, 0")
        e("  s_cbranch_scc1 Lm_end")
        e(f"  s_cmp_lg_u32 s{S_W}, 0")
        e("  s_cbranch_scc1 Lm_end")
        e("  s_lshr_b32 s88, s2, 6")
        e("  s_lshl_b32 s88, s88, 5")
        e("  v_mov_b32 v1, 0")
        e("  s_mov_b64 exec, 1")
        for i in range(7):
            if i:
                e(f"  s_sub_u32 s68, s{S_STAMP+i}, s{S_STAMP}")
            else:
                e(f"  s_mov_b32 s68, s{S_STAMP}")
            e("  v_mov_b32 v2, s68")
            e(f"  buffer_store_dword v2, v1, s[84:87], s88 offen offset:{4*i}")
        e("  s_sub_u32 s100, s100, s98")
        e("  v_mov_b32 v2, s100")
        e("  buffer_store_dword v2, v1, s[84:87], s88 offen offset:28")
    e("Lm_end:")
    e("  s_endpgm")
    if not NORES:
        emit(slow_path("f", 0, 0, first=True))
        for i, (sl, bf) in enumerate(zip(slots, bufs)):
            emit(slow_path(f"b{i}", sl, bf))


def main():
    e("; Kernarg layout: 0 x, 8 w, 16 b, 24 out, 32 debug, 40 ws")
    e("; @launch kernel=prep_kernel grid=(64,1,1) block=(1024,1,1) lds=256")
    e(f"; @launch kernel={KNAME} grid=(256,1,1) block=(256,1,1) lds={16*ROWB}")
    e('.amdgcn_target "amdgcn-amd-amdhsa--gfx950"')
    e(".text")
    gen_prep()
    gen_main()
    e('.section .rodata,"a"')
    e(".p2align 6")
    e(".amdhsa_kernel prep_kernel")
    e("  .amdhsa_next_free_vgpr 64")
    e("  .amdhsa_next_free_sgpr 64")
    e("  .amdhsa_accum_offset 64")
    e("  .amdhsa_group_segment_fixed_size 0")
    e("  .amdhsa_kernarg_size 48")
    e("  .amdhsa_user_sgpr_count 2")
    e("  .amdhsa_user_sgpr_kernarg_segment_ptr 1")
    e("  .amdhsa_system_sgpr_workgroup_id_x 1")
    e(".end_amdhsa_kernel")
    e(".p2align 6")
    e(f".amdhsa_kernel {KNAME}")
    e("  .amdhsa_next_free_vgpr 512")
    e("  .amdhsa_next_free_sgpr 102")
    e("  .amdhsa_accum_offset 256")
    e("  .amdhsa_group_segment_fixed_size 0")
    e("  .amdhsa_kernarg_size 48")
    e("  .amdhsa_user_sgpr_count 2")
    e("  .amdhsa_user_sgpr_kernarg_segment_ptr 1")
    e("  .amdhsa_system_sgpr_workgroup_id_x 1")
    e(".end_amdhsa_kernel")
    path = sys.argv[1] if len(sys.argv) > 1 else "standalone__structured_sparse_n_m__ragged.s"
    open(path, "w").write("\n".join(out) + "\n")


if __name__ == "__main__":
    main()
```

```python
import sys, os

DBG = int(os.environ.get("DBG", "0"))
NODMA = int(os.environ.get("NODMA", "0"))
NORES = int(os.environ.get("NORES", "0"))
NOST = int(os.environ.get("NOST", "0"))
DMAF = os.environ.get("DMAF", " nt")
WLF = os.environ.get("WLF", " nt")
ALF = os.environ.get("ALF", "")

KNAME = "standalone__structured_sparse_n_m__ragged_kernel"

A_OFF = 0
IDX_OFF = 1 << 20
CNT_OFF = (1 << 20) + (128 << 10)
LIST_OFF = 2 << 20
CAPB = 16384
WS_USED = 8 << 20

NSLOT = 5
ROWB = NSLOT * 2048
NCHUNK = 16
OOB = 0x40000000
NRES = 4

out = []


def e(s=""):
    out.append(s)


def gen_prep():
    e(".globl prep_kernel")
    e(".p2align 8")
    e(".type prep_kernel,@function")
    e("prep_kernel:")
    e("  s_cmp_ge_u32 s2, 256")
    e("  s_cbranch_scc1 Lp_end")
    e("  s_load_dwordx2 s[4:5], s[0:1], 8")
    e("  s_load_dwordx2 s[6:7], s[0:1], 40")
    e("  v_lshrrev_b32 v1, 6, v0")
    e("  v_and_b32 v2, 63, v0")
    e("  v_readfirstlane_b32 s3, v1")
    e("  s_lshr_b32 s8, s2, 4")
    e("  s_and_b32 s10, s2, 15")
    e("  s_mov_b32 s11, s3")
    e("  s_lshl_b32 s12, s10, 6")
    e("  s_lshl_b32 s13, s11, 4")
    e("  s_add_u32 s12, s12, s13")
    e("  s_lshl_b32 s13, s12, 11")
    e("  s_lshl_b32 s14, s8, 7")
    e("  s_add_u32 s13, s13, s14")
    e("  v_lshlrev_b32 v3, 1, v2")
    e("  s_waitcnt lgkmcnt(0)")
    e("  s_mov_b32 s16, s4")
    e("  s_mov_b32 s17, s5")
    e("  s_mov_b32 s18, 0x200000")
    e("  s_mov_b32 s19, 0x00020000")
    e("  s_mov_b32 s20, s6")
    e("  s_mov_b32 s21, s7")
    e(f"  s_mov_b32 s22, {WS_USED}")
    e("  s_mov_b32 s23, 0x00020000")
    for i in range(8):
        e(f"  buffer_load_ushort v{4+i}, v3, s[16:19], s13 offen{WLF}")
        e(f"  buffer_load_ushort v{12+i}, v3, s[16:19], s13 offen offset:2048{WLF}")
        if i < 7:
            e("  s_add_u32 s13, s13, 4096")
    e("  v_lshrrev_b32 v40, 5, v2")
    e("  v_bfe_u32 v41, v2, 2, 1")
    e("  v_lshl_or_b32 v40, v40, 1, v41")
    e("  v_bfe_u32 v41, v2, 3, 2")
    e("  v_and_b32 v42, 3, v2")
    e("  v_lshl_or_b32 v41, v41, 2, v42")
    e("  v_lshlrev_b32 v42, 10, v40")
    e("  v_lshl_add_u32 v42, v41, 4, v42")
    e("  s_lshl_b32 s24, s8, 4")
    e("  s_add_u32 s24, s24, s10")
    e("  s_lshl_b32 s24, s24, 12")
    e("  s_lshr_b32 s25, s11, 1")
    e("  s_lshl_b32 s25, s25, 8")
    e("  s_add_u32 s24, s24, s25")
    e("  s_and_b32 s25, s11, 1")
    e("  s_lshl_b32 s26, s25, 3")
    e("  s_add_u32 s24, s24, s26")
    e("  v_lshlrev_b32 v43, 11, v40")
    e("  v_lshl_add_u32 v43, v41, 4, v43")
    e("  s_lshl_b32 s26, s8, 13")
    e(f"  s_add_u32 s26, s26, {IDX_OFF}")
    e("  s_lshr_b32 s27, s10, 3")
    e("  s_lshl_b32 s27, s27, 10")
    e("  s_add_u32 s26, s26, s27")
    e("  s_lshr_b32 s27, s11, 1")
    e("  s_lshl_b32 s27, s27, 8")
    e("  s_add_u32 s26, s26, s27")
    e("  s_lshr_b32 s27, s10, 1")
    e("  s_and_b32 s27, s27, 3")
    e("  s_lshl_b32 s27, s27, 2")
    e("  s_add_u32 s26, s26, s27")
    e("  s_and_b32 s27, s10, 1")
    e("  s_lshl_b32 s27, s27, 1")
    e("  s_add_u32 s26, s26, s27")
    e("  s_add_u32 s26, s26, s25")
    e("  v_lshlrev_b32 v44, 16, v2")
    for i in range(8):
        e(f"  v_mov_b32 v{28+i}, 0")
    e("  s_waitcnt vmcnt(0)")
    for i in range(8):
        e(f"  v_lshl_or_b32 v{4+i}, v{12+i}, 16, v{4+i}")
    A, B, C, Dd, H1, L1, H2, L2, T, THR, M, I0, I1, M1, M2, P0 = 46, 47, 48, 49, 50, 51, 52, 53, 54, 55, 56, 57, 58, 59, 60, 62
    for g in range(4):
        lo, hi = 4 + 2 * g, 5 + 2 * g
        e(f"  v_and_b32 v{A}, 0x7fff, v{lo}")
        e(f"  v_bfe_u32 v{B}, v{lo}, 16, 15")
        e(f"  v_and_b32 v{C}, 0x7fff, v{hi}")
        e(f"  v_bfe_u32 v{Dd}, v{hi}, 16, 15")
        e(f"  v_max_u32 v{H1}, v{A}, v{B}")
        e(f"  v_min_u32 v{L1}, v{A}, v{B}")
        e(f"  v_max_u32 v{H2}, v{C}, v{Dd}")
        e(f"  v_min_u32 v{L2}, v{C}, v{Dd}")
        e(f"  v_min_u32 v{T}, v{H1}, v{H2}")
        e(f"  v_max3_u32 v{THR}, v{T}, v{L1}, v{L2}")
        e(f"  v_add_u32 v{THR}, -1, v{THR}")
        e(f"  v_sub_u32 v{A}, v{THR}, v{A}")
        e(f"  v_sub_u32 v{B}, v{THR}, v{B}")
        e(f"  v_sub_u32 v{C}, v{THR}, v{C}")
        e(f"  v_sub_u32 v{Dd}, v{THR}, v{Dd}")
        e(f"  v_lshrrev_b32 v{M}, 31, v{A}")
        e(f"  v_lshrrev_b32 v{B}, 30, v{B}")
        e(f"  v_and_or_b32 v{M}, v{B}, 2, v{M}")
        e(f"  v_lshrrev_b32 v{C}, 29, v{C}")
        e(f"  v_and_or_b32 v{M}, v{C}, 4, v{M}")
        e(f"  v_lshrrev_b32 v{Dd}, 28, v{Dd}")
        e(f"  v_and_or_b32 v{M}, v{Dd}, 8, v{M}")
        e(f"  v_ffbl_b32 v{I0}, v{M}")
        e(f"  v_add_u32 v{T}, -1, v{M}")
        e(f"  v_and_b32 v{M1}, v{M}, v{T}")
        e(f"  v_ffbl_b32 v{I1}, v{M1}")
        e(f"  v_add_u32 v{T}, -1, v{M1}")
        e(f"  v_and_b32 v{M2}, v{M1}, v{T}")
        e(f"  v_cmp_ne_u32 vcc, 0, v{M2}")
        e(f"  v_lshlrev_b32 v{T}, 4, v{I0}")
        e(f"  v_lshrrev_b64 v[{P0}:{P0+1}], v{T}, v[{lo}:{hi}]")
        e(f"  v_and_b32 v{A}, 0xffff, v{P0}")
        e(f"  v_lshlrev_b32 v{T}, 4, v{I1}")
        e(f"  v_lshrrev_b64 v[{P0}:{P0+1}], v{T}, v[{lo}:{hi}]")
        e(f"  v_lshl_or_b32 v{20+g}, v{P0}, 16, v{A}")
        e(f"  v_lshl_or_b32 v{24+g}, v{I1}, 2, v{I0}")
        e("  s_cmp_eq_u64 vcc, 0")
        e(f"  s_cbranch_scc1 Lp_nores{g}")
        mcur = M2
        for which in range(2):
            E = 28 + 2 * g + which
            e(f"  v_ffbl_b32 v{I0}, v{mcur}")
            e(f"  v_lshlrev_b32 v{T}, 4, v{I0}")
            e(f"  v_lshrrev_b64 v[{P0}:{P0+1}], v{T}, v[{lo}:{hi}]")
            e(f"  v_and_b32 v{A}, 0xffff, v{P0}")
            e(f"  v_and_b32 v{B}, 0x7fff, v{P0}")
            e(f"  v_min_u32 v{B}, v{B}, v{mcur}")
            e(f"  v_add_u32 v{C}, s12, v{I0}")
            e(f"  v_add_u32 v{C}, {4*g}, v{C}")
            e(f"  v_lshl_or_b32 v{C}, v{C}, 22, v44")
            e(f"  v_or_b32 v{C}, v{C}, v{A}")
            e(f"  v_cmp_ne_u32 vcc, 0, v{B}")
            if which == 0:
                e(f"  v_add_u32 v{T}, -1, v{M2}")
                e(f"  v_and_b32 v{M1}, v{M2}, v{T}")
            else:
                e("  s_nop 1")
            e(f"  v_cndmask_b32 v{E}, 0, v{C}, vcc")
            mcur = M1
        e(f"Lp_nores{g}:")
    for eh in range(2):
        e(f"  buffer_store_dwordx2 v[{20+2*eh}:{21+2*eh}], v42, s[20:23], s24 offen offset:{512*eh}")
        e(f"  v_lshl_or_b32 v{46+eh}, v{25+2*eh}, 4, v{24+2*eh}")
        e(f"  buffer_store_byte v{46+eh}, v43, s[20:23], s26 offen offset:{512*eh}")
    e("  s_mov_b32 s28, 0")
    for i in range(8):
        e(f"  v_cmp_ne_u32 s[{32+2*i}:{33+2*i}], 0, v{28+i}")
    e("  s_nop 3")
    for i in range(8):
        e(f"  s_bcnt1_i32_b64 s29, s[{32+2*i}:{33+2*i}]")
        e("  s_add_u32 s28, s28, s29")
    e("  v_mov_b32 v46, s28")
    e("  s_lshl_b32 s29, s3, 2")
    e("  v_mov_b32 v47, s29")
    e("  ds_write_b32 v47, v46")
    e("  v_mov_b32 v47, 0")
    e("  s_waitcnt lgkmcnt(0)")
    e("  s_barrier")
    e("  ds_read_b128 v[48:51], v47")
    e("  s_waitcnt lgkmcnt(0)")
    e("  s_mov_b32 s28, 0")
    e("  s_mov_b32 s30, 0")
    for i in range(4):
        e(f"  v_readfirstlane_b32 s29, v{48+i}")
        e("  s_add_u32 s30, s30, s29")
        e(f"  s_cmp_gt_u32 s3, {i}")
        e("  s_cselect_b32 s29, s29, 0")
        e("  s_add_u32 s28, s28, s29")
    e("  s_lshl_b32 s31, s2, 14")
    e(f"  s_add_u32 s31, s31, {LIST_OFF}")
    for i in range(8):
        lo, hi = 32 + 2 * i, 33 + 2 * i
        e(f"  s_cmp_eq_u64 s[{lo}:{hi}], 0")
        e(f"  s_cbranch_scc1 Lp_skip{i}")
        e(f"  v_mbcnt_lo_u32_b32 v46, s{lo}, 0")
        e(f"  v_mbcnt_hi_u32_b32 v46, s{hi}, v46")
        e("  v_add_u32 v46, s28, v46")
        e("  v_lshrrev_b32 v47, 1, v46")
        e("  v_lshlrev_b32 v47, 4, v47")
        e("  v_and_b32 v46, 1, v46")
        e("  v_lshl_add_u32 v48, v46, 2, v47")
        e("  v_lshl_add_u32 v49, v46, 1, v47")
        e(f"  v_lshrrev_b32 v50, 21, v{28+i}")
        e("  v_and_b32 v50, 0x7fe, v50")
        e(f"  v_bfe_u32 v51, v{28+i}, 16, 6")
        e(f"  s_mov_b64 exec, s[{lo}:{hi}]")
        e("  buffer_store_dword v50, v48, s[20:23], s31 offen")
        e(f"  buffer_store_short v{28+i}, v49, s[20:23], s31 offen offset:8")
        e("  buffer_store_short v51, v49, s[20:23], s31 offen offset:12")
        e("  s_mov_b64 exec, -1")
        e(f"  s_bcnt1_i32_b64 s29, s[{lo}:{hi}]")
        e("  s_add_u32 s28, s28, s29")
        e(f"Lp_skip{i}:")
    e("  s_cmp_lg_u32 s3, 0")
    e("  s_cbranch_scc1 Lp_end")
    e("  s_add_u32 s29, s30, 1")
    e("  s_lshr_b32 s29, s29, 1")
    e("  v_mov_b32 v51, s29")
    e("  v_mov_b32 v50, 0")
    e("  s_mov_b64 exec, 1")
    e("  s_bitcmp0_b32 s30, 0")
    e("  s_cbranch_scc1 Lp_nopad")
    e("  s_lshr_b32 s28, s30, 1")
    e("  s_lshl_b32 s28, s28, 4")
    e("  v_mov_b32 v48, s28")
    e("  buffer_store_dword v50, v48, s[20:23], s31 offen offset:4")
    e("  buffer_store_short v50, v48, s[20:23], s31 offen offset:10")
    e("  buffer_store_short v50, v48, s[20:23], s31 offen offset:14")
    e("Lp_nopad:")
    e("  s_lshl_b32 s29, s2, 2")
    e(f"  s_add_u32 s29, s29, {CNT_OFF}")
    e("  buffer_store_dword v51, v50, s[20:23], s29 offen")
    e("Lp_end:")
    e("  s_endpgm")


V_BF2 = 0
V_M, V_Q = 1, 2
V_DMA = 3
V_ST = 7
V_RB = 8
V_GX = 12
V_X0, V_X1, V_X2 = 13, 14, 15
V_IDX = 16
V_BIAS = 48
V_ACC = 64
V_B = 96
V_AP = 128
V_GB = 192
V_GT = 224
V_BP = 232
V_T = 236
V_SV = 244
V_AT = 228
V_LO16 = 232
V_LANE = 233
V_RIDX = 253
V_SVS = 244

S_X, S_OUT, S_WS, S_BIAS = 16, 20, 24, 28
S_W = 32
S_SLOT = 33
S_DGOFF = 36
S_OOFF = 37
S_CNT = 38
S_NG = 39
S_C0 = 80
S_PF, S_DD = 44, 45
S_LB = 51
S_T0, S_T1, S_T2 = 52, 53, 54
S_ROWB = 56
S_G = 57
S_DC = 59
S_M0R = 60
S_K1, S_KM1 = 64, 65
S_AOFF = 66
S_STAMP = 70


class I:
    def __init__(self, text, lds=None, vm=None, opt=False, wl=None, wv=None):
        self.text, self.lds, self.vm, self.opt, self.wl, self.wv = text, lds, vm, opt, wl, wv
        self.nl = None
        self.nv = None


def W(wl=None, wv=None):
    return I("WAIT", wl=wl, wv=wv)


def stamp(i):
    if DBG and i == 0:
        return [I("  s_memrealtime s[98:99]"), I(f"  s_memtime s[68:69]"), I("  s_waitcnt lgkmcnt(0)"), I(f"  s_mov_b32 s{S_STAMP+i}, s68")]
    if DBG:
        return [I("  s_memtime s[68:69]"), I("  s_waitcnt lgkmcnt(0)"), I(f"  s_mov_b32 s{S_STAMP+i}, s68")]
    return []


V_UT = 254
V_PK = 252
V_PV = 255


def unit_table(L, vu):
    L.append(I(f"  v_lshlrev_b32 v{V_UT}, 4, v{vu}"))
    L.append(I(f"  s_mov_b32 s{S_PF}, -1"))
    for t in range(1, 16):
        L.append(I(f"  s_add_u32 s{S_PF}, s{S_PF}, s{S_C0+t-1}"))
        L.append(I(f"  s_lshl_b32 s{S_DD}, s{S_C0+t-1}, 4"))
        L.append(I(f"  s_sub_u32 s{S_DD}, {CAPB}, s{S_DD}"))
        L.append(I(f"  v_sub_u32 v{V_X2}, s{S_PF}, v{vu}"))
        L.append(I(f"  v_ashrrev_i32 v{V_X2}, 31, v{V_X2}"))
        L.append(I(f"  v_and_b32 v{V_X2}, s{S_DD}, v{V_X2}"))
        L.append(I(f"  v_add_u32 v{V_UT}, v{V_UT}, v{V_X2}"))
    L.append(I(f"  s_add_u32 s{S_PF}, s{S_PF}, s{S_C0+15}"))
    L.append(I(f"  v_sub_u32 v{V_X2}, s{S_PF}, v{vu}"))
    L.append(I(f"  v_ashrrev_i32 v{V_X2}, 31, v{V_X2}"))
    L.append(I(f"  v_and_b32 v{V_X2}, {OOB}, v{V_X2}"))
    L.append(I(f"  v_or_b32 v{V_UT}, v{V_UT}, v{V_X2}"))


def afrag(L, fs, vvff, dst):
    cst = 32 * (fs >> 1) + 4 * (fs & 1)
    cst2 = cst | (cst << 16)
    for dd in range(4):
        vv, ff = vvff + 2 * dd, vvff + 2 * dd + 1
        d = dst + dd
        if cst2:
            L.append(I(f"  v_xor_b32 v{d}, {cst2}, v{ff}"))
            L.append(I(f"  v_pk_min_u16 v{d}, v{d}, s{S_K1}"))
        else:
            L.append(I(f"  v_pk_min_u16 v{d}, v{ff}, s{S_K1}"))
        L.append(I(f"  v_pk_add_u16 v{d}, v{d}, s{S_KM1}"))
        L.append(I(f"  v_and_b32 v{d}, v{d}, v{vv}"))


def dma_part(part, slot, rel):
    i, hh = part >> 1, part & 1
    L = []
    if hh == 0:
        L.append(I(f"  s_add_u32 m0, s{S_M0R+i}, {slot*2048}"))
        L.append(I("  s_nop 0"))
    L.append(I(f"  buffer_load_dwordx4 v{V_DMA+i}, s[{S_X}:{S_X+3}], s{S_DGOFF} offen offset:{hh*1024}{DMAF} lds",
               vm=("D", rel)))
    return L


def dma_advance():
    return [I(f"  s_add_u32 s{S_DC}, s{S_DC}, 1"),
            I(f"  s_add_u32 s{S_DGOFF}, s{S_DGOFF}, 32768"),
            I(f"  s_cmp_ge_u32 s{S_DC}, {NCHUNK}"),
            I(f"  s_cselect_b32 s{S_DGOFF}, {OOB}, s{S_DGOFF}")]


def rd(ks, slot, rel):
    p = ks & 1
    b = V_B + 8 * (ks & 3)
    off = slot * 2048 + (ks >> 1) * 256
    return [I(f"  ds_read_b128 v[{b}:{b+3}], v{V_RB+2*p} offset:{off}", lds=("R", ks, rel)),
            I(f"  ds_read_b128 v[{b+4}:{b+7}], v{V_RB+2*p+1} offset:{off}", lds=("R", ks, rel))]


def gather(g, slot, rel, opt=False):
    return [I(f"  ds_read_u16 v{V_GT+jj}, v{V_GB+8*g+jj} offset:{slot*2048}", lds=("G", g, rel), opt=opt)
            for jj in range(8)]


def res_mfma(g, acc, first):
    L = []
    if g == 0:
        for d in range(4):
            L.append(I(f"  v_lshl_or_b32 v{V_BP+d}, v{V_GT+2*d+1}, 16, v{V_GT+2*d}"))
        L.append(I("  s_nop 1"))
        for fs in range(4):
            c = V_BIAS + 4 * fs if first else acc + 4 * fs
            L.append(I(f"  v_mfma_f32_16x16x32_bf16 v[{acc+4*fs}:{acc+4*fs+3}], v[{V_AP+16*g+4*fs}:{V_AP+16*g+4*fs+3}], "
                       f"v[{V_BP}:{V_BP+3}], v[{c}:{c+3}]"))
        return L
    for d in range(4):
        L.append(I(f"  v_lshl_or_b32 v{V_GT+2*d}, v{V_GT+2*d+1}, 16, v{V_GT+2*d}"))
    L.append(I("  s_nop 1"))
    for fs in range(4):
        L.append(I(f"  v_smfmac_f32_16x16x64_bf16 v[{acc+4*fs}:{acc+4*fs+3}], v[{V_AP+16*g+4*fs}:{V_AP+16*g+4*fs+3}], "
                   f"v[{V_GT}:{V_GT+7}], v{V_RIDX}"))
    return L


def epilogue(acc):
    L = []
    for j in range(2):
        for d in range(4):
            fs = 2 * j + (d >> 1)
            r = 2 * (d & 1)
            L.append(I(f"  v_cvt_pk_bf16_f32 v{V_T+4*j+d}, v{acc+4*fs+r}, v{acc+4*fs+r+1}"))
        if not NOST:
            L.append(I(f"  buffer_store_dwordx4 v[{V_T+4*j}:{V_T+4*j+3}], v{V_ST}, s[{S_OUT}:{S_OUT+3}], s{S_OOFF} offen offset:{64*j}",
                       vm=("S", 0)))
    L.append(I(f"  s_add_u32 s{S_OOFF}, s{S_OOFF}, 32768"))
    return L


def a_load(ks):
    L = []
    for fs in range(4):
        a = (ks * 4 + fs) * 4
        L.append(I(f"  buffer_load_dwordx4 a[{a}:{a+3}], v{V_LO16A}, s[{S_WS}:{S_WS+3}], s{S_AOFF} offen offset:{fs*1024}{ALF}",
                   vm=("A", ks)))
    L.append(I(f"  s_add_u32 s{S_AOFF}, s{S_AOFF}, 4096"))
    return L


V_LO16A = 244
A_PRE = 6


def body(name, slot, buf, prev_epi, own_epi, first=False):
    X = V_ACC + 16 * buf
    Y = V_ACC + 16 * (1 - buf)
    nslot = (slot + 1) % NSLOT
    L = []
    L.append(W(wl=("G", 0, 0)))
    L += res_mfma(0, X, True)
    for ks in range(16):
        pre, fill, post = [], [], []
        if ks == 13:
            pre = [W(wv=("D", 1)), I("  s_barrier")]
        if ks + 3 < 16:
            fill += rd(ks + 3, slot, 0)
        else:
            fill += rd(ks + 3 - 16, nslot, 1)
        if prev_epi:
            ep = epilogue(Y)
            if ks == 6:
                fill += ep[:5]
            if ks == 8:
                fill += ep[5:]
        if not first:
            part = (ks - 13) % 16
            if part < 8 and not NODMA:
                if ks >= 13:
                    fill += dma_part(part, (slot + 4) % NSLOT, 4)
                else:
                    fill += dma_part(part, (slot + 3) % NSLOT, 3)
                if part == 7:
                    fill += dma_advance()
        else:
            if ks + A_PRE < 16:
                fill += a_load(ks + A_PRE)
            if 4 <= ks < 12:
                c = 2 + (ks - 4) // 4
                for part in (2 * ((ks - 4) % 4), 2 * ((ks - 4) % 4) + 1):
                    fill += dma_part(part, c, c)
                    if part == 7:
                        fill += dma_advance()
            if ks >= 13:
                fill += dma_part(ks - 13, 4, 4)
        if not NORES:
            if ks in (1, 2):
                fill += gather(1, slot, 0)[4 * (ks - 1):4 * ks]
            if ks in (5, 6):
                fill += gather(2, slot, 0)[4 * (ks - 5):4 * (ks - 4)]
            if ks == 9:
                post += [I(f"  s_cmp_gt_u32 s{S_NG}, 3"), I(f"  s_cbranch_scc0 Lg3a_{name}")]
                post += gather(3, slot, 0, opt=True)
                post += [I(f"Lg3a_{name}:")]
            if ks == 4:
                post += [W(wl=("G", 1, 0))] + res_mfma(1, X, False)
            if ks == 8:
                post += [W(wl=("G", 2, 0))] + res_mfma(2, X, False)
            if ks == 12:
                post += [I(f"  s_cmp_gt_u32 s{S_NG}, 3"), I(f"  s_cbranch_scc0 Lg3b_{name}"),
                         W(wl=("G", 3, 0))] + res_mfma(3, X, False) + [I(f"Lg3b_{name}:")]
                post += [I(f"  s_cmp_gt_u32 s{S_NG}, 4"), I(f"  s_cbranch_scc1 Lslow_{name}"), I(f"Lslowback_{name}:")]
        if ks in (14, 15):
            fill += gather(0, nslot, 1)[4 * (ks - 14):4 * (ks - 13)]
        L += pre
        L.append(W(wl=("R", ks, 0), wv=("A", ks) if first else None))
        mf = []
        for fs in range(4):
            a = (ks * 4 + fs) * 4
            b = V_B + 8 * (ks & 3)
            mf.append(I(f"  v_smfmac_f32_16x16x64_bf16 v[{X+4*fs}:{X+4*fs+3}], a[{a}:{a+3}], v[{b}:{b+7}], "
                        f"v{V_IDX+fs*8+(ks>>1)}" + (" abid:1" if ks & 1 else "")))
        n = len(fill)
        per = [(n + 3 - i) // 4 for i in range(4)]
        pos = 0
        for i in range(4):
            L.append(mf[i])
            L += fill[pos:pos + per[i]]
            pos += per[i]
        L += post
    if own_epi:
        L += [I("  s_nop 7")] + epilogue(X)
    return L


def slow_path(name, slot, buf, first=False):
    X = V_ACC + 16 * buf
    L = []
    L.append(I(f"Lslow_{name}:"))
    L.append(I(f"  s_mov_b32 s{S_G}, {NRES}"))
    L.append(I(f"Lslowloop_{name}:"))
    L.append(I(f"  v_mbcnt_lo_u32_b32 v{V_X0}, -1, 0"))
    L.append(I(f"  v_mbcnt_hi_u32_b32 v{V_X0}, -1, v{V_X0}"))
    L.append(I(f"  s_lshl_b32 s{S_T0}, s{S_G}, 4"))
    L.append(I(f"  v_add_u32 v{V_X0}, s{S_T0}, v{V_X0}"))
    unit_table(L, V_X0)
    for i in range(4):
        L.append(I(f"  ds_bpermute_b32 v{V_GT+i}, v{V_PK}, v{V_UT} offset:{4*i}"))
    L.append(I("  s_waitcnt lgkmcnt(0)"))
    for i in range(4):
        L.append(I(f"  buffer_load_dwordx2 v[{V_T+2*i}:{V_T+2*i+1}], v{V_GT+i}, s[{S_WS}:{S_WS+3}], s{S_LB} offen"))
        L.append(I(f"  buffer_load_dwordx2 v[{V_SVS+2*i}:{V_SVS+2*i+1}], v{V_GT+i}, s[{S_WS}:{S_WS+3}], s{S_LB} offen offset:8"))
    L.append(I("  s_waitcnt vmcnt(0)"))
    for jj in range(8):
        L.append(I(f"  v_xor_b32 v{V_T+jj}, v{V_T+jj}, v{V_GX}"))
    for jj in range(8):
        L.append(I(f"  ds_read_u16 v{V_GT+jj}, v{V_T+jj} offset:{slot*2048}"))
    for i in range(4):
        L.append(I(f"  v_xor_b32 v{V_SVS+2*i+1}, v{V_SVS+2*i+1}, v{V_BF2}"))
    L.append(I("  s_waitcnt lgkmcnt(0)"))
    for d in range(4):
        L.append(I(f"  v_lshl_or_b32 v{V_BP+d}, v{V_GT+2*d+1}, 16, v{V_GT+2*d}"))
    for fs in range(4):
        afrag(L, fs, V_SVS, V_AT)
        L.append(I("  s_nop 1"))
        L.append(I(f"  v_mfma_f32_16x16x32_bf16 v[{X+4*fs}:{X+4*fs+3}], v[{V_AT}:{V_AT+3}], v[{V_BP}:{V_BP+3}], v[{X+4*fs}:{X+4*fs+3}]"))
        L.append(I("  s_nop 7"))
    L.append(I(f"  s_add_u32 s{S_G}, s{S_G}, 1"))
    L.append(I(f"  s_cmp_lt_u32 s{S_G}, s{S_NG}"))
    L.append(I(f"  s_cbranch_scc1 Lslowloop_{name}"))
    L.append(I(f"  s_branch Lslowback_{name}"))
    return L


def resolve(seq):
    lds, vm = [], []
    for blk, c in seq:
        for ins in blk:
            if ins.lds is not None:
                t = ins.lds
                lds.append(((t[0], t[1], c + t[2]), ins.opt))
            if ins.vm is not None:
                t = ins.vm
                vm.append(((t[0], t[1] + (c if t[0] in ("D",) else 0)), ins.opt))
            if ins.text == "WAIT":
                if ins.wl is not None:
                    key = (ins.wl[0], ins.wl[1], c + ins.wl[2])
                    n, found = 0, False
                    for tag, opt in reversed(lds):
                        if tag == key:
                            found = True
                            break
                        if not opt:
                            n += 1
                    assert found, (key, c)
                    n = min(n, 15)
                    ins.nl = n if ins.nl is None else min(ins.nl, n)
                if ins.wv is not None:
                    key = (ins.wv[0], ins.wv[1] + (c if ins.wv[0] in ("D",) else 0))
                    n, found = 0, False
                    for tag, opt in reversed(vm):
                        if tag == key:
                            found = True
                            break
                        if not opt:
                            n += 1
                    assert found or NODMA, (key, c)
                    n = min(n, 63)
                    ins.nv = n if ins.nv is None else min(ins.nv, n)


def emit(blk):
    for ins in blk:
        if ins.text == "WAIT":
            parts = []
            if ins.nv is not None:
                parts.append(f"vmcnt({ins.nv})")
            if ins.nl is not None:
                parts.append(f"lgkmcnt({ins.nl})")
            e("  s_waitcnt " + " ".join(parts))
        else:
            e(ins.text)


def gen_main():
    e(f".globl {KNAME}")
    e(".p2align 8")
    e(f".type {KNAME},@function")
    e(f"{KNAME}:")
    P = []

    def p(t, **kw):
        P.append(I(t, **kw))

    p("  s_cmp_ge_u32 s2, 256")
    p("  s_cbranch_scc1 Lm_end")
    P.extend(stamp(0))
    p("  s_load_dwordx4 s[4:7], s[0:1], 0")
    p("  s_load_dwordx4 s[8:11], s[0:1], 16")
    p("  s_load_dwordx2 s[14:15], s[0:1], 40")
    p("  v_lshrrev_b32 v3, 6, v0")
    p(f"  v_and_b32 v{V_LANE}, 63, v0")
    p(f"  v_readfirstlane_b32 s{S_W}, v3")
    p(f"  v_and_b32 v{V_M}, 15, v{V_LANE}")
    p(f"  v_lshrrev_b32 v{V_Q}, 4, v{V_LANE}")
    p(f"  v_lshlrev_b32 v{V_LO16A}, 4, v{V_LANE}")
    p(f"  s_and_b32 s{S_T0}, s2, 7")
    p(f"  s_lshr_b32 s{S_T1}, s2, 3")
    p(f"  s_and_b32 s{S_T2}, s{S_T1}, 3")
    p(f"  s_lshr_b32 s{S_T1}, s{S_T1}, 2")
    p(f"  s_lshl_b32 s{S_T1}, s{S_T1}, 3")
    p(f"  s_add_u32 s{S_T1}, s{S_T1}, s{S_T0}")
    p(f"  s_lshl_b32 s{S_ROWB}, s{S_T1}, 19")
    p(f"  s_lshl_b32 s{S_SLOT}, s{S_T2}, 2")
    p(f"  s_add_u32 s{S_SLOT}, s{S_SLOT}, s{S_W}")
    p(f"  s_mul_i32 s{S_M0R}, s{S_W}, {4*ROWB}")
    for i in range(1, 4):
        p(f"  s_add_u32 s{S_M0R+i}, s{S_M0R}, {i*ROWB}")
    p(f"  s_mov_b32 s{S_K1}, 0x00010001")
    p(f"  s_mov_b32 s{S_KM1}, -1")
    for i in range(4):
        p(f"  s_lshl_b32 s{S_T0}, s{S_W}, 2")
        p(f"  s_add_u32 s{S_T0}, s{S_T0}, {i}")
        p(f"  v_xor_b32 v{V_X0}, s{S_T0}, v{V_LANE}")
        p(f"  v_and_b32 v{V_X0}, 15, v{V_X0}")
        p(f"  v_and_or_b32 v{V_X0}, v{V_LANE}, 48, v{V_X0}")
        p(f"  v_lshlrev_b32 v{V_X0}, 4, v{V_X0}")
        p(f"  s_lshl_b32 s{S_T1}, s{S_T0}, 11")
        p(f"  v_add_u32 v{V_DMA+i}, s{S_T1}, v{V_X0}")
    p("  s_waitcnt lgkmcnt(0)")
    for (srd, lo, size) in ((S_X, 4, 1 << 25), (S_OUT, 10, 1 << 25), (S_WS, 14, WS_USED), (S_BIAS, 8, 2048)):
        p(f"  s_mov_b32 s{srd}, s{lo}")
        p(f"  s_mov_b32 s{srd+1}, s{lo+1}")
        p(f"  s_mov_b32 s{srd+2}, {size}")
        p(f"  s_mov_b32 s{srd+3}, 0x00020000")
    p(f"  s_lshl_b32 s{S_T0}, s{S_SLOT}, 6")
    p(f"  s_add_u32 s{S_T0}, s{S_T0}, {CNT_OFF}")
    p(f"  s_load_dwordx16 s[{S_C0}:{S_C0+15}], s[14:15], s{S_T0}")
    p(f"  s_mov_b32 s{S_DGOFF}, s{S_ROWB}")
    p(f"  s_mov_b32 s{S_DC}, 0")
    for part in range(8):
        P.extend(dma_part(part, 0, 0))
    P.extend(dma_advance())
    p(f"  s_lshl_b32 s{S_T0}, s{S_SLOT}, 13")
    p(f"  s_add_u32 s{S_T0}, s{S_T0}, {IDX_OFF}")
    for j in range(8):
        if j == 4:
            p(f"  s_add_u32 s{S_T0}, s{S_T0}, 4096")
        p(f"  buffer_load_dwordx4 v[{V_IDX+4*j}:{V_IDX+4*j+3}], v{V_LO16A}, s[{S_WS}:{S_WS+3}], s{S_T0} offen offset:{(j&3)*1024}{ALF}",
          vm=("I", 0))
    p(f"  v_lshlrev_b32 v{V_X0}, 4, v{V_Q}")
    p(f"  s_lshl_b32 s{S_T0}, s{S_SLOT}, 7")
    for j in range(2):
        p(f"  buffer_load_dwordx4 v[{V_GT+4*j}:{V_GT+4*j+3}], v{V_X0}, s[{S_BIAS}:{S_BIAS+3}], s{S_T0} offen offset:{64*j}",
          vm=("B", 0))
    p(f"  s_lshl_b32 s{S_AOFF}, s{S_SLOT}, 16")
    for ks in range(3):
        P.extend(a_load(ks))
    p(f"  v_lshlrev_b32 v{V_ST}, 11, v{V_M}")
    p(f"  v_lshl_add_u32 v{V_ST}, v{V_Q}, 4, v{V_ST}")
    p(f"  s_movk_i32 s{S_T0}, {ROWB}")
    p(f"  v_mul_lo_u32 v{V_X1}, v{V_M}, s{S_T0}")
    for pp in range(2):
        for h in range(2):
            p(f"  v_lshlrev_b32 v{V_X0}, 1, v{V_Q}")
            p(f"  v_add_u32 v{V_X0}, {pp*8+h}, v{V_X0}")
            p(f"  v_xor_b32 v{V_X0}, v{V_X0}, v{V_M}")
            p(f"  v_lshl_add_u32 v{V_RB+2*pp+h}, v{V_X0}, 4, v{V_X1}")
    p(f"  v_lshl_or_b32 v{V_GX}, v{V_M}, 4, v{V_X1}")
    p(f"  v_mov_b32 v{V_RIDX}, 0x44444444")
    p(f"  v_lshlrev_b32 v{V_PK}, 4, v{V_Q}")
    p(f"  v_and_b32 v{V_PV}, 1, v{V_Q}")
    p(f"  v_lshlrev_b32 v{V_PV}, 5, v{V_PV}")
    p(f"  v_lshrrev_b32 v{V_X0}, 1, v{V_Q}")
    p(f"  v_lshl_or_b32 v{V_PV}, v{V_X0}, 3, v{V_PV}")
    p(f"  v_lshrrev_b32 v{V_X0}, 2, v{V_M}")
    p(f"  v_and_b32 v{V_BF2}, 3, v{V_M}")
    p(f"  v_lshl_or_b32 v{V_BF2}, v{V_X0}, 3, v{V_BF2}")
    p(f"  v_lshl_or_b32 v{V_BF2}, v{V_BF2}, 16, v{V_BF2}")
    p("  s_waitcnt lgkmcnt(0)")
    unit_table(P, V_LANE)
    p(f"  s_add_u32 s{S_NG}, s{S_PF}, 16")
    p(f"  s_lshr_b32 s{S_NG}, s{S_NG}, 4")
    p(f"  s_lshl_b32 s{S_LB}, s{S_SLOT}, 18")
    p(f"  s_add_u32 s{S_LB}, s{S_LB}, {LIST_OFF}")
    for g in range(NRES):
        for i in range(4):
            p(f"  ds_bpermute_b32 v{V_AP+8*g+i}, v{V_PK}, v{V_UT} offset:{64*g+4*i}")
            if g > 0:
                p(f"  ds_bpermute_b32 v{V_AP+8*g+4+i}, v{V_PV}, v{V_UT} offset:{64*g+16*(i>>1)+4*(i&1)}")
    p("  s_waitcnt lgkmcnt(0)")
    for g in range(NRES):
        for i in range(4):
            p(f"  buffer_load_dwordx2 v[{V_GB+8*g+2*i}:{V_GB+8*g+2*i+1}], v{V_AP+8*g+i}, s[{S_WS}:{S_WS+3}], s{S_LB} offen",
              vm=("U", g))
            av = V_AP + 8 * g + (4 + i if g > 0 else i)
            p(f"  buffer_load_dwordx2 v[{V_B+8*g+2*i}:{V_B+8*g+2*i+1}], v{av}, s[{S_WS}:{S_WS+3}], s{S_LB} offen offset:8",
              vm=("U", g))
    for ks in range(3, A_PRE):
        P.extend(a_load(ks))
    for part in range(8):
        P.extend(dma_part(part, 1, 1))
    P.extend(dma_advance())
    P.extend(stamp(1))
    P.append(W(wv=("B", 0)))
    for j in range(2):
        for d in range(4):
            fs = 2 * j + (d >> 1)
            r = 2 * (d & 1)
            p(f"  v_lshlrev_b32 v{V_BIAS+4*fs+r}, 16, v{V_GT+4*j+d}")
            p(f"  v_and_b32 v{V_BIAS+4*fs+r+1}, 0xffff0000, v{V_GT+4*j+d}")
    for g in range(NRES):
        P.append(W(wv=("U", g)))
        for jj in range(8):
            p(f"  v_xor_b32 v{V_GB+8*g+jj}, v{V_GB+8*g+jj}, v{V_GX}")
        for i in range(4):
            r = V_B + 8 * g + 2 * i + 1
            p(f"  v_xor_b32 v{r}, v{r}, v{V_BF2}")
        for fs in range(4):
            afrag(P, fs, V_B + 8 * g, V_AP + 16 * g + 4 * fs)
    P.extend(stamp(2))
    P.append(W(wv=("D", 0)))
    p("  s_barrier")
    p(f"  s_lshl_b32 s{S_OOFF}, s{S_SLOT}, 7")
    p(f"  s_add_u32 s{S_OOFF}, s{S_OOFF}, s{S_ROWB}")
    p(f"  s_mov_b32 s{S_CNT}, 0")
    P.extend(rd(0, 0, 0))
    P.extend(rd(1, 0, 0))
    P.extend(gather(0, 0, 0)[:4])
    P.extend(rd(2, 0, 0))
    P.extend(gather(0, 0, 0)[4:])
    P.extend(stamp(3))

    F = body("f", 0, 0, False, True, first=True)
    F.extend(stamp(4))
    slots = [1, 2, 3, 4, 0]
    bufs = [1, 0, 1, 0, 1]
    LB = []
    for i, (sl, bf) in enumerate(zip(slots, bufs)):
        LB.append(body(f"b{i}", sl, bf, i > 0, i == 4))
    seq = [(P, 0), (F, 0)]
    c = 1
    for it in range(3):
        for blk in LB:
            seq.append((blk, c))
            c += 1
    resolve(seq)
    emit(P)
    emit(F)
    e("Lloop:")
    for blk in LB:
        emit(blk)
    e(f"  s_add_u32 s{S_CNT}, s{S_CNT}, 1")
    e(f"  s_cmp_lt_u32 s{S_CNT}, 3")
    e("  s_cbranch_scc1 Lloop")
    if DBG:
        emit(stamp(5))
        e("  s_waitcnt vmcnt(0)")
        emit(stamp(6))
        e("  s_memrealtime s[100:101]")
        e("  s_load_dwordx2 s[12:13], s[0:1], 32")
        e("  s_waitcnt lgkmcnt(0)")
        e("  s_mov_b32 s84, s12")
        e("  s_mov_b32 s85, s13")
        e("  s_mov_b32 s86, 256")
        e("  s_mov_b32 s87, 0x00020000")
        e("  s_and_b32 s88, s2, 63")
        e("  s_cmp_lg_u32 s88, 0")
        e("  s_cbranch_scc1 Lm_end")
        e(f"  s_cmp_lg_u32 s{S_W}, 0")
        e("  s_cbranch_scc1 Lm_end")
        e("  s_lshr_b32 s88, s2, 6")
        e("  s_lshl_b32 s88, s88, 5")
        e("  v_mov_b32 v1, 0")
        e("  s_mov_b64 exec, 1")
        for i in range(7):
            if i:
                e(f"  s_sub_u32 s68, s{S_STAMP+i}, s{S_STAMP}")
            else:
                e(f"  s_mov_b32 s68, s{S_STAMP}")
            e("  v_mov_b32 v2, s68")
            e(f"  buffer_store_dword v2, v1, s[84:87], s88 offen offset:{4*i}")
        e("  s_sub_u32 s100, s100, s98")
        e("  v_mov_b32 v2, s100")
        e("  buffer_store_dword v2, v1, s[84:87], s88 offen offset:28")
    e("Lm_end:")
    e("  s_endpgm")
    if not NORES:
        emit(slow_path("f", 0, 0, first=True))
        for i, (sl, bf) in enumerate(zip(slots, bufs)):
            emit(slow_path(f"b{i}", sl, bf))


def main():
    e("; Kernarg layout: 0 x, 8 w, 16 b, 24 out, 32 debug, 40 ws")
    e("; @launch kernel=prep_kernel grid=(256,1,1) block=(256,1,1) lds=256")
    e(f"; @launch kernel={KNAME} grid=(256,1,1) block=(256,1,1) lds={16*ROWB}")
    e('.amdgcn_target "amdgcn-amd-amdhsa--gfx950"')
    e(".text")
    gen_prep()
    gen_main()
    e('.section .rodata,"a"')
    e(".p2align 6")
    e(".amdhsa_kernel prep_kernel")
    e("  .amdhsa_next_free_vgpr 64")
    e("  .amdhsa_next_free_sgpr 64")
    e("  .amdhsa_accum_offset 64")
    e("  .amdhsa_group_segment_fixed_size 0")
    e("  .amdhsa_kernarg_size 48")
    e("  .amdhsa_user_sgpr_count 2")
    e("  .amdhsa_user_sgpr_kernarg_segment_ptr 1")
    e("  .amdhsa_system_sgpr_workgroup_id_x 1")
    e(".end_amdhsa_kernel")
    e(".p2align 6")
    e(f".amdhsa_kernel {KNAME}")
    e("  .amdhsa_next_free_vgpr 512")
    e("  .amdhsa_next_free_sgpr 102")
    e("  .amdhsa_accum_offset 256")
    e("  .amdhsa_group_segment_fixed_size 0")
    e("  .amdhsa_kernarg_size 48")
    e("  .amdhsa_user_sgpr_count 2")
    e("  .amdhsa_user_sgpr_kernarg_segment_ptr 1")
    e("  .amdhsa_system_sgpr_workgroup_id_x 1")
    e(".end_amdhsa_kernel")
    path = sys.argv[1] if len(sys.argv) > 1 else "standalone__structured_sparse_n_m__ragged.s"
    open(path, "w").write("\n".join(out) + "\n")


if __name__ == "__main__":
    main()
```

```python
import sys, os

DBG = int(os.environ.get("DBG", "0"))
NODMA = int(os.environ.get("NODMA", "0"))
NORES = int(os.environ.get("NORES", "0"))
NOST = int(os.environ.get("NOST", "0"))
DMAF = os.environ.get("DMAF", " nt")
WLF = os.environ.get("WLF", " nt")
ALF = os.environ.get("ALF", "")
STF = os.environ.get("STF", "")

KNAME = "standalone__structured_sparse_n_m__ragged_kernel"

A_OFF = 0
IDX_OFF = 1 << 20
CNT_OFF = (1 << 20) + (128 << 10)
LIST_OFF = 2 << 20
CAPB = 16384
WS_USED = 8 << 20

NSLOT = 5
ROWB = NSLOT * 2048
NCHUNK = 16
OOB = 0x40000000
NRES = 4

out = []


def e(s=""):
    out.append(s)


def gen_prep():
    e(".globl prep_kernel")
    e(".p2align 8")
    e(".type prep_kernel,@function")
    e("prep_kernel:")
    e("  s_cmp_ge_u32 s2, 256")
    e("  s_cbranch_scc1 Lp_end")
    e("  s_load_dwordx2 s[4:5], s[0:1], 8")
    e("  s_load_dwordx2 s[6:7], s[0:1], 40")
    e("  v_lshrrev_b32 v1, 6, v0")
    e("  v_and_b32 v2, 63, v0")
    e("  v_readfirstlane_b32 s3, v1")
    e("  s_lshr_b32 s8, s2, 4")
    e("  s_and_b32 s10, s2, 15")
    e("  s_mov_b32 s11, s3")
    e("  s_lshl_b32 s12, s10, 6")
    e("  s_lshl_b32 s13, s11, 4")
    e("  s_add_u32 s12, s12, s13")
    e("  s_lshl_b32 s13, s12, 11")
    e("  s_lshl_b32 s14, s8, 7")
    e("  s_add_u32 s13, s13, s14")
    e("  v_lshlrev_b32 v3, 1, v2")
    e("  s_waitcnt lgkmcnt(0)")
    e("  s_mov_b32 s16, s4")
    e("  s_mov_b32 s17, s5")
    e("  s_mov_b32 s18, 0x200000")
    e("  s_mov_b32 s19, 0x00020000")
    e("  s_mov_b32 s20, s6")
    e("  s_mov_b32 s21, s7")
    e(f"  s_mov_b32 s22, {WS_USED}")
    e("  s_mov_b32 s23, 0x00020000")
    for i in range(8):
        e(f"  buffer_load_ushort v{4+i}, v3, s[16:19], s13 offen{WLF}")
        e(f"  buffer_load_ushort v{12+i}, v3, s[16:19], s13 offen offset:2048{WLF}")
        if i < 7:
            e("  s_add_u32 s13, s13, 4096")
    e("  v_lshrrev_b32 v40, 5, v2")
    e("  v_bfe_u32 v41, v2, 2, 1")
    e("  v_lshl_or_b32 v40, v40, 1, v41")
    e("  v_bfe_u32 v41, v2, 3, 2")
    e("  v_and_b32 v42, 3, v2")
    e("  v_lshl_or_b32 v41, v41, 2, v42")
    e("  v_lshlrev_b32 v42, 10, v40")
    e("  v_lshl_add_u32 v42, v41, 4, v42")
    e("  s_lshl_b32 s24, s8, 4")
    e("  s_add_u32 s24, s24, s10")
    e("  s_lshl_b32 s24, s24, 12")
    e("  s_lshr_b32 s25, s11, 1")
    e("  s_lshl_b32 s25, s25, 8")
    e("  s_add_u32 s24, s24, s25")
    e("  s_and_b32 s25, s11, 1")
    e("  s_lshl_b32 s26, s25, 3")
    e("  s_add_u32 s24, s24, s26")
    e("  v_lshlrev_b32 v43, 11, v40")
    e("  v_lshl_add_u32 v43, v41, 4, v43")
    e("  s_lshl_b32 s26, s8, 13")
    e(f"  s_add_u32 s26, s26, {IDX_OFF}")
    e("  s_lshr_b32 s27, s10, 3")
    e("  s_lshl_b32 s27, s27, 10")
    e("  s_add_u32 s26, s26, s27")
    e("  s_lshr_b32 s27, s11, 1")
    e("  s_lshl_b32 s27, s27, 8")
    e("  s_add_u32 s26, s26, s27")
    e("  s_lshr_b32 s27, s10, 1")
    e("  s_and_b32 s27, s27, 3")
    e("  s_lshl_b32 s27, s27, 2")
    e("  s_add_u32 s26, s26, s27")
    e("  s_and_b32 s27, s10, 1")
    e("  s_lshl_b32 s27, s27, 1")
    e("  s_add_u32 s26, s26, s27")
    e("  s_add_u32 s26, s26, s25")
    e("  v_lshlrev_b32 v44, 16, v2")
    for i in range(8):
        e(f"  v_mov_b32 v{28+i}, 0")
    e("  s_waitcnt vmcnt(0)")
    for i in range(8):
        e(f"  v_lshl_or_b32 v{4+i}, v{12+i}, 16, v{4+i}")
    A, B, C, Dd, H1, L1, H2, L2, T, THR, M, I0, I1, M1, M2, P0 = 46, 47, 48, 49, 50, 51, 52, 53, 54, 55, 56, 57, 58, 59, 60, 62
    for g in range(4):
        lo, hi = 4 + 2 * g, 5 + 2 * g
        e(f"  v_and_b32 v{A}, 0x7fff, v{lo}")
        e(f"  v_bfe_u32 v{B}, v{lo}, 16, 15")
        e(f"  v_and_b32 v{C}, 0x7fff, v{hi}")
        e(f"  v_bfe_u32 v{Dd}, v{hi}, 16, 15")
        e(f"  v_max_u32 v{H1}, v{A}, v{B}")
        e(f"  v_min_u32 v{L1}, v{A}, v{B}")
        e(f"  v_max_u32 v{H2}, v{C}, v{Dd}")
        e(f"  v_min_u32 v{L2}, v{C}, v{Dd}")
        e(f"  v_min_u32 v{T}, v{H1}, v{H2}")
        e(f"  v_max3_u32 v{THR}, v{T}, v{L1}, v{L2}")
        e(f"  v_add_u32 v{THR}, -1, v{THR}")
        e(f"  v_sub_u32 v{A}, v{THR}, v{A}")
        e(f"  v_sub_u32 v{B}, v{THR}, v{B}")
        e(f"  v_sub_u32 v{C}, v{THR}, v{C}")
        e(f"  v_sub_u32 v{Dd}, v{THR}, v{Dd}")
        e(f"  v_lshrrev_b32 v{M}, 31, v{A}")
        e(f"  v_lshrrev_b32 v{B}, 30, v{B}")
        e(f"  v_and_or_b32 v{M}, v{B}, 2, v{M}")
        e(f"  v_lshrrev_b32 v{C}, 29, v{C}")
        e(f"  v_and_or_b32 v{M}, v{C}, 4, v{M}")
        e(f"  v_lshrrev_b32 v{Dd}, 28, v{Dd}")
        e(f"  v_and_or_b32 v{M}, v{Dd}, 8, v{M}")
        e(f"  v_ffbl_b32 v{I0}, v{M}")
        e(f"  v_add_u32 v{T}, -1, v{M}")
        e(f"  v_and_b32 v{M1}, v{M}, v{T}")
        e(f"  v_ffbl_b32 v{I1}, v{M1}")
        e(f"  v_add_u32 v{T}, -1, v{M1}")
        e(f"  v_and_b32 v{M2}, v{M1}, v{T}")
        e(f"  v_cmp_ne_u32 vcc, 0, v{M2}")
        e(f"  v_lshlrev_b32 v{T}, 4, v{I0}")
        e(f"  v_lshrrev_b64 v[{P0}:{P0+1}], v{T}, v[{lo}:{hi}]")
        e(f"  v_and_b32 v{A}, 0xffff, v{P0}")
        e(f"  v_lshlrev_b32 v{T}, 4, v{I1}")
        e(f"  v_lshrrev_b64 v[{P0}:{P0+1}], v{T}, v[{lo}:{hi}]")
        e(f"  v_lshl_or_b32 v{20+g}, v{P0}, 16, v{A}")
        e(f"  v_lshl_or_b32 v{24+g}, v{I1}, 2, v{I0}")
        e("  s_cmp_eq_u64 vcc, 0")
        e(f"  s_cbranch_scc1 Lp_nores{g}")
        mcur = M2
        for which in range(2):
            E = 28 + 2 * g + which
            e(f"  v_ffbl_b32 v{I0}, v{mcur}")
            e(f"  v_lshlrev_b32 v{T}, 4, v{I0}")
            e(f"  v_lshrrev_b64 v[{P0}:{P0+1}], v{T}, v[{lo}:{hi}]")
            e(f"  v_and_b32 v{A}, 0xffff, v{P0}")
            e(f"  v_and_b32 v{B}, 0x7fff, v{P0}")
            e(f"  v_min_u32 v{B}, v{B}, v{mcur}")
            e(f"  v_add_u32 v{C}, s12, v{I0}")
            e(f"  v_add_u32 v{C}, {4*g}, v{C}")
            e(f"  v_lshl_or_b32 v{C}, v{C}, 22, v44")
            e(f"  v_or_b32 v{C}, v{C}, v{A}")
            e(f"  v_cmp_ne_u32 vcc, 0, v{B}")
            if which == 0:
                e(f"  v_add_u32 v{T}, -1, v{M2}")
                e(f"  v_and_b32 v{M1}, v{M2}, v{T}")
            else:
                e("  s_nop 1")
            e(f"  v_cndmask_b32 v{E}, 0, v{C}, vcc")
            mcur = M1
        e(f"Lp_nores{g}:")
    for eh in range(2):
        e(f"  buffer_store_dwordx2 v[{20+2*eh}:{21+2*eh}], v42, s[20:23], s24 offen offset:{512*eh}")
        e(f"  v_lshl_or_b32 v{46+eh}, v{25+2*eh}, 4, v{24+2*eh}")
        e(f"  buffer_store_byte v{46+eh}, v43, s[20:23], s26 offen offset:{512*eh}")
    e("  s_mov_b32 s28, 0")
    for i in range(8):
        e(f"  v_cmp_ne_u32 s[{32+2*i}:{33+2*i}], 0, v{28+i}")
    e("  s_nop 3")
    for i in range(8):
        e(f"  s_bcnt1_i32_b64 s29, s[{32+2*i}:{33+2*i}]")
        e("  s_add_u32 s28, s28, s29")
    e("  v_mov_b32 v46, s28")
    e("  s_lshl_b32 s29, s3, 2")
    e("  v_mov_b32 v47, s29")
    e("  ds_write_b32 v47, v46")
    e("  v_mov_b32 v47, 0")
    e("  s_waitcnt lgkmcnt(0)")
    e("  s_barrier")
    e("  ds_read_b128 v[48:51], v47")
    e("  s_waitcnt lgkmcnt(0)")
    e("  s_mov_b32 s28, 0")
    e("  s_mov_b32 s30, 0")
    for i in range(4):
        e(f"  v_readfirstlane_b32 s29, v{48+i}")
        e("  s_add_u32 s30, s30, s29")
        e(f"  s_cmp_gt_u32 s3, {i}")
        e("  s_cselect_b32 s29, s29, 0")
        e("  s_add_u32 s28, s28, s29")
    e("  s_lshl_b32 s31, s2, 14")
    e(f"  s_add_u32 s31, s31, {LIST_OFF}")
    for i in range(8):
        lo, hi = 32 + 2 * i, 33 + 2 * i
        e(f"  s_cmp_eq_u64 s[{lo}:{hi}], 0")
        e(f"  s_cbranch_scc1 Lp_skip{i}")
        e(f"  v_mbcnt_lo_u32_b32 v46, s{lo}, 0")
        e(f"  v_mbcnt_hi_u32_b32 v46, s{hi}, v46")
        e("  v_add_u32 v46, s28, v46")
        e("  v_lshrrev_b32 v47, 1, v46")
        e("  v_lshlrev_b32 v47, 4, v47")
        e("  v_and_b32 v46, 1, v46")
        e("  v_lshl_add_u32 v48, v46, 2, v47")
        e("  v_lshl_add_u32 v49, v46, 1, v47")
        e(f"  v_lshrrev_b32 v50, 21, v{28+i}")
        e("  v_and_b32 v50, 0x7fe, v50")
        e(f"  v_bfe_u32 v51, v{28+i}, 16, 6")
        e(f"  s_mov_b64 exec, s[{lo}:{hi}]")
        e("  buffer_store_dword v50, v48, s[20:23], s31 offen")
        e(f"  buffer_store_short v{28+i}, v49, s[20:23], s31 offen offset:8")
        e("  buffer_store_short v51, v49, s[20:23], s31 offen offset:12")
        e("  s_mov_b64 exec, -1")
        e(f"  s_bcnt1_i32_b64 s29, s[{lo}:{hi}]")
        e("  s_add_u32 s28, s28, s29")
        e(f"Lp_skip{i}:")
    e("  s_cmp_lg_u32 s3, 0")
    e("  s_cbranch_scc1 Lp_end")
    e("  s_add_u32 s29, s30, 1")
    e("  s_lshr_b32 s29, s29, 1")
    e("  v_mov_b32 v51, s29")
    e("  v_mov_b32 v50, 0")
    e("  s_mov_b64 exec, 1")
    e("  s_bitcmp0_b32 s30, 0")
    e("  s_cbranch_scc1 Lp_nopad")
    e("  s_lshr_b32 s28, s30, 1")
    e("  s_lshl_b32 s28, s28, 4")
    e("  v_mov_b32 v48, s28")
    e("  buffer_store_dword v50, v48, s[20:23], s31 offen offset:4")
    e("  buffer_store_short v50, v48, s[20:23], s31 offen offset:10")
    e("  buffer_store_short v50, v48, s[20:23], s31 offen offset:14")
    e("Lp_nopad:")
    e("  s_lshl_b32 s29, s2, 2")
    e(f"  s_add_u32 s29, s29, {CNT_OFF}")
    e("  buffer_store_dword v51, v50, s[20:23], s29 offen")
    e("Lp_end:")
    e("  s_endpgm")


V_BF2 = 0
V_M, V_Q = 1, 2
V_DMA = 3
V_ST = 7
V_RB = 8
V_GX = 12
V_X0, V_X1, V_X2 = 13, 14, 15
V_IDX = 16
V_BIAS = 48
V_ACC = 64
V_B = 96
V_AP = 128
V_GB = 192
V_GT = 224
V_BP = 232
V_T = 236
V_SV = 244
V_AT = 228
V_LO16 = 232
V_LANE = 233
V_RIDX = 253
V_SVS = 244

S_X, S_OUT, S_WS, S_BIAS = 16, 20, 24, 28
S_W = 32
S_SLOT = 33
S_DGOFF = 36
S_OOFF = 37
S_CNT = 38
S_NG = 39
S_C0 = 80
S_PF, S_DD = 44, 45
S_LB = 51
S_T0, S_T1, S_T2 = 52, 53, 54
S_ROWB = 56
S_G = 57
S_DC = 59
S_M0R = 60
S_K1, S_KM1 = 64, 65
S_AOFF = 66
S_STAMP = 70


class I:
    def __init__(self, text, lds=None, vm=None, opt=False, wl=None, wv=None):
        self.text, self.lds, self.vm, self.opt, self.wl, self.wv = text, lds, vm, opt, wl, wv
        self.nl = None
        self.nv = None


def W(wl=None, wv=None):
    return I("WAIT", wl=wl, wv=wv)


def stamp(i):
    if DBG and i == 0:
        return [I("  s_memrealtime s[98:99]"), I(f"  s_memtime s[68:69]"), I("  s_waitcnt lgkmcnt(0)"), I(f"  s_mov_b32 s{S_STAMP+i}, s68")]
    if DBG:
        return [I("  s_memtime s[68:69]"), I("  s_waitcnt lgkmcnt(0)"), I(f"  s_mov_b32 s{S_STAMP+i}, s68")]
    return []


V_UT = 254
V_PK = 252
V_PV = 255


def unit_table(L, vu):
    L.append(I(f"  v_lshlrev_b32 v{V_UT}, 4, v{vu}"))
    L.append(I(f"  s_mov_b32 s{S_PF}, -1"))
    for t in range(1, 16):
        L.append(I(f"  s_add_u32 s{S_PF}, s{S_PF}, s{S_C0+t-1}"))
        L.append(I(f"  s_lshl_b32 s{S_DD}, s{S_C0+t-1}, 4"))
        L.append(I(f"  s_sub_u32 s{S_DD}, {CAPB}, s{S_DD}"))
        L.append(I(f"  v_sub_u32 v{V_X2}, s{S_PF}, v{vu}"))
        L.append(I(f"  v_ashrrev_i32 v{V_X2}, 31, v{V_X2}"))
        L.append(I(f"  v_and_b32 v{V_X2}, s{S_DD}, v{V_X2}"))
        L.append(I(f"  v_add_u32 v{V_UT}, v{V_UT}, v{V_X2}"))
    L.append(I(f"  s_add_u32 s{S_PF}, s{S_PF}, s{S_C0+15}"))
    L.append(I(f"  v_sub_u32 v{V_X2}, s{S_PF}, v{vu}"))
    L.append(I(f"  v_ashrrev_i32 v{V_X2}, 31, v{V_X2}"))
    L.append(I(f"  v_and_b32 v{V_X2}, {OOB}, v{V_X2}"))
    L.append(I(f"  v_or_b32 v{V_UT}, v{V_UT}, v{V_X2}"))


def afrag(L, fs, vvff, dst):
    cst = 32 * (fs >> 1) + 4 * (fs & 1)
    cst2 = cst | (cst << 16)
    for dd in range(4):
        vv, ff = vvff + 2 * dd, vvff + 2 * dd + 1
        d = dst + dd
        if cst2:
            L.append(I(f"  v_xor_b32 v{d}, {cst2}, v{ff}"))
            L.append(I(f"  v_pk_min_u16 v{d}, v{d}, s{S_K1}"))
        else:
            L.append(I(f"  v_pk_min_u16 v{d}, v{ff}, s{S_K1}"))
        L.append(I(f"  v_pk_add_u16 v{d}, v{d}, s{S_KM1}"))
        L.append(I(f"  v_and_b32 v{d}, v{d}, v{vv}"))


def dma_part(part, slot, rel):
    i, hh = part >> 1, part & 1
    L = []
    if hh == 0:
        L.append(I(f"  s_add_u32 m0, s{S_M0R+i}, {slot*2048}"))
        L.append(I("  s_nop 0"))
    L.append(I(f"  buffer_load_dwordx4 v{V_DMA+i}, s[{S_X}:{S_X+3}], s{S_DGOFF} offen offset:{hh*1024}{DMAF} lds",
               vm=("D", rel)))
    return L


def dma_advance():
    return [I(f"  s_add_u32 s{S_DC}, s{S_DC}, 1"),
            I(f"  s_add_u32 s{S_DGOFF}, s{S_DGOFF}, 32768"),
            I(f"  s_cmp_ge_u32 s{S_DC}, {NCHUNK}"),
            I(f"  s_cselect_b32 s{S_DGOFF}, {OOB}, s{S_DGOFF}")]


def rd(ks, slot, rel):
    p = ks & 1
    b = V_B + 8 * (ks & 3)
    off = slot * 2048 + (ks >> 1) * 256
    return [I(f"  ds_read_b128 v[{b}:{b+3}], v{V_RB+2*p} offset:{off}", lds=("R", ks, rel)),
            I(f"  ds_read_b128 v[{b+4}:{b+7}], v{V_RB+2*p+1} offset:{off}", lds=("R", ks, rel))]


def gtb(g):
    return V_GT if g & 1 == 0 else V_SV


def gather(g, slot, rel, opt=False):
    return [I(f"  ds_read_u16 v{gtb(g)+jj}, v{V_GB+8*g+jj} offset:{slot*2048}", lds=("G", g, rel), opt=opt)
            for jj in range(8)]


def res_comb(g):
    return [I(f"  v_lshl_or_b32 v{gtb(g)+2*d}, v{gtb(g)+2*d+1}, 16, v{gtb(g)+2*d}") for d in range(4)]


def res_mfma(g, acc):
    return [I(f"  v_smfmac_f32_16x16x64_bf16 v[{acc+4*fs}:{acc+4*fs+3}], v[{V_AP+16*g+4*fs}:{V_AP+16*g+4*fs+3}], "
              f"v[{gtb(g)}:{gtb(g)+7}], v{V_RIDX}") for fs in range(4)]


def acc_init(acc):
    return [I(f"  v_mov_b32 v{acc+j}, v{V_BIAS+j}") for j in range(16)]


def epilogue(acc):
    L = []
    for j in range(2):
        for d in range(4):
            fs = 2 * j + (d >> 1)
            r = 2 * (d & 1)
            L.append(I(f"  v_cvt_pk_bf16_f32 v{V_T+4*j+d}, v{acc+4*fs+r}, v{acc+4*fs+r+1}"))
        if not NOST:
            L.append(I(f"  buffer_store_dwordx4 v[{V_T+4*j}:{V_T+4*j+3}], v{V_ST}, s[{S_OUT}:{S_OUT+3}], s{S_OOFF} offen offset:{64*j}{STF}",
                       vm=("S", 0)))
    L.append(I(f"  s_add_u32 s{S_OOFF}, s{S_OOFF}, 32768"))
    return L


def a_load(ks):
    L = []
    for fs in range(4):
        a = (ks * 4 + fs) * 4
        L.append(I(f"  buffer_load_dwordx4 a[{a}:{a+3}], v{V_LO16A}, s[{S_WS}:{S_WS+3}], s{S_AOFF} offen offset:{fs*1024}{ALF}",
                   vm=("A", ks)))
    L.append(I(f"  s_add_u32 s{S_AOFF}, s{S_AOFF}, 4096"))
    return L


V_LO16A = 234
A_PRE = 6


def body(name, slot, buf, prev_epi, own_epi, first=False):
    X = V_ACC + 16 * buf
    Y = V_ACC + 16 * (1 - buf)
    nslot = (slot + 1) % NSLOT
    L = []
    for ks in range(16):
        pre, fill, post, early = [], [], [], []
        if ks == 13:
            pre = [W(wv=("D", 1)), I("  s_barrier")]
        if ks + 3 < 16:
            fill += rd(ks + 3, slot, 0)
        else:
            fill += rd(ks + 3 - 16, nslot, 1)
        if prev_epi:
            ep = epilogue(Y)
            ini = acc_init(Y)
            if ks == 5:
                fill += ep[:5]
            if ks == 8:
                fill += ep[5:]
            if ks in (11, 14):
                fill += ini[:8] if ks == 11 else ini[8:]
        if not first:
            part = (ks - 13) % 16
            if part < 8 and not NODMA:
                if ks >= 13:
                    fill += dma_part(part, (slot + 4) % NSLOT, 4)
                else:
                    fill += dma_part(part, (slot + 3) % NSLOT, 3)
                if part == 7:
                    fill += dma_advance()
        else:
            if ks + A_PRE < 16:
                fill += a_load(ks + A_PRE)
            if 4 <= ks < 12:
                c = 2 + (ks - 4) // 4
                for part in (2 * ((ks - 4) % 4), 2 * ((ks - 4) % 4) + 1):
                    fill += dma_part(part, c, c)
                    if part == 7:
                        fill += dma_advance()
            if ks >= 13:
                fill += dma_part(ks - 13, 4, 4)
        if not NORES:
            n, ph = divmod(ks, 3)
            if n < 4 and ph < 2:
                fill += gather(n, slot, 0)[4 * ph:4 * ph + 4]
            if ks >= 3 and ph == 0 and n - 1 < 4:
                early = [W(wl=("G", n - 1, 0))] + res_comb(n - 1)
                post += res_mfma(n - 1, X)
            if ks == 12:
                post += [I(f"  s_cmp_gt_u32 s{S_NG}, 4"), I(f"  s_cbranch_scc1 Lslow_{name}"), I(f"Lslowback_{name}:")]
        L += pre
        L.append(W(wl=("R", ks, 0), wv=("A", ks) if first else None))
        mf = []
        for fs in range(4):
            a = (ks * 4 + fs) * 4
            b = V_B + 8 * (ks & 3)
            mf.append(I(f"  v_smfmac_f32_16x16x64_bf16 v[{X+4*fs}:{X+4*fs+3}], a[{a}:{a+3}], v[{b}:{b+7}], "
                        f"v{V_IDX+fs*8+(ks>>1)}" + (" abid:1" if ks & 1 else "")))
        fill = early + fill
        n_ = len(fill)
        per = [(n_ + 3 - i) // 4 for i in range(4)]
        pos = 0
        for i in range(4):
            L.append(mf[i])
            L += fill[pos:pos + per[i]]
            pos += per[i]
        L += post
    if own_epi:
        L += [I("  s_nop 7")] + epilogue(X) + acc_init(X) + [I("  s_nop 1")]
    return L


def slow_path(name, slot, buf, first=False):
    X = V_ACC + 16 * buf
    L = []
    L.append(I(f"Lslow_{name}:"))
    L.append(I(f"  s_mov_b32 s{S_G}, {NRES}"))
    L.append(I(f"Lslowloop_{name}:"))
    L.append(I(f"  v_mbcnt_lo_u32_b32 v{V_X0}, -1, 0"))
    L.append(I(f"  v_mbcnt_hi_u32_b32 v{V_X0}, -1, v{V_X0}"))
    L.append(I(f"  s_lshl_b32 s{S_T0}, s{S_G}, 4"))
    L.append(I(f"  v_add_u32 v{V_X0}, s{S_T0}, v{V_X0}"))
    unit_table(L, V_X0)
    for i in range(4):
        L.append(I(f"  ds_bpermute_b32 v{V_GT+i}, v{V_PK}, v{V_UT} offset:{4*i}"))
    L.append(I("  s_waitcnt lgkmcnt(0)"))
    for i in range(4):
        L.append(I(f"  buffer_load_dwordx2 v[{V_T+2*i}:{V_T+2*i+1}], v{V_GT+i}, s[{S_WS}:{S_WS+3}], s{S_LB} offen"))
        L.append(I(f"  buffer_load_dwordx2 v[{V_SVS+2*i}:{V_SVS+2*i+1}], v{V_GT+i}, s[{S_WS}:{S_WS+3}], s{S_LB} offen offset:8"))
    L.append(I("  s_waitcnt vmcnt(0)"))
    for jj in range(8):
        L.append(I(f"  v_xor_b32 v{V_T+jj}, v{V_T+jj}, v{V_GX}"))
    for jj in range(8):
        L.append(I(f"  ds_read_u16 v{V_GT+jj}, v{V_T+jj} offset:{slot*2048}"))
    for i in range(4):
        L.append(I(f"  v_xor_b32 v{V_SVS+2*i+1}, v{V_SVS+2*i+1}, v{V_BF2}"))
    L.append(I("  s_waitcnt lgkmcnt(0)"))
    for d in range(4):
        L.append(I(f"  v_lshl_or_b32 v{V_BP+d}, v{V_GT+2*d+1}, 16, v{V_GT+2*d}"))
    for fs in range(4):
        afrag(L, fs, V_SVS, V_AT)
        L.append(I("  s_nop 1"))
        L.append(I(f"  v_mfma_f32_16x16x32_bf16 v[{X+4*fs}:{X+4*fs+3}], v[{V_AT}:{V_AT+3}], v[{V_BP}:{V_BP+3}], v[{X+4*fs}:{X+4*fs+3}]"))
        L.append(I("  s_nop 7"))
    L.append(I(f"  s_add_u32 s{S_G}, s{S_G}, 1"))
    L.append(I(f"  s_cmp_lt_u32 s{S_G}, s{S_NG}"))
    L.append(I(f"  s_cbranch_scc1 Lslowloop_{name}"))
    L.append(I(f"  s_branch Lslowback_{name}"))
    return L


def resolve(seq):
    lds, vm = [], []
    for blk, c in seq:
        for ins in blk:
            if ins.lds is not None:
                t = ins.lds
                lds.append(((t[0], t[1], c + t[2]), ins.opt))
            if ins.vm is not None:
                t = ins.vm
                vm.append(((t[0], t[1] + (c if t[0] in ("D",) else 0)), ins.opt))
            if ins.text == "WAIT":
                if ins.wl is not None:
                    key = (ins.wl[0], ins.wl[1], c + ins.wl[2])
                    n, found = 0, False
                    for tag, opt in reversed(lds):
                        if tag == key:
                            found = True
                            break
                        if not opt:
                            n += 1
                    assert found, (key, c)
                    n = min(n, 15)
                    ins.nl = n if ins.nl is None else min(ins.nl, n)
                if ins.wv is not None:
                    key = (ins.wv[0], ins.wv[1] + (c if ins.wv[0] in ("D",) else 0))
                    n, found = 0, False
                    for tag, opt in reversed(vm):
                        if tag == key:
                            found = True
                            break
                        if not opt:
                            n += 1
                    assert found or NODMA, (key, c)
                    n = min(n, 63)
                    ins.nv = n if ins.nv is None else min(ins.nv, n)


def emit(blk):
    for ins in blk:
        if ins.text == "WAIT":
            parts = []
            if ins.nv is not None:
                parts.append(f"vmcnt({ins.nv})")
            if ins.nl is not None:
                parts.append(f"lgkmcnt({ins.nl})")
            e("  s_waitcnt " + " ".join(parts))
        else:
            e(ins.text)


def gen_main():
    e(f".globl {KNAME}")
    e(".p2align 8")
    e(f".type {KNAME},@function")
    e(f"{KNAME}:")
    P = []

    def p(t, **kw):
        P.append(I(t, **kw))

    p("  s_cmp_ge_u32 s2, 256")
    p("  s_cbranch_scc1 Lm_end")
    P.extend(stamp(0))
    p("  s_load_dwordx4 s[4:7], s[0:1], 0")
    p("  s_load_dwordx4 s[8:11], s[0:1], 16")
    p("  s_load_dwordx2 s[14:15], s[0:1], 40")
    p("  v_lshrrev_b32 v3, 6, v0")
    p(f"  v_and_b32 v{V_LANE}, 63, v0")
    p(f"  v_readfirstlane_b32 s{S_W}, v3")
    p(f"  v_and_b32 v{V_M}, 15, v{V_LANE}")
    p(f"  v_lshrrev_b32 v{V_Q}, 4, v{V_LANE}")
    p(f"  v_lshlrev_b32 v{V_LO16A}, 4, v{V_LANE}")
    p(f"  s_and_b32 s{S_T0}, s2, 7")
    p(f"  s_lshr_b32 s{S_T1}, s2, 3")
    p(f"  s_and_b32 s{S_T2}, s{S_T1}, 3")
    p(f"  s_lshr_b32 s{S_T1}, s{S_T1}, 2")
    p(f"  s_lshl_b32 s{S_T1}, s{S_T1}, 3")
    p(f"  s_add_u32 s{S_T1}, s{S_T1}, s{S_T0}")
    p(f"  s_lshl_b32 s{S_ROWB}, s{S_T1}, 19")
    p(f"  s_lshl_b32 s{S_SLOT}, s{S_T2}, 2")
    p(f"  s_add_u32 s{S_SLOT}, s{S_SLOT}, s{S_W}")
    p(f"  s_mul_i32 s{S_M0R}, s{S_W}, {4*ROWB}")
    for i in range(1, 4):
        p(f"  s_add_u32 s{S_M0R+i}, s{S_M0R}, {i*ROWB}")
    p(f"  s_mov_b32 s{S_K1}, 0x00010001")
    p(f"  s_mov_b32 s{S_KM1}, -1")
    for i in range(4):
        p(f"  s_lshl_b32 s{S_T0}, s{S_W}, 2")
        p(f"  s_add_u32 s{S_T0}, s{S_T0}, {i}")
        p(f"  v_xor_b32 v{V_X0}, s{S_T0}, v{V_LANE}")
        p(f"  v_and_b32 v{V_X0}, 15, v{V_X0}")
        p(f"  v_and_or_b32 v{V_X0}, v{V_LANE}, 48, v{V_X0}")
        p(f"  v_lshlrev_b32 v{V_X0}, 4, v{V_X0}")
        p(f"  s_lshl_b32 s{S_T1}, s{S_T0}, 11")
        p(f"  v_add_u32 v{V_DMA+i}, s{S_T1}, v{V_X0}")
    p("  s_waitcnt lgkmcnt(0)")
    for (srd, lo, size) in ((S_X, 4, 1 << 25), (S_OUT, 10, 1 << 25), (S_WS, 14, WS_USED), (S_BIAS, 8, 2048)):
        p(f"  s_mov_b32 s{srd}, s{lo}")
        p(f"  s_mov_b32 s{srd+1}, s{lo+1}")
        p(f"  s_mov_b32 s{srd+2}, {size}")
        p(f"  s_mov_b32 s{srd+3}, 0x00020000")
    p(f"  s_lshl_b32 s{S_T0}, s{S_SLOT}, 6")
    p(f"  s_add_u32 s{S_T0}, s{S_T0}, {CNT_OFF}")
    p(f"  s_load_dwordx16 s[{S_C0}:{S_C0+15}], s[14:15], s{S_T0}")
    p(f"  s_mov_b32 s{S_DGOFF}, s{S_ROWB}")
    p(f"  s_mov_b32 s{S_DC}, 0")
    for part in range(8):
        P.extend(dma_part(part, 0, 0))
    P.extend(dma_advance())
    p(f"  s_lshl_b32 s{S_T0}, s{S_SLOT}, 13")
    p(f"  s_add_u32 s{S_T0}, s{S_T0}, {IDX_OFF}")
    for j in range(8):
        if j == 4:
            p(f"  s_add_u32 s{S_T0}, s{S_T0}, 4096")
        p(f"  buffer_load_dwordx4 v[{V_IDX+4*j}:{V_IDX+4*j+3}], v{V_LO16A}, s[{S_WS}:{S_WS+3}], s{S_T0} offen offset:{(j&3)*1024}{ALF}",
          vm=("I", 0))
    p(f"  v_lshlrev_b32 v{V_X0}, 4, v{V_Q}")
    p(f"  s_lshl_b32 s{S_T0}, s{S_SLOT}, 7")
    for j in range(2):
        p(f"  buffer_load_dwordx4 v[{V_GT+4*j}:{V_GT+4*j+3}], v{V_X0}, s[{S_BIAS}:{S_BIAS+3}], s{S_T0} offen offset:{64*j}",
          vm=("B", 0))
    p(f"  s_lshl_b32 s{S_AOFF}, s{S_SLOT}, 16")
    for ks in range(3):
        P.extend(a_load(ks))
    p(f"  v_lshlrev_b32 v{V_ST}, 11, v{V_M}")
    p(f"  v_lshl_add_u32 v{V_ST}, v{V_Q}, 4, v{V_ST}")
    p(f"  s_movk_i32 s{S_T0}, {ROWB}")
    p(f"  v_mul_lo_u32 v{V_X1}, v{V_M}, s{S_T0}")
    for pp in range(2):
        for h in range(2):
            p(f"  v_lshlrev_b32 v{V_X0}, 1, v{V_Q}")
            p(f"  v_add_u32 v{V_X0}, {pp*8+h}, v{V_X0}")
            p(f"  v_xor_b32 v{V_X0}, v{V_X0}, v{V_M}")
            p(f"  v_lshl_add_u32 v{V_RB+2*pp+h}, v{V_X0}, 4, v{V_X1}")
    p(f"  v_lshl_or_b32 v{V_GX}, v{V_M}, 4, v{V_X1}")
    p(f"  v_mov_b32 v{V_RIDX}, 0x44444444")
    p(f"  v_lshlrev_b32 v{V_PK}, 4, v{V_Q}")
    p(f"  v_and_b32 v{V_PV}, 1, v{V_Q}")
    p(f"  v_lshlrev_b32 v{V_PV}, 5, v{V_PV}")
    p(f"  v_lshrrev_b32 v{V_X0}, 1, v{V_Q}")
    p(f"  v_lshl_or_b32 v{V_PV}, v{V_X0}, 3, v{V_PV}")
    p(f"  v_lshrrev_b32 v{V_X0}, 2, v{V_M}")
    p(f"  v_and_b32 v{V_BF2}, 3, v{V_M}")
    p(f"  v_lshl_or_b32 v{V_BF2}, v{V_X0}, 3, v{V_BF2}")
    p(f"  v_lshl_or_b32 v{V_BF2}, v{V_BF2}, 16, v{V_BF2}")
    p("  s_waitcnt lgkmcnt(0)")
    unit_table(P, V_LANE)
    p(f"  s_add_u32 s{S_NG}, s{S_PF}, 16")
    p(f"  s_lshr_b32 s{S_NG}, s{S_NG}, 4")
    p(f"  s_lshl_b32 s{S_LB}, s{S_SLOT}, 18")
    p(f"  s_add_u32 s{S_LB}, s{S_LB}, {LIST_OFF}")
    for g in range(NRES):
        for i in range(4):
            p(f"  ds_bpermute_b32 v{V_AP+8*g+i}, v{V_PK}, v{V_UT} offset:{64*g+4*i}")
            if True:
                p(f"  ds_bpermute_b32 v{V_AP+8*g+4+i}, v{V_PV}, v{V_UT} offset:{64*g+16*(i>>1)+4*(i&1)}")
    p("  s_waitcnt lgkmcnt(0)")
    for g in range(NRES):
        for i in range(4):
            p(f"  buffer_load_dwordx2 v[{V_GB+8*g+2*i}:{V_GB+8*g+2*i+1}], v{V_AP+8*g+i}, s[{S_WS}:{S_WS+3}], s{S_LB} offen",
              vm=("U", g))
            av = V_AP + 8 * g + 4 + i
            p(f"  buffer_load_dwordx2 v[{V_B+8*g+2*i}:{V_B+8*g+2*i+1}], v{av}, s[{S_WS}:{S_WS+3}], s{S_LB} offen offset:8",
              vm=("U", g))
    for ks in range(3, A_PRE):
        P.extend(a_load(ks))
    for part in range(8):
        P.extend(dma_part(part, 1, 1))
    P.extend(dma_advance())
    P.extend(stamp(1))
    P.append(W(wv=("B", 0)))
    for j in range(2):
        for d in range(4):
            fs = 2 * j + (d >> 1)
            r = 2 * (d & 1)
            p(f"  v_lshlrev_b32 v{V_BIAS+4*fs+r}, 16, v{V_GT+4*j+d}")
            p(f"  v_and_b32 v{V_BIAS+4*fs+r+1}, 0xffff0000, v{V_GT+4*j+d}")
    for g in range(NRES):
        P.append(W(wv=("U", g)))
        for jj in range(8):
            p(f"  v_xor_b32 v{V_GB+8*g+jj}, v{V_GB+8*g+jj}, v{V_GX}")
        for i in range(4):
            r = V_B + 8 * g + 2 * i + 1
            p(f"  v_xor_b32 v{r}, v{r}, v{V_BF2}")
        for fs in range(4):
            afrag(P, fs, V_B + 8 * g, V_AP + 16 * g + 4 * fs)
    P.extend(acc_init(V_ACC))
    P.extend(acc_init(V_ACC + 16))
    P.extend(stamp(2))
    P.append(W(wv=("D", 0)))
    p("  s_barrier")
    p(f"  s_lshl_b32 s{S_OOFF}, s{S_SLOT}, 7")
    p(f"  s_add_u32 s{S_OOFF}, s{S_OOFF}, s{S_ROWB}")
    p(f"  s_mov_b32 s{S_CNT}, 0")
    P.extend(rd(0, 0, 0))
    P.extend(rd(1, 0, 0))
    P.extend(rd(2, 0, 0))
    P.extend(stamp(3))

    F = body("f", 0, 0, False, True, first=True)
    F.extend(stamp(4))
    slots = [1, 2, 3, 4, 0]
    bufs = [1, 0, 1, 0, 1]
    LB = []
    for i, (sl, bf) in enumerate(zip(slots, bufs)):
        LB.append(body(f"b{i}", sl, bf, i > 0, i == 4))
    seq = [(P, 0), (F, 0)]
    c = 1
    for it in range(3):
        for blk in LB:
            seq.append((blk, c))
            c += 1
    resolve(seq)
    emit(P)
    emit(F)
    e("Lloop:")
    for blk in LB:
        emit(blk)
    e(f"  s_add_u32 s{S_CNT}, s{S_CNT}, 1")
    e(f"  s_cmp_lt_u32 s{S_CNT}, 3")
    e("  s_cbranch_scc1 Lloop")
    if DBG:
        emit(stamp(5))
        e("  s_waitcnt vmcnt(0)")
        emit(stamp(6))
        e("  s_memrealtime s[100:101]")
        e("  s_load_dwordx2 s[12:13], s[0:1], 32")
        e("  s_waitcnt lgkmcnt(0)")
        e("  s_mov_b32 s84, s12")
        e("  s_mov_b32 s85, s13")
        e("  s_mov_b32 s86, 256")
        e("  s_mov_b32 s87, 0x00020000")
        e("  s_and_b32 s88, s2, 63")
        e("  s_cmp_lg_u32 s88, 0")
        e("  s_cbranch_scc1 Lm_end")
        e(f"  s_cmp_lg_u32 s{S_W}, 0")
        e("  s_cbranch_scc1 Lm_end")
        e("  s_lshr_b32 s88, s2, 6")
        e("  s_lshl_b32 s88, s88, 5")
        e("  v_mov_b32 v1, 0")
        e("  s_mov_b64 exec, 1")
        for i in range(7):
            if i:
                e(f"  s_sub_u32 s68, s{S_STAMP+i}, s{S_STAMP}")
            else:
                e(f"  s_mov_b32 s68, s{S_STAMP}")
            e("  v_mov_b32 v2, s68")
            e(f"  buffer_store_dword v2, v1, s[84:87], s88 offen offset:{4*i}")
        e("  s_sub_u32 s100, s100, s98")
        e("  v_mov_b32 v2, s100")
        e("  buffer_store_dword v2, v1, s[84:87], s88 offen offset:28")
    e("Lm_end:")
    e("  s_endpgm")
    if not NORES:
        emit(slow_path("f", 0, 0, first=True))
        for i, (sl, bf) in enumerate(zip(slots, bufs)):
            emit(slow_path(f"b{i}", sl, bf))


def main():
    e("; Kernarg layout: 0 x, 8 w, 16 b, 24 out, 32 debug, 40 ws")
    e("; @launch kernel=prep_kernel grid=(256,1,1) block=(256,1,1) lds=256")
    e(f"; @launch kernel={KNAME} grid=(256,1,1) block=(256,1,1) lds={16*ROWB}")
    e('.amdgcn_target "amdgcn-amd-amdhsa--gfx950"')
    e(".text")
    gen_prep()
    gen_main()
    e('.section .rodata,"a"')
    e(".p2align 6")
    e(".amdhsa_kernel prep_kernel")
    e("  .amdhsa_next_free_vgpr 64")
    e("  .amdhsa_next_free_sgpr 64")
    e("  .amdhsa_accum_offset 64")
    e("  .amdhsa_group_segment_fixed_size 0")
    e("  .amdhsa_kernarg_size 48")
    e("  .amdhsa_user_sgpr_count 2")
    e("  .amdhsa_user_sgpr_kernarg_segment_ptr 1")
    e("  .amdhsa_system_sgpr_workgroup_id_x 1")
    e(".end_amdhsa_kernel")
    e(".p2align 6")
    e(f".amdhsa_kernel {KNAME}")
    e("  .amdhsa_next_free_vgpr 512")
    e("  .amdhsa_next_free_sgpr 102")
    e("  .amdhsa_accum_offset 256")
    e("  .amdhsa_group_segment_fixed_size 0")
    e("  .amdhsa_kernarg_size 48")
    e("  .amdhsa_user_sgpr_count 2")
    e("  .amdhsa_user_sgpr_kernarg_segment_ptr 1")
    e("  .amdhsa_system_sgpr_workgroup_id_x 1")
    e(".end_amdhsa_kernel")
    path = sys.argv[1] if len(sys.argv) > 1 else "standalone__structured_sparse_n_m__ragged.s"
    open(path, "w").write("\n".join(out) + "\n")


if __name__ == "__main__":
    main()
```

```python
import sys, os

DBG = int(os.environ.get("DBG", "0"))
NODMA = int(os.environ.get("NODMA", "0"))
NORES = int(os.environ.get("NORES", "0"))
NOST = int(os.environ.get("NOST", "0"))
DMAF = os.environ.get("DMAF", " nt")
WLF = os.environ.get("WLF", " nt")
ALF = os.environ.get("ALF", "")
STF = os.environ.get("STF", "")
TCH = int(os.environ.get("TCH", "0"))
TCF = os.environ.get("TCF", "")
PT0 = int(os.environ.get("PT0", "0"))
PTN = int(os.environ.get("PTN", "0"))

KNAME = "standalone__structured_sparse_n_m__ragged_kernel"

A_OFF = 0
IDX_OFF = 1 << 20
CNT_OFF = (1 << 20) + (128 << 10)
LIST_OFF = 2 << 20
CAPB = 16384
WS_USED = 8 << 20

NSLOT = 5
ROWB = NSLOT * 2048
NCHUNK = 16
OOB = 0x40000000
NRES = 4

out = []


def e(s=""):
    out.append(s)


def gen_prep():
    e(".globl prep_kernel")
    e(".p2align 8")
    e(".type prep_kernel,@function")
    e("prep_kernel:")
    e("  s_cmp_ge_u32 s2, 256")
    e("  s_cbranch_scc1 Lp_end")
    e("  s_load_dwordx2 s[4:5], s[0:1], 8")
    e("  s_load_dwordx2 s[6:7], s[0:1], 40")
    e("  v_lshrrev_b32 v1, 6, v0")
    e("  v_and_b32 v2, 63, v0")
    e("  v_readfirstlane_b32 s3, v1")
    e("  s_lshr_b32 s8, s2, 4")
    e("  s_and_b32 s10, s2, 15")
    e("  s_mov_b32 s11, s3")
    e("  s_lshl_b32 s12, s10, 6")
    e("  s_lshl_b32 s13, s11, 4")
    e("  s_add_u32 s12, s12, s13")
    e("  s_lshl_b32 s13, s12, 11")
    e("  s_lshl_b32 s14, s8, 7")
    e("  s_add_u32 s13, s13, s14")
    e("  v_lshlrev_b32 v3, 1, v2")
    e("  s_waitcnt lgkmcnt(0)")
    e("  s_mov_b32 s16, s4")
    e("  s_mov_b32 s17, s5")
    e("  s_mov_b32 s18, 0x200000")
    e("  s_mov_b32 s19, 0x00020000")
    e("  s_mov_b32 s20, s6")
    e("  s_mov_b32 s21, s7")
    e(f"  s_mov_b32 s22, {WS_USED}")
    e("  s_mov_b32 s23, 0x00020000")
    for i in range(8):
        e(f"  buffer_load_ushort v{4+i}, v3, s[16:19], s13 offen{WLF}")
        e(f"  buffer_load_ushort v{12+i}, v3, s[16:19], s13 offen offset:2048{WLF}")
        if i < 7:
            e("  s_add_u32 s13, s13, 4096")
    if PTN:
        e("  s_load_dwordx2 s[48:49], s[0:1], 0")
        e("  s_and_b32 s52, s2, 7")
        e("  s_lshr_b32 s53, s2, 3")
        e("  s_and_b32 s54, s53, 3")
        e("  s_lshr_b32 s53, s53, 2")
        e("  s_lshl_b32 s53, s53, 3")
        e("  s_add_u32 s53, s53, s52")
        e("  s_lshl_b32 s53, s53, 19")
        e("  s_lshl_b32 s54, s54, 13")
        e("  s_add_u32 s53, s53, s54")
        e("  s_lshl_b32 s54, s3, 15")
        e("  s_add_u32 s53, s53, s54")
        e("  v_lshrrev_b32 v38, 4, v2")
        e("  v_lshlrev_b32 v38, 11, v38")
        e("  v_and_b32 v39, 15, v2")
        e("  v_lshl_or_b32 v38, v39, 7, v38")
        e("  s_waitcnt lgkmcnt(0)")
        e("  s_mov_b32 s50, 0x2000000")
        e("  s_mov_b32 s51, 0x00020000")
        for r in range(PTN):
            e(f"  s_add_u32 s54, s53, {(PT0+4*r)*32768}")
            e(f"  buffer_load_dword v39, v38, s[48:51], s54 offen{TCF}")
    e("  v_lshrrev_b32 v40, 5, v2")
    e("  v_bfe_u32 v41, v2, 2, 1")
    e("  v_lshl_or_b32 v40, v40, 1, v41")
    e("  v_bfe_u32 v41, v2, 3, 2")
    e("  v_and_b32 v42, 3, v2")
    e("  v_lshl_or_b32 v41, v41, 2, v42")
    e("  v_lshlrev_b32 v42, 10, v40")
    e("  v_lshl_add_u32 v42, v41, 4, v42")
    e("  s_lshl_b32 s24, s8, 4")
    e("  s_add_u32 s24, s24, s10")
    e("  s_lshl_b32 s24, s24, 12")
    e("  s_lshr_b32 s25, s11, 1")
    e("  s_lshl_b32 s25, s25, 8")
    e("  s_add_u32 s24, s24, s25")
    e("  s_and_b32 s25, s11, 1")
    e("  s_lshl_b32 s26, s25, 3")
    e("  s_add_u32 s24, s24, s26")
    e("  v_lshlrev_b32 v43, 11, v40")
    e("  v_lshl_add_u32 v43, v41, 4, v43")
    e("  s_lshl_b32 s26, s8, 13")
    e(f"  s_add_u32 s26, s26, {IDX_OFF}")
    e("  s_lshr_b32 s27, s10, 3")
    e("  s_lshl_b32 s27, s27, 10")
    e("  s_add_u32 s26, s26, s27")
    e("  s_lshr_b32 s27, s11, 1")
    e("  s_lshl_b32 s27, s27, 8")
    e("  s_add_u32 s26, s26, s27")
    e("  s_lshr_b32 s27, s10, 1")
    e("  s_and_b32 s27, s27, 3")
    e("  s_lshl_b32 s27, s27, 2")
    e("  s_add_u32 s26, s26, s27")
    e("  s_and_b32 s27, s10, 1")
    e("  s_lshl_b32 s27, s27, 1")
    e("  s_add_u32 s26, s26, s27")
    e("  s_add_u32 s26, s26, s25")
    e("  v_lshlrev_b32 v44, 16, v2")
    for i in range(8):
        e(f"  v_mov_b32 v{28+i}, 0")
    e(f"  s_waitcnt vmcnt({PTN})")
    for i in range(8):
        e(f"  v_lshl_or_b32 v{4+i}, v{12+i}, 16, v{4+i}")
    A, B, C, Dd, H1, L1, H2, L2, T, THR, M, I0, I1, M1, M2, P0 = 46, 47, 48, 49, 50, 51, 52, 53, 54, 55, 56, 57, 58, 59, 60, 62
    for g in range(4):
        lo, hi = 4 + 2 * g, 5 + 2 * g
        e(f"  v_and_b32 v{A}, 0x7fff, v{lo}")
        e(f"  v_bfe_u32 v{B}, v{lo}, 16, 15")
        e(f"  v_and_b32 v{C}, 0x7fff, v{hi}")
        e(f"  v_bfe_u32 v{Dd}, v{hi}, 16, 15")
        e(f"  v_max_u32 v{H1}, v{A}, v{B}")
        e(f"  v_min_u32 v{L1}, v{A}, v{B}")
        e(f"  v_max_u32 v{H2}, v{C}, v{Dd}")
        e(f"  v_min_u32 v{L2}, v{C}, v{Dd}")
        e(f"  v_min_u32 v{T}, v{H1}, v{H2}")
        e(f"  v_max3_u32 v{THR}, v{T}, v{L1}, v{L2}")
        e(f"  v_add_u32 v{THR}, -1, v{THR}")
        e(f"  v_sub_u32 v{A}, v{THR}, v{A}")
        e(f"  v_sub_u32 v{B}, v{THR}, v{B}")
        e(f"  v_sub_u32 v{C}, v{THR}, v{C}")
        e(f"  v_sub_u32 v{Dd}, v{THR}, v{Dd}")
        e(f"  v_lshrrev_b32 v{M}, 31, v{A}")
        e(f"  v_lshrrev_b32 v{B}, 30, v{B}")
        e(f"  v_and_or_b32 v{M}, v{B}, 2, v{M}")
        e(f"  v_lshrrev_b32 v{C}, 29, v{C}")
        e(f"  v_and_or_b32 v{M}, v{C}, 4, v{M}")
        e(f"  v_lshrrev_b32 v{Dd}, 28, v{Dd}")
        e(f"  v_and_or_b32 v{M}, v{Dd}, 8, v{M}")
        e(f"  v_ffbl_b32 v{I0}, v{M}")
        e(f"  v_add_u32 v{T}, -1, v{M}")
        e(f"  v_and_b32 v{M1}, v{M}, v{T}")
        e(f"  v_ffbl_b32 v{I1}, v{M1}")
        e(f"  v_add_u32 v{T}, -1, v{M1}")
        e(f"  v_and_b32 v{M2}, v{M1}, v{T}")
        e(f"  v_cmp_ne_u32 vcc, 0, v{M2}")
        e(f"  v_lshlrev_b32 v{T}, 4, v{I0}")
        e(f"  v_lshrrev_b64 v[{P0}:{P0+1}], v{T}, v[{lo}:{hi}]")
        e(f"  v_and_b32 v{A}, 0xffff, v{P0}")
        e(f"  v_lshlrev_b32 v{T}, 4, v{I1}")
        e(f"  v_lshrrev_b64 v[{P0}:{P0+1}], v{T}, v[{lo}:{hi}]")
        e(f"  v_lshl_or_b32 v{20+g}, v{P0}, 16, v{A}")
        e(f"  v_lshl_or_b32 v{24+g}, v{I1}, 2, v{I0}")
        e("  s_cmp_eq_u64 vcc, 0")
        e(f"  s_cbranch_scc1 Lp_nores{g}")
        mcur = M2
        for which in range(2):
            E = 28 + 2 * g + which
            e(f"  v_ffbl_b32 v{I0}, v{mcur}")
            e(f"  v_lshlrev_b32 v{T}, 4, v{I0}")
            e(f"  v_lshrrev_b64 v[{P0}:{P0+1}], v{T}, v[{lo}:{hi}]")
            e(f"  v_and_b32 v{A}, 0xffff, v{P0}")
            e(f"  v_and_b32 v{B}, 0x7fff, v{P0}")
            e(f"  v_min_u32 v{B}, v{B}, v{mcur}")
            e(f"  v_add_u32 v{C}, s12, v{I0}")
            e(f"  v_add_u32 v{C}, {4*g}, v{C}")
            e(f"  v_lshl_or_b32 v{C}, v{C}, 22, v44")
            e(f"  v_or_b32 v{C}, v{C}, v{A}")
            e(f"  v_cmp_ne_u32 vcc, 0, v{B}")
            if which == 0:
                e(f"  v_add_u32 v{T}, -1, v{M2}")
                e(f"  v_and_b32 v{M1}, v{M2}, v{T}")
            else:
                e("  s_nop 1")
            e(f"  v_cndmask_b32 v{E}, 0, v{C}, vcc")
            mcur = M1
        e(f"Lp_nores{g}:")
    for eh in range(2):
        e(f"  buffer_store_dwordx2 v[{20+2*eh}:{21+2*eh}], v42, s[20:23], s24 offen offset:{512*eh}")
        e(f"  v_lshl_or_b32 v{46+eh}, v{25+2*eh}, 4, v{24+2*eh}")
        e(f"  buffer_store_byte v{46+eh}, v43, s[20:23], s26 offen offset:{512*eh}")
    e("  s_mov_b32 s28, 0")
    for i in range(8):
        e(f"  v_cmp_ne_u32 s[{32+2*i}:{33+2*i}], 0, v{28+i}")
    e("  s_nop 3")
    for i in range(8):
        e(f"  s_bcnt1_i32_b64 s29, s[{32+2*i}:{33+2*i}]")
        e("  s_add_u32 s28, s28, s29")
    e("  v_mov_b32 v46, s28")
    e("  s_lshl_b32 s29, s3, 2")
    e("  v_mov_b32 v47, s29")
    e("  ds_write_b32 v47, v46")
    e("  v_mov_b32 v47, 0")
    e("  s_waitcnt lgkmcnt(0)")
    e("  s_barrier")
    e("  ds_read_b128 v[48:51], v47")
    e("  s_waitcnt lgkmcnt(0)")
    e("  s_mov_b32 s28, 0")
    e("  s_mov_b32 s30, 0")
    for i in range(4):
        e(f"  v_readfirstlane_b32 s29, v{48+i}")
        e("  s_add_u32 s30, s30, s29")
        e(f"  s_cmp_gt_u32 s3, {i}")
        e("  s_cselect_b32 s29, s29, 0")
        e("  s_add_u32 s28, s28, s29")
    e("  s_lshl_b32 s31, s2, 14")
    e(f"  s_add_u32 s31, s31, {LIST_OFF}")
    for i in range(8):
        lo, hi = 32 + 2 * i, 33 + 2 * i
        e(f"  s_cmp_eq_u64 s[{lo}:{hi}], 0")
        e(f"  s_cbranch_scc1 Lp_skip{i}")
        e(f"  v_mbcnt_lo_u32_b32 v46, s{lo}, 0")
        e(f"  v_mbcnt_hi_u32_b32 v46, s{hi}, v46")
        e("  v_add_u32 v46, s28, v46")
        e("  v_lshrrev_b32 v47, 1, v46")
        e("  v_lshlrev_b32 v47, 4, v47")
        e("  v_and_b32 v46, 1, v46")
        e("  v_lshl_add_u32 v48, v46, 2, v47")
        e("  v_lshl_add_u32 v49, v46, 1, v47")
        e(f"  v_lshrrev_b32 v50, 21, v{28+i}")
        e("  v_and_b32 v50, 0x7fe, v50")
        e(f"  v_bfe_u32 v51, v{28+i}, 16, 6")
        e(f"  s_mov_b64 exec, s[{lo}:{hi}]")
        e("  buffer_store_dword v50, v48, s[20:23], s31 offen")
        e(f"  buffer_store_short v{28+i}, v49, s[20:23], s31 offen offset:8")
        e("  buffer_store_short v51, v49, s[20:23], s31 offen offset:12")
        e("  s_mov_b64 exec, -1")
        e(f"  s_bcnt1_i32_b64 s29, s[{lo}:{hi}]")
        e("  s_add_u32 s28, s28, s29")
        e(f"Lp_skip{i}:")
    e("  s_cmp_lg_u32 s3, 0")
    e("  s_cbranch_scc1 Lp_end")
    e("  s_add_u32 s29, s30, 1")
    e("  s_lshr_b32 s29, s29, 1")
    e("  v_mov_b32 v51, s29")
    e("  v_mov_b32 v50, 0")
    e("  s_mov_b64 exec, 1")
    e("  s_bitcmp0_b32 s30, 0")
    e("  s_cbranch_scc1 Lp_nopad")
    e("  s_lshr_b32 s28, s30, 1")
    e("  s_lshl_b32 s28, s28, 4")
    e("  v_mov_b32 v48, s28")
    e("  buffer_store_dword v50, v48, s[20:23], s31 offen offset:4")
    e("  buffer_store_short v50, v48, s[20:23], s31 offen offset:10")
    e("  buffer_store_short v50, v48, s[20:23], s31 offen offset:14")
    e("Lp_nopad:")
    e("  s_lshl_b32 s29, s2, 2")
    e(f"  s_add_u32 s29, s29, {CNT_OFF}")
    e("  buffer_store_dword v51, v50, s[20:23], s29 offen")
    e("Lp_end:")
    e("  s_endpgm")


V_BF2 = 0
V_M, V_Q = 1, 2
V_DMA = 3
V_ST = 7
V_RB = 8
V_GX = 12
V_X0, V_X1, V_X2 = 13, 14, 15
V_IDX = 16
V_BIAS = 48
V_ACC = 64
V_B = 96
V_AP = 128
V_GB = 192
V_GT = 224
V_BP = 232
V_T = 236
V_SV = 244
V_AT = 228
V_LO16 = 232
V_LANE = 233
V_RIDX = 253
V_SVS = 244

S_X, S_OUT, S_WS, S_BIAS = 16, 20, 24, 28
S_W = 32
S_SLOT = 33
S_DGOFF = 36
S_OOFF = 37
S_CNT = 38
S_NG = 39
S_C0 = 80
S_PF, S_DD = 44, 45
S_LB = 51
S_T0, S_T1, S_T2 = 52, 53, 54
S_ROWB = 56
S_G = 57
S_DC = 59
S_M0R = 60
S_K1, S_KM1 = 64, 65
S_AOFF = 66
S_STAMP = 70


class I:
    def __init__(self, text, lds=None, vm=None, opt=False, wl=None, wv=None):
        self.text, self.lds, self.vm, self.opt, self.wl, self.wv = text, lds, vm, opt, wl, wv
        self.nl = None
        self.nv = None


def W(wl=None, wv=None):
    return I("WAIT", wl=wl, wv=wv)


def stamp(i):
    if DBG and i == 0:
        return [I("  s_memrealtime s[98:99]"), I(f"  s_memtime s[68:69]"), I("  s_waitcnt lgkmcnt(0)"), I(f"  s_mov_b32 s{S_STAMP+i}, s68")]
    if DBG:
        return [I("  s_memtime s[68:69]"), I("  s_waitcnt lgkmcnt(0)"), I(f"  s_mov_b32 s{S_STAMP+i}, s68")]
    return []


V_UT = 254
V_PK = 252
V_PV = 255


def unit_table(L, vu):
    L.append(I(f"  v_lshlrev_b32 v{V_UT}, 4, v{vu}"))
    L.append(I(f"  s_mov_b32 s{S_PF}, -1"))
    for t in range(1, 16):
        L.append(I(f"  s_add_u32 s{S_PF}, s{S_PF}, s{S_C0+t-1}"))
        L.append(I(f"  s_lshl_b32 s{S_DD}, s{S_C0+t-1}, 4"))
        L.append(I(f"  s_sub_u32 s{S_DD}, {CAPB}, s{S_DD}"))
        L.append(I(f"  v_sub_u32 v{V_X2}, s{S_PF}, v{vu}"))
        L.append(I(f"  v_ashrrev_i32 v{V_X2}, 31, v{V_X2}"))
        L.append(I(f"  v_and_b32 v{V_X2}, s{S_DD}, v{V_X2}"))
        L.append(I(f"  v_add_u32 v{V_UT}, v{V_UT}, v{V_X2}"))
    L.append(I(f"  s_add_u32 s{S_PF}, s{S_PF}, s{S_C0+15}"))
    L.append(I(f"  v_sub_u32 v{V_X2}, s{S_PF}, v{vu}"))
    L.append(I(f"  v_ashrrev_i32 v{V_X2}, 31, v{V_X2}"))
    L.append(I(f"  v_and_b32 v{V_X2}, {OOB}, v{V_X2}"))
    L.append(I(f"  v_or_b32 v{V_UT}, v{V_UT}, v{V_X2}"))


def afrag(L, fs, vvff, dst):
    cst = 32 * (fs >> 1) + 4 * (fs & 1)
    cst2 = cst | (cst << 16)
    for dd in range(4):
        vv, ff = vvff + 2 * dd, vvff + 2 * dd + 1
        d = dst + dd
        if cst2:
            L.append(I(f"  v_xor_b32 v{d}, {cst2}, v{ff}"))
            L.append(I(f"  v_pk_min_u16 v{d}, v{d}, s{S_K1}"))
        else:
            L.append(I(f"  v_pk_min_u16 v{d}, v{ff}, s{S_K1}"))
        L.append(I(f"  v_pk_add_u16 v{d}, v{d}, s{S_KM1}"))
        L.append(I(f"  v_and_b32 v{d}, v{d}, v{vv}"))


def dma_part(part, slot, rel):
    i, hh = part >> 1, part & 1
    L = []
    if hh == 0:
        L.append(I(f"  s_add_u32 m0, s{S_M0R+i}, {slot*2048}"))
        L.append(I("  s_nop 0"))
    L.append(I(f"  buffer_load_dwordx4 v{V_DMA+i}, s[{S_X}:{S_X+3}], s{S_DGOFF} offen offset:{hh*1024}{DMAF} lds",
               vm=("D", rel)))
    return L


def dma_advance():
    return [I(f"  s_add_u32 s{S_DC}, s{S_DC}, 1"),
            I(f"  s_add_u32 s{S_DGOFF}, s{S_DGOFF}, 32768"),
            I(f"  s_cmp_ge_u32 s{S_DC}, {NCHUNK}"),
            I(f"  s_cselect_b32 s{S_DGOFF}, {OOB}, s{S_DGOFF}")]


def rd(ks, slot, rel):
    p = ks & 1
    b = V_B + 8 * (ks & 3)
    off = slot * 2048 + (ks >> 1) * 256
    return [I(f"  ds_read_b128 v[{b}:{b+3}], v{V_RB+2*p} offset:{off}", lds=("R", ks, rel)),
            I(f"  ds_read_b128 v[{b+4}:{b+7}], v{V_RB+2*p+1} offset:{off}", lds=("R", ks, rel))]


def gtb(g):
    return V_GT if g & 1 == 0 else V_SV


def gather(g, slot, rel, opt=False):
    return [I(f"  ds_read_u16 v{gtb(g)+jj}, v{V_GB+8*g+jj} offset:{slot*2048}", lds=("G", g, rel), opt=opt)
            for jj in range(8)]


def res_comb(g):
    return [I(f"  v_lshl_or_b32 v{gtb(g)+2*d}, v{gtb(g)+2*d+1}, 16, v{gtb(g)+2*d}") for d in range(4)]


def res_mfma(g, acc):
    return [I(f"  v_smfmac_f32_16x16x64_bf16 v[{acc+4*fs}:{acc+4*fs+3}], v[{V_AP+16*g+4*fs}:{V_AP+16*g+4*fs+3}], "
              f"v[{gtb(g)}:{gtb(g)+7}], v{V_RIDX}") for fs in range(4)]


def touch(c):
    if c >= 16:
        return []
    return [I(f"  s_add_u32 s47, s46, {c*32768}"),
            I(f"  buffer_load_dword v232, v235, s[{S_X}:{S_X+3}], s47 offen{TCF}", vm=("T", 0))]


def acc_init(acc):
    return [I(f"  v_mov_b32 v{acc+j}, v{V_BIAS+j}") for j in range(16)]


def epilogue(acc):
    L = []
    for j in range(2):
        for d in range(4):
            fs = 2 * j + (d >> 1)
            r = 2 * (d & 1)
            L.append(I(f"  v_cvt_pk_bf16_f32 v{V_T+4*j+d}, v{acc+4*fs+r}, v{acc+4*fs+r+1}"))
        if not NOST:
            L.append(I(f"  buffer_store_dwordx4 v[{V_T+4*j}:{V_T+4*j+3}], v{V_ST}, s[{S_OUT}:{S_OUT+3}], s{S_OOFF} offen offset:{64*j}{STF}",
                       vm=("S", 0)))
    L.append(I(f"  s_add_u32 s{S_OOFF}, s{S_OOFF}, 32768"))
    return L


def a_load(ks):
    L = []
    for fs in range(4):
        a = (ks * 4 + fs) * 4
        L.append(I(f"  buffer_load_dwordx4 a[{a}:{a+3}], v{V_LO16A}, s[{S_WS}:{S_WS+3}], s{S_AOFF} offen offset:{fs*1024}{ALF}",
                   vm=("A", ks)))
    L.append(I(f"  s_add_u32 s{S_AOFF}, s{S_AOFF}, 4096"))
    return L


V_LO16A = 234
A_PRE = int(os.environ.get("A_PRE","6"))


def body(name, slot, buf, prev_epi, own_epi, first=False):
    X = V_ACC + 16 * buf
    Y = V_ACC + 16 * (1 - buf)
    nslot = (slot + 1) % NSLOT
    L = []
    for ks in range(16):
        pre, fill, post, early = [], [], [], []
        if ks == 13:
            pre = [W(wv=("D", 1)), I("  s_barrier")] if not int(os.environ.get("NOWAIT", "0")) else [I("  s_barrier")]
        if ks + 3 < 16:
            fill += rd(ks + 3, slot, 0)
        else:
            fill += rd(ks + 3 - 16, nslot, 1)
        if prev_epi:
            ep = epilogue(Y)
            ini = acc_init(Y)
            if int(os.environ.get("STADJ", "0")):
                if ks == 5:
                    fill += ep[:4] + ep[5:9]
                if ks == 6:
                    fill += [ep[4]] + ep[9:]
            else:
                if ks == 5:
                    fill += ep[:5]
                if ks == 8:
                    fill += ep[5:]
            if ks in (11, 14):
                fill += ini[:8] if ks == 11 else ini[8:]
        if not first:
            part = (ks - 13) % 16
            if part < 8 and not NODMA:
                if ks >= 13:
                    fill += dma_part(part, (slot + 4) % NSLOT, 4)
                else:
                    fill += dma_part(part, (slot + 3) % NSLOT, 3)
                if part == 7:
                    fill += dma_advance()
        else:
            if ks + A_PRE < 16:
                fill += a_load(ks + A_PRE)
            if TCH and ks == 6:
                fill += touch(TCH + 8)
            if 4 <= ks < 12:
                c = 2 + (ks - 4) // 4
                for part in (2 * ((ks - 4) % 4), 2 * ((ks - 4) % 4) + 1):
                    fill += dma_part(part, c, c)
                    if part == 7:
                        fill += dma_advance()
            if ks >= 13:
                fill += dma_part(ks - 13, 4, 4)
        if not NORES:
            n, ph = divmod(ks, 3)
            if n < 4 and ph < 2:
                fill += gather(n, slot, 0)[4 * ph:4 * ph + 4]
            if ks >= 3 and ph == 0 and n - 1 < 4:
                early = [W(wl=("G", n - 1, 0))] + res_comb(n - 1)
                post += res_mfma(n - 1, X)
            if ks == 12:
                post += [I(f"  s_cmp_gt_u32 s{S_NG}, 4"), I(f"  s_cbranch_scc1 Lslow_{name}"), I(f"Lslowback_{name}:")]
        L += pre
        L.append(W(wl=("R", ks, 0), wv=("A", ks) if first else None))
        mf = []
        for fs in range(4):
            a = (ks * 4 + fs) * 4
            b = V_B + 8 * (ks & 3)
            mf.append(I(f"  v_smfmac_f32_16x16x64_bf16 v[{X+4*fs}:{X+4*fs+3}], a[{a}:{a+3}], v[{b}:{b+7}], "
                        f"v{V_IDX+fs*8+(ks>>1)}" + (" abid:1" if ks & 1 else "")))
        fill = early + fill
        n_ = len(fill)
        per = [(n_ + 3 - i) // 4 for i in range(4)]
        pos = 0
        for i in range(4):
            L.append(mf[i])
            L += fill[pos:pos + per[i]]
            pos += per[i]
        L += post
    if own_epi:
        L += [I("  s_nop 7")] + epilogue(X) + acc_init(X) + [I("  s_nop 1")]
    return L


def slow_path(name, slot, buf, first=False):
    X = V_ACC + 16 * buf
    L = []
    L.append(I(f"Lslow_{name}:"))
    L.append(I(f"  s_mov_b32 s{S_G}, {NRES}"))
    L.append(I(f"Lslowloop_{name}:"))
    L.append(I(f"  v_mbcnt_lo_u32_b32 v{V_X0}, -1, 0"))
    L.append(I(f"  v_mbcnt_hi_u32_b32 v{V_X0}, -1, v{V_X0}"))
    L.append(I(f"  s_lshl_b32 s{S_T0}, s{S_G}, 4"))
    L.append(I(f"  v_add_u32 v{V_X0}, s{S_T0}, v{V_X0}"))
    unit_table(L, V_X0)
    for i in range(4):
        L.append(I(f"  ds_bpermute_b32 v{V_GT+i}, v{V_PK}, v{V_UT} offset:{4*i}"))
    L.append(I("  s_waitcnt lgkmcnt(0)"))
    for i in range(4):
        L.append(I(f"  buffer_load_dwordx2 v[{V_T+2*i}:{V_T+2*i+1}], v{V_GT+i}, s[{S_WS}:{S_WS+3}], s{S_LB} offen"))
        L.append(I(f"  buffer_load_dwordx2 v[{V_SVS+2*i}:{V_SVS+2*i+1}], v{V_GT+i}, s[{S_WS}:{S_WS+3}], s{S_LB} offen offset:8"))
    L.append(I("  s_waitcnt vmcnt(0)"))
    for jj in range(8):
        L.append(I(f"  v_xor_b32 v{V_T+jj}, v{V_T+jj}, v{V_GX}"))
    for jj in range(8):
        L.append(I(f"  ds_read_u16 v{V_GT+jj}, v{V_T+jj} offset:{slot*2048}"))
    for i in range(4):
        L.append(I(f"  v_xor_b32 v{V_SVS+2*i+1}, v{V_SVS+2*i+1}, v{V_BF2}"))
    L.append(I("  s_waitcnt lgkmcnt(0)"))
    for d in range(4):
        L.append(I(f"  v_lshl_or_b32 v{V_BP+d}, v{V_GT+2*d+1}, 16, v{V_GT+2*d}"))
    for fs in range(4):
        afrag(L, fs, V_SVS, V_AT)
        L.append(I("  s_nop 1"))
        L.append(I(f"  v_mfma_f32_16x16x32_bf16 v[{X+4*fs}:{X+4*fs+3}], v[{V_AT}:{V_AT+3}], v[{V_BP}:{V_BP+3}], v[{X+4*fs}:{X+4*fs+3}]"))
        L.append(I("  s_nop 7"))
    L.append(I(f"  s_add_u32 s{S_G}, s{S_G}, 1"))
    L.append(I(f"  s_cmp_lt_u32 s{S_G}, s{S_NG}"))
    L.append(I(f"  s_cbranch_scc1 Lslowloop_{name}"))
    L.append(I(f"  s_branch Lslowback_{name}"))
    return L


def resolve(seq):
    lds, vm = [], []
    for blk, c in seq:
        for ins in blk:
            if ins.lds is not None:
                t = ins.lds
                lds.append(((t[0], t[1], c + t[2]), ins.opt))
            if ins.vm is not None:
                t = ins.vm
                vm.append(((t[0], t[1] + (c if t[0] in ("D",) else 0)), ins.opt))
            if ins.text == "WAIT":
                if ins.wl is not None:
                    key = (ins.wl[0], ins.wl[1], c + ins.wl[2])
                    n, found = 0, False
                    for tag, opt in reversed(lds):
                        if tag == key:
                            found = True
                            break
                        if not opt:
                            n += 1
                    assert found, (key, c)
                    n = min(n, 15)
                    ins.nl = n if ins.nl is None else min(ins.nl, n)
                if ins.wv is not None:
                    key = (ins.wv[0], ins.wv[1] + (c if ins.wv[0] in ("D",) else 0))
                    n, found = 0, False
                    for tag, opt in reversed(vm):
                        if tag == key:
                            found = True
                            break
                        if not opt:
                            n += 1
                    assert found or NODMA, (key, c)
                    n = min(n, 63)
                    ins.nv = n if ins.nv is None else min(ins.nv, n)


def emit(blk):
    for ins in blk:
        if ins.text == "WAIT":
            parts = []
            if ins.nv is not None:
                parts.append(f"vmcnt({ins.nv})")
            if ins.nl is not None:
                parts.append(f"lgkmcnt({ins.nl})")
            e("  s_waitcnt " + " ".join(parts))
        else:
            e(ins.text)


def gen_main():
    e(f".globl {KNAME}")
    e(".p2align 8")
    e(f".type {KNAME},@function")
    e(f"{KNAME}:")
    P = []

    def p(t, **kw):
        P.append(I(t, **kw))

    p("  s_cmp_ge_u32 s2, 256")
    p("  s_cbranch_scc1 Lm_end")
    P.extend(stamp(0))
    p("  s_load_dwordx4 s[4:7], s[0:1], 0")
    p("  s_load_dwordx4 s[8:11], s[0:1], 16")
    p("  s_load_dwordx2 s[14:15], s[0:1], 40")
    p("  v_lshrrev_b32 v3, 6, v0")
    p(f"  v_and_b32 v{V_LANE}, 63, v0")
    p(f"  v_readfirstlane_b32 s{S_W}, v3")
    p(f"  v_and_b32 v{V_M}, 15, v{V_LANE}")
    p(f"  v_lshrrev_b32 v{V_Q}, 4, v{V_LANE}")
    p(f"  v_lshlrev_b32 v{V_LO16A}, 4, v{V_LANE}")
    p(f"  s_and_b32 s{S_T0}, s2, 7")
    p(f"  s_lshr_b32 s{S_T1}, s2, 3")
    p(f"  s_and_b32 s{S_T2}, s{S_T1}, 3")
    p(f"  s_lshr_b32 s{S_T1}, s{S_T1}, 2")
    if int(os.environ.get("RBM", "0")):
        p(f"  s_lshl_b32 s{S_T0}, s{S_T0}, 3")
    else:
        p(f"  s_lshl_b32 s{S_T1}, s{S_T1}, 3")
    p(f"  s_add_u32 s{S_T1}, s{S_T1}, s{S_T0}")
    p(f"  s_lshl_b32 s{S_ROWB}, s{S_T1}, 19")
    p(f"  s_lshl_b32 s{S_SLOT}, s{S_T2}, 2")
    p(f"  s_add_u32 s{S_SLOT}, s{S_SLOT}, s{S_W}")
    p(f"  s_mul_i32 s{S_M0R}, s{S_W}, {4*ROWB}")
    for i in range(1, 4):
        p(f"  s_add_u32 s{S_M0R+i}, s{S_M0R}, {i*ROWB}")
    p(f"  s_mov_b32 s{S_K1}, 0x00010001")
    p(f"  s_mov_b32 s{S_KM1}, -1")
    for i in range(4):
        p(f"  s_lshl_b32 s{S_T0}, s{S_W}, 2")
        p(f"  s_add_u32 s{S_T0}, s{S_T0}, {i}")
        p(f"  v_xor_b32 v{V_X0}, s{S_T0}, v{V_LANE}")
        p(f"  v_and_b32 v{V_X0}, 15, v{V_X0}")
        p(f"  v_and_or_b32 v{V_X0}, v{V_LANE}, 48, v{V_X0}")
        p(f"  v_lshlrev_b32 v{V_X0}, 4, v{V_X0}")
        p(f"  s_lshl_b32 s{S_T1}, s{S_T0}, 11")
        p(f"  v_add_u32 v{V_DMA+i}, s{S_T1}, v{V_X0}")
    p("  s_waitcnt lgkmcnt(0)")
    for (srd, lo, size) in ((S_X, 4, 1 << 25), (S_OUT, 10, 1 << 25), (S_WS, 14, WS_USED), (S_BIAS, 8, 2048)):
        p(f"  s_mov_b32 s{srd}, s{lo}")
        p(f"  s_mov_b32 s{srd+1}, s{lo+1}")
        p(f"  s_mov_b32 s{srd+2}, {size}")
        p(f"  s_mov_b32 s{srd+3}, 0x00020000")
    p(f"  s_lshl_b32 s{S_T0}, s{S_SLOT}, 6")
    p(f"  s_add_u32 s{S_T0}, s{S_T0}, {CNT_OFF}")
    p(f"  s_load_dwordx16 s[{S_C0}:{S_C0+15}], s[14:15], s{S_T0}")
    p(f"  s_mov_b32 s{S_DGOFF}, s{S_ROWB}")
    p(f"  s_mov_b32 s{S_DC}, 0")
    for part in range(8):
        P.extend(dma_part(part, 0, 0))
    P.extend(dma_advance())
    if TCH:
        p(f"  v_lshrrev_b32 v{V_X0}, 4, v{V_LANE}")
        p(f"  v_lshlrev_b32 v{V_X0}, 11, v{V_X0}")
        p(f"  v_lshl_or_b32 v{V_X0}, v{V_M}, 7, v{V_X0}")
        p(f"  s_lshr_b32 s{S_T0}, s{S_SLOT}, 2")
        p(f"  s_lshl_b32 s{S_T0}, s{S_T0}, 13")
        p(f"  s_add_u32 s{S_T0}, s{S_T0}, s{S_ROWB}")
        p(f"  s_lshl_b32 s{S_T1}, s{S_W}, 15")
        p(f"  s_add_u32 s{S_T0}, s{S_T0}, s{S_T1}")
        p(f"  v_mov_b32 v235, v{V_X0}")
        p(f"  s_mov_b32 s46, s{S_T0}")
        P.extend(touch(TCH))
    p(f"  s_lshl_b32 s{S_T0}, s{S_SLOT}, 13")
    p(f"  s_add_u32 s{S_T0}, s{S_T0}, {IDX_OFF}")
    for j in range(8):
        if j == 4:
            p(f"  s_add_u32 s{S_T0}, s{S_T0}, 4096")
        p(f"  buffer_load_dwordx4 v[{V_IDX+4*j}:{V_IDX+4*j+3}], v{V_LO16A}, s[{S_WS}:{S_WS+3}], s{S_T0} offen offset:{(j&3)*1024}{ALF}",
          vm=("I", 0))
    p(f"  v_lshlrev_b32 v{V_X0}, 4, v{V_Q}")
    p(f"  s_lshl_b32 s{S_T0}, s{S_SLOT}, 7")
    for j in range(2):
        p(f"  buffer_load_dwordx4 v[{V_GT+4*j}:{V_GT+4*j+3}], v{V_X0}, s[{S_BIAS}:{S_BIAS+3}], s{S_T0} offen offset:{64*j}",
          vm=("B", 0))
    p(f"  s_lshl_b32 s{S_AOFF}, s{S_SLOT}, 16")
    for ks in range(3):
        P.extend(a_load(ks))
    p(f"  v_lshlrev_b32 v{V_ST}, 11, v{V_M}")
    p(f"  v_lshl_add_u32 v{V_ST}, v{V_Q}, 4, v{V_ST}")
    p(f"  s_movk_i32 s{S_T0}, {ROWB}")
    p(f"  v_mul_lo_u32 v{V_X1}, v{V_M}, s{S_T0}")
    for pp in range(2):
        for h in range(2):
            p(f"  v_lshlrev_b32 v{V_X0}, 1, v{V_Q}")
            p(f"  v_add_u32 v{V_X0}, {pp*8+h}, v{V_X0}")
            p(f"  v_xor_b32 v{V_X0}, v{V_X0}, v{V_M}")
            p(f"  v_lshl_add_u32 v{V_RB+2*pp+h}, v{V_X0}, 4, v{V_X1}")
    p(f"  v_lshl_or_b32 v{V_GX}, v{V_M}, 4, v{V_X1}")
    p(f"  v_mov_b32 v{V_RIDX}, 0x44444444")
    p(f"  v_lshlrev_b32 v{V_PK}, 4, v{V_Q}")
    p(f"  v_and_b32 v{V_PV}, 1, v{V_Q}")
    p(f"  v_lshlrev_b32 v{V_PV}, 5, v{V_PV}")
    p(f"  v_lshrrev_b32 v{V_X0}, 1, v{V_Q}")
    p(f"  v_lshl_or_b32 v{V_PV}, v{V_X0}, 3, v{V_PV}")
    p(f"  v_lshrrev_b32 v{V_X0}, 2, v{V_M}")
    p(f"  v_and_b32 v{V_BF2}, 3, v{V_M}")
    p(f"  v_lshl_or_b32 v{V_BF2}, v{V_X0}, 3, v{V_BF2}")
    p(f"  v_lshl_or_b32 v{V_BF2}, v{V_BF2}, 16, v{V_BF2}")
    p("  s_waitcnt lgkmcnt(0)")
    unit_table(P, V_LANE)
    p(f"  s_add_u32 s{S_NG}, s{S_PF}, 16")
    p(f"  s_lshr_b32 s{S_NG}, s{S_NG}, 4")
    p(f"  s_lshl_b32 s{S_LB}, s{S_SLOT}, 18")
    p(f"  s_add_u32 s{S_LB}, s{S_LB}, {LIST_OFF}")
    for g in range(NRES):
        for i in range(4):
            p(f"  ds_bpermute_b32 v{V_AP+8*g+i}, v{V_PK}, v{V_UT} offset:{64*g+4*i}")
            if True:
                p(f"  ds_bpermute_b32 v{V_AP+8*g+4+i}, v{V_PV}, v{V_UT} offset:{64*g+16*(i>>1)+4*(i&1)}")
    p("  s_waitcnt lgkmcnt(0)")
    for g in range(NRES):
        for i in range(4):
            p(f"  buffer_load_dwordx2 v[{V_GB+8*g+2*i}:{V_GB+8*g+2*i+1}], v{V_AP+8*g+i}, s[{S_WS}:{S_WS+3}], s{S_LB} offen",
              vm=("U", g))
            av = V_AP + 8 * g + 4 + i
            p(f"  buffer_load_dwordx2 v[{V_B+8*g+2*i}:{V_B+8*g+2*i+1}], v{av}, s[{S_WS}:{S_WS+3}], s{S_LB} offen offset:8",
              vm=("U", g))
    for ks in range(3, A_PRE):
        P.extend(a_load(ks))
    for part in range(8):
        P.extend(dma_part(part, 1, 1))
    P.extend(dma_advance())
    if TCH:
        P.extend(touch(TCH + 4))
    P.extend(stamp(1))
    P.append(W(wv=("B", 0)))
    for j in range(2):
        for d in range(4):
            fs = 2 * j + (d >> 1)
            r = 2 * (d & 1)
            p(f"  v_lshlrev_b32 v{V_BIAS+4*fs+r}, 16, v{V_GT+4*j+d}")
            p(f"  v_and_b32 v{V_BIAS+4*fs+r+1}, 0xffff0000, v{V_GT+4*j+d}")
    for g in range(NRES):
        P.append(W(wv=("U", g)))
        for jj in range(8):
            p(f"  v_xor_b32 v{V_GB+8*g+jj}, v{V_GB+8*g+jj}, v{V_GX}")
        for i in range(4):
            r = V_B + 8 * g + 2 * i + 1
            p(f"  v_xor_b32 v{r}, v{r}, v{V_BF2}")
        for fs in range(4):
            afrag(P, fs, V_B + 8 * g, V_AP + 16 * g + 4 * fs)
    P.extend(acc_init(V_ACC))
    P.extend(acc_init(V_ACC + 16))
    P.extend(stamp(2))
    P.append(W(wv=("D", 0)))
    p("  s_barrier")
    p(f"  s_lshl_b32 s{S_OOFF}, s{S_SLOT}, 7")
    p(f"  s_add_u32 s{S_OOFF}, s{S_OOFF}, s{S_ROWB}")
    p(f"  s_mov_b32 s{S_CNT}, 0")
    P.extend(rd(0, 0, 0))
    P.extend(rd(1, 0, 0))
    P.extend(rd(2, 0, 0))
    P.extend(stamp(3))

    F = body("f", 0, 0, False, True, first=True)
    F.extend(stamp(4))
    slots = [1, 2, 3, 4, 0]
    bufs = [1, 0, 1, 0, 1]
    LB = []
    for i, (sl, bf) in enumerate(zip(slots, bufs)):
        LB.append(body(f"b{i}", sl, bf, i > 0, i == 4))
    seq = [(P, 0), (F, 0)]
    c = 1
    for it in range(3):
        for blk in LB:
            seq.append((blk, c))
            c += 1
    resolve(seq)
    emit(P)
    emit(F)
    e("Lloop:")
    for blk in LB:
        emit(blk)
    e(f"  s_add_u32 s{S_CNT}, s{S_CNT}, 1")
    e(f"  s_cmp_lt_u32 s{S_CNT}, 3")
    e("  s_cbranch_scc1 Lloop")
    if DBG:
        emit(stamp(5))
        e("  s_waitcnt vmcnt(0)")
        emit(stamp(6))
        e("  s_memrealtime s[100:101]")
        e("  s_load_dwordx2 s[12:13], s[0:1], 32")
        e("  s_waitcnt lgkmcnt(0)")
        e("  s_mov_b32 s84, s12")
        e("  s_mov_b32 s85, s13")
        e("  s_mov_b32 s86, 256")
        e("  s_mov_b32 s87, 0x00020000")
        e("  s_and_b32 s88, s2, 63")
        e("  s_cmp_lg_u32 s88, 0")
        e("  s_cbranch_scc1 Lm_end")
        e(f"  s_cmp_lg_u32 s{S_W}, 0")
        e("  s_cbranch_scc1 Lm_end")
        e("  s_lshr_b32 s88, s2, 6")
        e("  s_lshl_b32 s88, s88, 5")
        e("  v_mov_b32 v1, 0")
        e("  s_mov_b64 exec, 1")
        for i in range(7):
            if i:
                e(f"  s_sub_u32 s68, s{S_STAMP+i}, s{S_STAMP}")
            else:
                e(f"  s_mov_b32 s68, s{S_STAMP}")
            e("  v_mov_b32 v2, s68")
            e(f"  buffer_store_dword v2, v1, s[84:87], s88 offen offset:{4*i}")
        e("  s_sub_u32 s100, s100, s98")
        e("  v_mov_b32 v2, s100")
        e("  buffer_store_dword v2, v1, s[84:87], s88 offen offset:28")
    e("Lm_end:")
    e("  s_endpgm")
    if not NORES:
        emit(slow_path("f", 0, 0, first=True))
        for i, (sl, bf) in enumerate(zip(slots, bufs)):
            emit(slow_path(f"b{i}", sl, bf))


def main():
    e("; Kernarg layout: 0 x, 8 w, 16 b, 24 out, 32 debug, 40 ws")
    e("; @launch kernel=prep_kernel grid=(256,1,1) block=(256,1,1) lds=256")
    e(f"; @launch kernel={KNAME} grid=(256,1,1) block=(256,1,1) lds={16*ROWB}")
    e('.amdgcn_target "amdgcn-amd-amdhsa--gfx950"')
    e(".text")
    gen_prep()
    gen_main()
    e('.section .rodata,"a"')
    e(".p2align 6")
    e(".amdhsa_kernel prep_kernel")
    e("  .amdhsa_next_free_vgpr 64")
    e("  .amdhsa_next_free_sgpr 64")
    e("  .amdhsa_accum_offset 64")
    e("  .amdhsa_group_segment_fixed_size 0")
    e("  .amdhsa_kernarg_size 48")
    e("  .amdhsa_user_sgpr_count 2")
    e("  .amdhsa_user_sgpr_kernarg_segment_ptr 1")
    e("  .amdhsa_system_sgpr_workgroup_id_x 1")
    e(".end_amdhsa_kernel")
    e(".p2align 6")
    e(f".amdhsa_kernel {KNAME}")
    e("  .amdhsa_next_free_vgpr 512")
    e("  .amdhsa_next_free_sgpr 102")
    e("  .amdhsa_accum_offset 256")
    e("  .amdhsa_group_segment_fixed_size 0")
    e("  .amdhsa_kernarg_size 48")
    e("  .amdhsa_user_sgpr_count 2")
    e("  .amdhsa_user_sgpr_kernarg_segment_ptr 1")
    e("  .amdhsa_system_sgpr_workgroup_id_x 1")
    e(".end_amdhsa_kernel")
    path = sys.argv[1] if len(sys.argv) > 1 else "standalone__structured_sparse_n_m__ragged.s"
    open(path, "w").write("\n".join(out) + "\n")


if __name__ == "__main__":
    main()
```

```python
import sys, os

DBG = int(os.environ.get("DBG", "0"))
NODMA = int(os.environ.get("NODMA", "0"))
NORES = int(os.environ.get("NORES", "0"))
NOST = int(os.environ.get("NOST", "0"))
DMAF = os.environ.get("DMAF", " nt")
WLF = os.environ.get("WLF", " nt")
ALF = os.environ.get("ALF", "")
STF = os.environ.get("STF", "")
TCH = int(os.environ.get("TCH", "0"))
TCF = os.environ.get("TCF", "")
PT0 = int(os.environ.get("PT0", "0"))
PTN = int(os.environ.get("PTN", "0"))

KNAME = "standalone__structured_sparse_n_m__ragged_kernel"

A_OFF = 0
IDX_OFF = 1 << 20
CNT_OFF = (1 << 20) + (128 << 10)
LIST_OFF = 2 << 20
CAPB = 16384
WS_USED = 8 << 20

NSLOT = 5
ROWB = NSLOT * 2048
NCHUNK = 16
OOB = 0x40000000
NRES = 4

out = []


def e(s=""):
    out.append(s)


def gen_prep():
    e(".globl prep_kernel")
    e(".p2align 8")
    e(".type prep_kernel,@function")
    e("prep_kernel:")
    e("  s_cmp_ge_u32 s2, 256")
    e("  s_cbranch_scc1 Lp_end")
    e("  s_load_dwordx2 s[4:5], s[0:1], 8")
    e("  s_load_dwordx2 s[6:7], s[0:1], 40")
    e("  v_lshrrev_b32 v1, 6, v0")
    e("  v_and_b32 v2, 63, v0")
    e("  v_readfirstlane_b32 s3, v1")
    e("  s_lshr_b32 s8, s2, 4")
    e("  s_and_b32 s10, s2, 15")
    e("  s_mov_b32 s11, s3")
    e("  s_lshl_b32 s12, s10, 6")
    e("  s_lshl_b32 s13, s11, 4")
    e("  s_add_u32 s12, s12, s13")
    e("  s_lshl_b32 s13, s12, 11")
    e("  s_lshl_b32 s14, s8, 7")
    e("  s_add_u32 s13, s13, s14")
    e("  v_lshlrev_b32 v3, 1, v2")
    e("  s_waitcnt lgkmcnt(0)")
    e("  s_mov_b32 s16, s4")
    e("  s_mov_b32 s17, s5")
    e("  s_mov_b32 s18, 0x200000")
    e("  s_mov_b32 s19, 0x00020000")
    e("  s_mov_b32 s20, s6")
    e("  s_mov_b32 s21, s7")
    e(f"  s_mov_b32 s22, {WS_USED}")
    e("  s_mov_b32 s23, 0x00020000")
    for i in range(8):
        e(f"  buffer_load_ushort v{4+i}, v3, s[16:19], s13 offen{WLF}")
        e(f"  buffer_load_ushort v{12+i}, v3, s[16:19], s13 offen offset:2048{WLF}")
        if i < 7:
            e("  s_add_u32 s13, s13, 4096")
    if PTN:
        e("  s_load_dwordx2 s[48:49], s[0:1], 0")
        e("  s_and_b32 s52, s2, 7")
        e("  s_lshr_b32 s53, s2, 3")
        e("  s_and_b32 s54, s53, 3")
        e("  s_lshr_b32 s53, s53, 2")
        e("  s_lshl_b32 s53, s53, 3")
        e("  s_add_u32 s53, s53, s52")
        e("  s_lshl_b32 s53, s53, 19")
        e("  s_lshl_b32 s54, s54, 13")
        e("  s_add_u32 s53, s53, s54")
        e("  s_lshl_b32 s54, s3, 15")
        e("  s_add_u32 s53, s53, s54")
        e("  v_lshrrev_b32 v38, 4, v2")
        e("  v_lshlrev_b32 v38, 11, v38")
        e("  v_and_b32 v39, 15, v2")
        e("  v_lshl_or_b32 v38, v39, 7, v38")
        e("  s_waitcnt lgkmcnt(0)")
        e("  s_mov_b32 s50, 0x2000000")
        e("  s_mov_b32 s51, 0x00020000")
        for r in range(PTN):
            e(f"  s_add_u32 s54, s53, {(PT0+4*r)*32768}")
            e(f"  buffer_load_dword v39, v38, s[48:51], s54 offen{TCF}")
    e("  v_lshrrev_b32 v40, 5, v2")
    e("  v_bfe_u32 v41, v2, 2, 1")
    e("  v_lshl_or_b32 v40, v40, 1, v41")
    e("  v_bfe_u32 v41, v2, 3, 2")
    e("  v_and_b32 v42, 3, v2")
    e("  v_lshl_or_b32 v41, v41, 2, v42")
    e("  v_lshlrev_b32 v42, 10, v40")
    e("  v_lshl_add_u32 v42, v41, 4, v42")
    e("  s_lshl_b32 s24, s8, 4")
    e("  s_add_u32 s24, s24, s10")
    e("  s_lshl_b32 s24, s24, 12")
    e("  s_lshr_b32 s25, s11, 1")
    e("  s_lshl_b32 s25, s25, 8")
    e("  s_add_u32 s24, s24, s25")
    e("  s_and_b32 s25, s11, 1")
    e("  s_lshl_b32 s26, s25, 3")
    e("  s_add_u32 s24, s24, s26")
    e("  v_lshlrev_b32 v43, 11, v40")
    e("  v_lshl_add_u32 v43, v41, 4, v43")
    e("  s_lshl_b32 s26, s8, 13")
    e(f"  s_add_u32 s26, s26, {IDX_OFF}")
    e("  s_lshr_b32 s27, s10, 3")
    e("  s_lshl_b32 s27, s27, 10")
    e("  s_add_u32 s26, s26, s27")
    e("  s_lshr_b32 s27, s11, 1")
    e("  s_lshl_b32 s27, s27, 8")
    e("  s_add_u32 s26, s26, s27")
    e("  s_lshr_b32 s27, s10, 1")
    e("  s_and_b32 s27, s27, 3")
    e("  s_lshl_b32 s27, s27, 2")
    e("  s_add_u32 s26, s26, s27")
    e("  s_and_b32 s27, s10, 1")
    e("  s_lshl_b32 s27, s27, 1")
    e("  s_add_u32 s26, s26, s27")
    e("  s_add_u32 s26, s26, s25")
    e("  v_lshlrev_b32 v44, 16, v2")
    for i in range(8):
        e(f"  v_mov_b32 v{28+i}, 0")
    e(f"  s_waitcnt vmcnt({PTN})")
    for i in range(8):
        e(f"  v_lshl_or_b32 v{4+i}, v{12+i}, 16, v{4+i}")
    A, B, C, Dd, H1, L1, H2, L2, T, THR, M, I0, I1, M1, M2, P0 = 46, 47, 48, 49, 50, 51, 52, 53, 54, 55, 56, 57, 58, 59, 60, 62
    for g in range(4):
        lo, hi = 4 + 2 * g, 5 + 2 * g
        e(f"  v_and_b32 v{A}, 0x7fff, v{lo}")
        e(f"  v_bfe_u32 v{B}, v{lo}, 16, 15")
        e(f"  v_and_b32 v{C}, 0x7fff, v{hi}")
        e(f"  v_bfe_u32 v{Dd}, v{hi}, 16, 15")
        e(f"  v_max_u32 v{H1}, v{A}, v{B}")
        e(f"  v_min_u32 v{L1}, v{A}, v{B}")
        e(f"  v_max_u32 v{H2}, v{C}, v{Dd}")
        e(f"  v_min_u32 v{L2}, v{C}, v{Dd}")
        e(f"  v_min_u32 v{T}, v{H1}, v{H2}")
        e(f"  v_max3_u32 v{THR}, v{T}, v{L1}, v{L2}")
        e(f"  v_add_u32 v{THR}, -1, v{THR}")
        e(f"  v_sub_u32 v{A}, v{THR}, v{A}")
        e(f"  v_sub_u32 v{B}, v{THR}, v{B}")
        e(f"  v_sub_u32 v{C}, v{THR}, v{C}")
        e(f"  v_sub_u32 v{Dd}, v{THR}, v{Dd}")
        e(f"  v_lshrrev_b32 v{M}, 31, v{A}")
        e(f"  v_lshrrev_b32 v{B}, 30, v{B}")
        e(f"  v_and_or_b32 v{M}, v{B}, 2, v{M}")
        e(f"  v_lshrrev_b32 v{C}, 29, v{C}")
        e(f"  v_and_or_b32 v{M}, v{C}, 4, v{M}")
        e(f"  v_lshrrev_b32 v{Dd}, 28, v{Dd}")
        e(f"  v_and_or_b32 v{M}, v{Dd}, 8, v{M}")
        e(f"  v_ffbl_b32 v{I0}, v{M}")
        e(f"  v_add_u32 v{T}, -1, v{M}")
        e(f"  v_and_b32 v{M1}, v{M}, v{T}")
        e(f"  v_ffbl_b32 v{I1}, v{M1}")
        e(f"  v_add_u32 v{T}, -1, v{M1}")
        e(f"  v_and_b32 v{M2}, v{M1}, v{T}")
        e(f"  v_cmp_ne_u32 vcc, 0, v{M2}")
        e(f"  v_lshlrev_b32 v{T}, 4, v{I0}")
        e(f"  v_lshrrev_b64 v[{P0}:{P0+1}], v{T}, v[{lo}:{hi}]")
        e(f"  v_and_b32 v{A}, 0xffff, v{P0}")
        e(f"  v_lshlrev_b32 v{T}, 4, v{I1}")
        e(f"  v_lshrrev_b64 v[{P0}:{P0+1}], v{T}, v[{lo}:{hi}]")
        e(f"  v_lshl_or_b32 v{20+g}, v{P0}, 16, v{A}")
        e(f"  v_lshl_or_b32 v{24+g}, v{I1}, 2, v{I0}")
        e("  s_cmp_eq_u64 vcc, 0")
        e(f"  s_cbranch_scc1 Lp_nores{g}")
        mcur = M2
        for which in range(2):
            E = 28 + 2 * g + which
            e(f"  v_ffbl_b32 v{I0}, v{mcur}")
            e(f"  v_lshlrev_b32 v{T}, 4, v{I0}")
            e(f"  v_lshrrev_b64 v[{P0}:{P0+1}], v{T}, v[{lo}:{hi}]")
            e(f"  v_and_b32 v{A}, 0xffff, v{P0}")
            e(f"  v_and_b32 v{B}, 0x7fff, v{P0}")
            e(f"  v_min_u32 v{B}, v{B}, v{mcur}")
            e(f"  v_add_u32 v{C}, s12, v{I0}")
            e(f"  v_add_u32 v{C}, {4*g}, v{C}")
            e(f"  v_lshl_or_b32 v{C}, v{C}, 22, v44")
            e(f"  v_or_b32 v{C}, v{C}, v{A}")
            e(f"  v_cmp_ne_u32 vcc, 0, v{B}")
            if which == 0:
                e(f"  v_add_u32 v{T}, -1, v{M2}")
                e(f"  v_and_b32 v{M1}, v{M2}, v{T}")
            else:
                e("  s_nop 1")
            e(f"  v_cndmask_b32 v{E}, 0, v{C}, vcc")
            mcur = M1
        e(f"Lp_nores{g}:")
    for eh in range(2):
        e(f"  buffer_store_dwordx2 v[{20+2*eh}:{21+2*eh}], v42, s[20:23], s24 offen offset:{512*eh}")
        e(f"  v_lshl_or_b32 v{46+eh}, v{25+2*eh}, 4, v{24+2*eh}")
        e(f"  buffer_store_byte v{46+eh}, v43, s[20:23], s26 offen offset:{512*eh}")
    e("  s_mov_b32 s28, 0")
    for i in range(8):
        e(f"  v_cmp_ne_u32 s[{32+2*i}:{33+2*i}], 0, v{28+i}")
    e("  s_nop 3")
    for i in range(8):
        e(f"  s_bcnt1_i32_b64 s29, s[{32+2*i}:{33+2*i}]")
        e("  s_add_u32 s28, s28, s29")
    e("  v_mov_b32 v46, s28")
    e("  s_lshl_b32 s29, s3, 2")
    e("  v_mov_b32 v47, s29")
    e("  ds_write_b32 v47, v46")
    e("  v_mov_b32 v47, 0")
    e("  s_waitcnt lgkmcnt(0)")
    e("  s_barrier")
    e("  ds_read_b128 v[48:51], v47")
    e("  s_waitcnt lgkmcnt(0)")
    e("  s_mov_b32 s28, 0")
    e("  s_mov_b32 s30, 0")
    for i in range(4):
        e(f"  v_readfirstlane_b32 s29, v{48+i}")
        e("  s_add_u32 s30, s30, s29")
        e(f"  s_cmp_gt_u32 s3, {i}")
        e("  s_cselect_b32 s29, s29, 0")
        e("  s_add_u32 s28, s28, s29")
    e("  s_lshl_b32 s31, s2, 14")
    e(f"  s_add_u32 s31, s31, {LIST_OFF}")
    for i in range(8):
        lo, hi = 32 + 2 * i, 33 + 2 * i
        e(f"  s_cmp_eq_u64 s[{lo}:{hi}], 0")
        e(f"  s_cbranch_scc1 Lp_skip{i}")
        e(f"  v_mbcnt_lo_u32_b32 v46, s{lo}, 0")
        e(f"  v_mbcnt_hi_u32_b32 v46, s{hi}, v46")
        e("  v_add_u32 v46, s28, v46")
        e("  v_lshrrev_b32 v47, 1, v46")
        e("  v_lshlrev_b32 v47, 4, v47")
        e("  v_and_b32 v46, 1, v46")
        e("  v_lshl_add_u32 v48, v46, 2, v47")
        e("  v_lshl_add_u32 v49, v46, 1, v47")
        e(f"  v_lshrrev_b32 v50, 21, v{28+i}")
        e("  v_and_b32 v50, 0x7fe, v50")
        e(f"  v_bfe_u32 v51, v{28+i}, 16, 6")
        e(f"  s_mov_b64 exec, s[{lo}:{hi}]")
        e("  buffer_store_dword v50, v48, s[20:23], s31 offen")
        e(f"  buffer_store_short v{28+i}, v49, s[20:23], s31 offen offset:8")
        e("  buffer_store_short v51, v49, s[20:23], s31 offen offset:12")
        e("  s_mov_b64 exec, -1")
        e(f"  s_bcnt1_i32_b64 s29, s[{lo}:{hi}]")
        e("  s_add_u32 s28, s28, s29")
        e(f"Lp_skip{i}:")
    e("  s_cmp_lg_u32 s3, 0")
    e("  s_cbranch_scc1 Lp_end")
    e("  s_add_u32 s29, s30, 1")
    e("  s_lshr_b32 s29, s29, 1")
    e("  v_mov_b32 v51, s29")
    e("  v_mov_b32 v50, 0")
    e("  s_mov_b64 exec, 1")
    e("  s_bitcmp0_b32 s30, 0")
    e("  s_cbranch_scc1 Lp_nopad")
    e("  s_lshr_b32 s28, s30, 1")
    e("  s_lshl_b32 s28, s28, 4")
    e("  v_mov_b32 v48, s28")
    e("  buffer_store_dword v50, v48, s[20:23], s31 offen offset:4")
    e("  buffer_store_short v50, v48, s[20:23], s31 offen offset:10")
    e("  buffer_store_short v50, v48, s[20:23], s31 offen offset:14")
    e("Lp_nopad:")
    e("  s_lshl_b32 s29, s2, 2")
    e(f"  s_add_u32 s29, s29, {CNT_OFF}")
    e("  buffer_store_dword v51, v50, s[20:23], s29 offen")
    e("Lp_end:")
    e("  s_endpgm")


V_BF2 = 0
V_M, V_Q = 1, 2
V_DMA = 3
V_ST = 7
V_RB = 8
V_GX = 12
V_X0, V_X1, V_X2 = 13, 14, 15
V_IDX = 16
V_BIAS = 48
V_ACC = 64
V_B = 96
V_AP = 128
V_GB = 192
V_GT = 224
V_BP = 232
V_T = 236
V_SV = 244
V_AT = 228
V_LO16 = 232
V_LANE = 233
V_RIDX = 253
V_SVS = 244

S_X, S_OUT, S_WS, S_BIAS = 16, 20, 24, 28
S_W = 32
S_SLOT = 33
S_DGOFF = 36
S_OOFF = 37
S_CNT = 38
S_NG = 39
S_C0 = 80
S_PF, S_DD = 44, 45
S_LB = 51
S_T0, S_T1, S_T2 = 52, 53, 54
S_ROWB = 56
S_G = 57
S_DC = 59
S_M0R = 60
S_K1, S_KM1 = 64, 65
S_EV = 48
S_AOFF = 66
S_STAMP = 70


class I:
    def __init__(self, text, lds=None, vm=None, opt=False, wl=None, wv=None):
        self.text, self.lds, self.vm, self.opt, self.wl, self.wv = text, lds, vm, opt, wl, wv
        self.nl = None
        self.nv = None


def W(wl=None, wv=None):
    return I("WAIT", wl=wl, wv=wv)


def stamp(i):
    if DBG and i == 0:
        return [I("  s_memrealtime s[98:99]"), I(f"  s_memtime s[68:69]"), I("  s_waitcnt lgkmcnt(0)"), I(f"  s_mov_b32 s{S_STAMP+i}, s68")]
    if DBG:
        return [I("  s_memtime s[68:69]"), I("  s_waitcnt lgkmcnt(0)"), I(f"  s_mov_b32 s{S_STAMP+i}, s68")]
    return []


V_UT = 254
V_PK = 252
V_PV = 235


def unit_table(L, vu):
    L.append(I(f"  v_lshlrev_b32 v{V_UT}, 4, v{vu}"))
    L.append(I(f"  s_mov_b32 s{S_PF}, -1"))
    for t in range(1, 16):
        L.append(I(f"  s_add_u32 s{S_PF}, s{S_PF}, s{S_C0+t-1}"))
        L.append(I(f"  s_lshl_b32 s{S_DD}, s{S_C0+t-1}, 4"))
        L.append(I(f"  s_sub_u32 s{S_DD}, {CAPB}, s{S_DD}"))
        L.append(I(f"  v_sub_u32 v{V_X2}, s{S_PF}, v{vu}"))
        L.append(I(f"  v_ashrrev_i32 v{V_X2}, 31, v{V_X2}"))
        L.append(I(f"  v_and_b32 v{V_X2}, s{S_DD}, v{V_X2}"))
        L.append(I(f"  v_add_u32 v{V_UT}, v{V_UT}, v{V_X2}"))
    L.append(I(f"  s_add_u32 s{S_PF}, s{S_PF}, s{S_C0+15}"))
    L.append(I(f"  v_sub_u32 v{V_X2}, s{S_PF}, v{vu}"))
    L.append(I(f"  v_ashrrev_i32 v{V_X2}, 31, v{V_X2}"))
    L.append(I(f"  v_and_b32 v{V_X2}, {OOB}, v{V_X2}"))
    L.append(I(f"  v_or_b32 v{V_UT}, v{V_UT}, v{V_X2}"))


def afrag(L, fs, vvff, dst):
    cst = 32 * (fs >> 1) + 4 * (fs & 1)
    cst2 = cst | (cst << 16)
    for dd in range(4):
        vv, ff = vvff + 2 * dd, vvff + 2 * dd + 1
        d = dst + dd
        if cst2:
            L.append(I(f"  v_xor_b32 v{d}, {cst2}, v{ff}"))
            L.append(I(f"  v_pk_min_u16 v{d}, v{d}, s{S_K1}"))
        else:
            L.append(I(f"  v_pk_min_u16 v{d}, v{ff}, s{S_K1}"))
        L.append(I(f"  v_pk_add_u16 v{d}, v{d}, s{S_KM1}"))
        L.append(I(f"  v_and_b32 v{d}, v{d}, v{vv}"))


def dma_part(part, slot, rel):
    i, hh = part >> 1, part & 1
    L = []
    if hh == 0:
        L.append(I(f"  s_add_u32 m0, s{S_M0R+i}, {slot*2048}"))
        L.append(I("  s_nop 0"))
    L.append(I(f"  buffer_load_dwordx4 v{V_DMA+i}, s[{S_X}:{S_X+3}], s{S_DGOFF} offen offset:{hh*1024}{DMAF} lds",
               vm=("D", rel)))
    return L


def dma_advance():
    return [I(f"  s_add_u32 s{S_DC}, s{S_DC}, 1"),
            I(f"  s_add_u32 s{S_DGOFF}, s{S_DGOFF}, 32768"),
            I(f"  s_cmp_ge_u32 s{S_DC}, {NCHUNK}"),
            I(f"  s_cselect_b32 s{S_DGOFF}, {OOB}, s{S_DGOFF}")]


def rd(ks, slot, rel):
    p = ks & 1
    b = V_B + 8 * (ks & 3)
    off = slot * 2048 + (ks >> 1) * 256
    return [I(f"  ds_read_b128 v[{b}:{b+3}], v{V_RB+2*p} offset:{off}", lds=("R", ks, rel)),
            I(f"  ds_read_b128 v[{b+4}:{b+7}], v{V_RB+2*p+1} offset:{off}", lds=("R", ks, rel))]


def gtb(g):
    return V_GT if g & 1 == 0 else V_SV


def gather(g, slot, rel, opt=False):
    return [I(f"  ds_read_u16 v{gtb(g)+jj}, v{V_GB+8*g+jj} offset:{slot*2048}", lds=("G", g, rel), opt=opt)
            for jj in range(8)]


def res_comb(g):
    return [I(f"  v_lshl_or_b32 v{gtb(g)+2*d}, v{gtb(g)+2*d+1}, 16, v{gtb(g)+2*d}") for d in range(4)]


def res_mfma(g, acc):
    return [I(f"  v_smfmac_f32_16x16x64_bf16 v[{acc+4*fs}:{acc+4*fs+3}], v[{V_AP+16*g+4*fs}:{V_AP+16*g+4*fs+3}], "
              f"v[{gtb(g)}:{gtb(g)+7}], v{V_RIDX}") for fs in range(4)]


def touch(c):
    if c >= 16:
        return []
    return [I(f"  s_add_u32 s47, s46, {c*32768}"),
            I(f"  buffer_load_dword v232, v235, s[{S_X}:{S_X+3}], s47 offen{TCF}", vm=("T", 0))]


def acc_init(acc):
    return [I(f"  v_mov_b32 v{acc+j}, v{V_BIAS+j}") for j in range(16)]


V_SW = 232


def epilogue(acc):
    L = []
    for j in range(2):
        for d in range(4):
            fs = 2 * j + (d >> 1)
            r = 2 * (d & 1)
            L.append(I(f"  v_cvt_pk_bf16_f32 v{V_T+4*j+d}, v{acc+4*fs+r}, v{acc+4*fs+r+1}"))
    L.append(I(f"  s_mov_b64 vcc, s[{S_EV}:{S_EV+1}]"))
    for d in range(4):
        L.append(I(f"  v_cndmask_b32_dpp v{V_SW+d}, v{V_T+4+d}, v{V_T+d}, vcc quad_perm:[1,0,3,2] row_mask:0xf bank_mask:0xf"))
    L.append(I(f"  buffer_store_dwordx4 v[{V_SW}:{V_SW+3}], v{V_ST}, s[{S_OUT}:{S_OUT+3}], s{S_OOFF} offen{STF}", vm=("S", 0)))
    L.append(I(f"  s_not_b64 vcc, s[{S_EV}:{S_EV+1}]"))
    L.append(I("  s_nop 0"))
    for d in range(4):
        L.append(I(f"  v_cndmask_b32_dpp v{V_SW+d}, v{V_T+d}, v{V_T+4+d}, vcc quad_perm:[1,0,3,2] row_mask:0xf bank_mask:0xf"))
    L.append(I(f"  buffer_store_dwordx4 v[{V_SW}:{V_SW+3}], v{V_ST}, s[{S_OUT}:{S_OUT+3}], s{S_OOFF} offen offset:2048{STF}", vm=("S", 0)))
    L.append(I(f"  s_add_u32 s{S_OOFF}, s{S_OOFF}, 32768"))
    return L


def a_load(ks):
    L = []
    for fs in range(4):
        a = (ks * 4 + fs) * 4
        L.append(I(f"  buffer_load_dwordx4 a[{a}:{a+3}], v{V_LO16A}, s[{S_WS}:{S_WS+3}], s{S_AOFF} offen offset:{fs*1024}{ALF}",
                   vm=("A", ks)))
    L.append(I(f"  s_add_u32 s{S_AOFF}, s{S_AOFF}, 4096"))
    return L


V_LO16A = 255
A_PRE = int(os.environ.get("A_PRE","6"))


def body(name, slot, buf, prev_epi, own_epi, first=False):
    X = V_ACC + 16 * buf
    Y = V_ACC + 16 * (1 - buf)
    nslot = (slot + 1) % NSLOT
    L = []
    for ks in range(16):
        pre, fill, post, early = [], [], [], []
        if ks == 13:
            pre = [W(wv=("D", 1)), I("  s_barrier")] if not int(os.environ.get("NOWAIT", "0")) else [I("  s_barrier")]
        if ks + 3 < 16:
            fill += rd(ks + 3, slot, 0)
        else:
            fill += rd(ks + 3 - 16, nslot, 1)
        if prev_epi:
            ep = epilogue(Y)
            ini = acc_init(Y)
            if ks == 4:
                fill += ep[:8]
            if ks == 5:
                fill += ep[8:14]
            if ks == 8:
                fill += ep[14:]
            if ks in (11, 14):
                fill += ini[:8] if ks == 11 else ini[8:]
        if not first:
            part = (ks - 13) % 16
            if part < 8 and not NODMA:
                if ks >= 13:
                    fill += dma_part(part, (slot + 4) % NSLOT, 4)
                else:
                    fill += dma_part(part, (slot + 3) % NSLOT, 3)
                if part == 7:
                    fill += dma_advance()
        else:
            if ks + A_PRE < 16:
                fill += a_load(ks + A_PRE)
            if TCH and ks == 6:
                fill += touch(TCH + 8)
            if 4 <= ks < 12:
                c = 2 + (ks - 4) // 4
                for part in (2 * ((ks - 4) % 4), 2 * ((ks - 4) % 4) + 1):
                    fill += dma_part(part, c, c)
                    if part == 7:
                        fill += dma_advance()
            if ks >= 13:
                fill += dma_part(ks - 13, 4, 4)
        if not NORES:
            n, ph = divmod(ks, 3)
            if n < 4 and ph < 2:
                fill += gather(n, slot, 0)[4 * ph:4 * ph + 4]
            if ks >= 3 and ph == 0 and n - 1 < 4:
                early = [W(wl=("G", n - 1, 0))] + res_comb(n - 1)
                post += res_mfma(n - 1, X)
            if ks == 12:
                post += [I(f"  s_cmp_gt_u32 s{S_NG}, 4"), I(f"  s_cbranch_scc1 Lslow_{name}"), I(f"Lslowback_{name}:")]
        L += pre
        L.append(W(wl=("R", ks, 0), wv=("A", ks) if first else None))
        mf = []
        for fs in range(4):
            a = (ks * 4 + fs) * 4
            b = V_B + 8 * (ks & 3)
            mf.append(I(f"  v_smfmac_f32_16x16x64_bf16 v[{X+4*fs}:{X+4*fs+3}], a[{a}:{a+3}], v[{b}:{b+7}], "
                        f"v{V_IDX+fs*8+(ks>>1)}" + (" abid:1" if ks & 1 else "")))
        fill = early + fill
        n_ = len(fill)
        per = [(n_ + 3 - i) // 4 for i in range(4)]
        pos = 0
        for i in range(4):
            L.append(mf[i])
            L += fill[pos:pos + per[i]]
            pos += per[i]
        L += post
    if own_epi:
        ep = epilogue(X)
        L += [I("  s_nop 7")] + ep[:8] + [I("  s_nop 1")] + ep[8:] + acc_init(X) + [I("  s_nop 1")]
    return L


def slow_path(name, slot, buf, first=False):
    X = V_ACC + 16 * buf
    L = []
    L.append(I(f"Lslow_{name}:"))
    L.append(I(f"  s_mov_b32 s{S_G}, {NRES}"))
    L.append(I(f"Lslowloop_{name}:"))
    L.append(I(f"  v_mbcnt_lo_u32_b32 v{V_X0}, -1, 0"))
    L.append(I(f"  v_mbcnt_hi_u32_b32 v{V_X0}, -1, v{V_X0}"))
    L.append(I(f"  s_lshl_b32 s{S_T0}, s{S_G}, 4"))
    L.append(I(f"  v_add_u32 v{V_X0}, s{S_T0}, v{V_X0}"))
    unit_table(L, V_X0)
    for i in range(4):
        L.append(I(f"  ds_bpermute_b32 v{V_GT+i}, v{V_PK}, v{V_UT} offset:{4*i}"))
    L.append(I("  s_waitcnt lgkmcnt(0)"))
    for i in range(4):
        L.append(I(f"  buffer_load_dwordx2 v[{V_T+2*i}:{V_T+2*i+1}], v{V_GT+i}, s[{S_WS}:{S_WS+3}], s{S_LB} offen"))
        L.append(I(f"  buffer_load_dwordx2 v[{V_SVS+2*i}:{V_SVS+2*i+1}], v{V_GT+i}, s[{S_WS}:{S_WS+3}], s{S_LB} offen offset:8"))
    L.append(I("  s_waitcnt vmcnt(0)"))
    for jj in range(8):
        L.append(I(f"  v_xor_b32 v{V_T+jj}, v{V_T+jj}, v{V_GX}"))
    for jj in range(8):
        L.append(I(f"  ds_read_u16 v{V_GT+jj}, v{V_T+jj} offset:{slot*2048}"))
    for i in range(4):
        L.append(I(f"  v_xor_b32 v{V_SVS+2*i+1}, v{V_SVS+2*i+1}, v{V_BF2}"))
    L.append(I("  s_waitcnt lgkmcnt(0)"))
    for d in range(4):
        L.append(I(f"  v_lshl_or_b32 v{V_BP+d}, v{V_GT+2*d+1}, 16, v{V_GT+2*d}"))
    for fs in range(4):
        afrag(L, fs, V_SVS, V_AT)
        L.append(I("  s_nop 1"))
        L.append(I(f"  v_mfma_f32_16x16x32_bf16 v[{X+4*fs}:{X+4*fs+3}], v[{V_AT}:{V_AT+3}], v[{V_BP}:{V_BP+3}], v[{X+4*fs}:{X+4*fs+3}]"))
        L.append(I("  s_nop 7"))
    L.append(I(f"  s_add_u32 s{S_G}, s{S_G}, 1"))
    L.append(I(f"  s_cmp_lt_u32 s{S_G}, s{S_NG}"))
    L.append(I(f"  s_cbranch_scc1 Lslowloop_{name}"))
    L.append(I(f"  s_branch Lslowback_{name}"))
    return L


def resolve(seq):
    lds, vm = [], []
    for blk, c in seq:
        for ins in blk:
            if ins.lds is not None:
                t = ins.lds
                lds.append(((t[0], t[1], c + t[2]), ins.opt))
            if ins.vm is not None:
                t = ins.vm
                vm.append(((t[0], t[1] + (c if t[0] in ("D",) else 0)), ins.opt))
            if ins.text == "WAIT":
                if ins.wl is not None:
                    key = (ins.wl[0], ins.wl[1], c + ins.wl[2])
                    n, found = 0, False
                    for tag, opt in reversed(lds):
                        if tag == key:
                            found = True
                            break
                        if not opt:
                            n += 1
                    assert found, (key, c)
                    n = min(n, 15)
                    ins.nl = n if ins.nl is None else min(ins.nl, n)
                if ins.wv is not None:
                    key = (ins.wv[0], ins.wv[1] + (c if ins.wv[0] in ("D",) else 0))
                    n, found = 0, False
                    for tag, opt in reversed(vm):
                        if tag == key:
                            found = True
                            break
                        if not opt:
                            n += 1
                    assert found or NODMA, (key, c)
                    n = min(n, 63)
                    ins.nv = n if ins.nv is None else min(ins.nv, n)


def emit(blk):
    for ins in blk:
        if ins.text == "WAIT":
            parts = []
            if ins.nv is not None:
                parts.append(f"vmcnt({ins.nv})")
            if ins.nl is not None:
                parts.append(f"lgkmcnt({ins.nl})")
            e("  s_waitcnt " + " ".join(parts))
        else:
            e(ins.text)


def gen_main():
    e(f".globl {KNAME}")
    e(".p2align 8")
    e(f".type {KNAME},@function")
    e(f"{KNAME}:")
    P = []

    def p(t, **kw):
        P.append(I(t, **kw))

    p("  s_cmp_ge_u32 s2, 256")
    p("  s_cbranch_scc1 Lm_end")
    P.extend(stamp(0))
    p("  s_load_dwordx4 s[4:7], s[0:1], 0")
    p("  s_load_dwordx4 s[8:11], s[0:1], 16")
    p("  s_load_dwordx2 s[14:15], s[0:1], 40")
    p("  v_lshrrev_b32 v3, 6, v0")
    p(f"  v_and_b32 v{V_LANE}, 63, v0")
    p(f"  v_readfirstlane_b32 s{S_W}, v3")
    p(f"  v_and_b32 v{V_M}, 15, v{V_LANE}")
    p(f"  v_lshrrev_b32 v{V_Q}, 4, v{V_LANE}")
    p(f"  v_lshlrev_b32 v{V_LO16A}, 4, v{V_LANE}")
    p(f"  s_and_b32 s{S_T0}, s2, 7")
    p(f"  s_lshr_b32 s{S_T1}, s2, 3")
    p(f"  s_and_b32 s{S_T2}, s{S_T1}, 3")
    p(f"  s_lshr_b32 s{S_T1}, s{S_T1}, 2")
    if int(os.environ.get("RBM", "0")):
        p(f"  s_lshl_b32 s{S_T0}, s{S_T0}, 3")
    else:
        p(f"  s_lshl_b32 s{S_T1}, s{S_T1}, 3")
    p(f"  s_add_u32 s{S_T1}, s{S_T1}, s{S_T0}")
    p(f"  s_lshl_b32 s{S_ROWB}, s{S_T1}, 19")
    p(f"  s_lshl_b32 s{S_SLOT}, s{S_T2}, 2")
    p(f"  s_add_u32 s{S_SLOT}, s{S_SLOT}, s{S_W}")
    p(f"  s_mul_i32 s{S_M0R}, s{S_W}, {4*ROWB}")
    for i in range(1, 4):
        p(f"  s_add_u32 s{S_M0R+i}, s{S_M0R}, {i*ROWB}")
    p(f"  s_mov_b32 s{S_K1}, 0x00010001")
    p(f"  s_mov_b32 s{S_KM1}, -1")
    for i in range(4):
        p(f"  s_lshl_b32 s{S_T0}, s{S_W}, 2")
        p(f"  s_add_u32 s{S_T0}, s{S_T0}, {i}")
        p(f"  v_xor_b32 v{V_X0}, s{S_T0}, v{V_LANE}")
        p(f"  v_and_b32 v{V_X0}, 15, v{V_X0}")
        p(f"  v_and_or_b32 v{V_X0}, v{V_LANE}, 48, v{V_X0}")
        p(f"  v_lshlrev_b32 v{V_X0}, 4, v{V_X0}")
        p(f"  s_lshl_b32 s{S_T1}, s{S_T0}, 11")
        p(f"  v_add_u32 v{V_DMA+i}, s{S_T1}, v{V_X0}")
    p("  s_waitcnt lgkmcnt(0)")
    for (srd, lo, size) in ((S_X, 4, 1 << 25), (S_OUT, 10, 1 << 25), (S_WS, 14, WS_USED), (S_BIAS, 8, 2048)):
        p(f"  s_mov_b32 s{srd}, s{lo}")
        p(f"  s_mov_b32 s{srd+1}, s{lo+1}")
        p(f"  s_mov_b32 s{srd+2}, {size}")
        p(f"  s_mov_b32 s{srd+3}, 0x00020000")
    p(f"  s_lshl_b32 s{S_T0}, s{S_SLOT}, 6")
    p(f"  s_add_u32 s{S_T0}, s{S_T0}, {CNT_OFF}")
    p(f"  s_load_dwordx16 s[{S_C0}:{S_C0+15}], s[14:15], s{S_T0}")
    p(f"  s_mov_b32 s{S_DGOFF}, s{S_ROWB}")
    p(f"  s_mov_b32 s{S_DC}, 0")
    for part in range(8):
        P.extend(dma_part(part, 0, 0))
    P.extend(dma_advance())
    if TCH:
        p(f"  v_lshrrev_b32 v{V_X0}, 4, v{V_LANE}")
        p(f"  v_lshlrev_b32 v{V_X0}, 11, v{V_X0}")
        p(f"  v_lshl_or_b32 v{V_X0}, v{V_M}, 7, v{V_X0}")
        p(f"  s_lshr_b32 s{S_T0}, s{S_SLOT}, 2")
        p(f"  s_lshl_b32 s{S_T0}, s{S_T0}, 13")
        p(f"  s_add_u32 s{S_T0}, s{S_T0}, s{S_ROWB}")
        p(f"  s_lshl_b32 s{S_T1}, s{S_W}, 15")
        p(f"  s_add_u32 s{S_T0}, s{S_T0}, s{S_T1}")
        p(f"  v_mov_b32 v235, v{V_X0}")
        p(f"  s_mov_b32 s46, s{S_T0}")
        P.extend(touch(TCH))
    p(f"  s_lshl_b32 s{S_T0}, s{S_SLOT}, 13")
    p(f"  s_add_u32 s{S_T0}, s{S_T0}, {IDX_OFF}")
    for j in range(8):
        if j == 4:
            p(f"  s_add_u32 s{S_T0}, s{S_T0}, 4096")
        p(f"  buffer_load_dwordx4 v[{V_IDX+4*j}:{V_IDX+4*j+3}], v{V_LO16A}, s[{S_WS}:{S_WS+3}], s{S_T0} offen offset:{(j&3)*1024}{ALF}",
          vm=("I", 0))
    p(f"  v_lshlrev_b32 v{V_X0}, 4, v{V_Q}")
    p(f"  s_lshl_b32 s{S_T0}, s{S_SLOT}, 7")
    for j in range(2):
        p(f"  buffer_load_dwordx4 v[{V_GT+4*j}:{V_GT+4*j+3}], v{V_X0}, s[{S_BIAS}:{S_BIAS+3}], s{S_T0} offen offset:{64*j}",
          vm=("B", 0))
    p(f"  s_lshl_b32 s{S_AOFF}, s{S_SLOT}, 16")
    for ks in range(3):
        P.extend(a_load(ks))
    p(f"  v_and_b32 v{V_ST}, 14, v{V_M}")
    p(f"  v_lshlrev_b32 v{V_ST}, 11, v{V_ST}")
    p(f"  v_lshl_add_u32 v{V_ST}, v{V_Q}, 4, v{V_ST}")
    p(f"  v_and_b32 v{V_X0}, 1, v{V_M}")
    p(f"  v_lshl_add_u32 v{V_ST}, v{V_X0}, 6, v{V_ST}")
    p(f"  s_mov_b32 s{S_EV}, 0x55555555")
    p(f"  s_mov_b32 s{S_EV+1}, 0x55555555")
    p(f"  s_movk_i32 s{S_T0}, {ROWB}")
    p(f"  v_mul_lo_u32 v{V_X1}, v{V_M}, s{S_T0}")
    for pp in range(2):
        for h in range(2):
            p(f"  v_lshlrev_b32 v{V_X0}, 1, v{V_Q}")
            p(f"  v_add_u32 v{V_X0}, {pp*8+h}, v{V_X0}")
            p(f"  v_xor_b32 v{V_X0}, v{V_X0}, v{V_M}")
            p(f"  v_lshl_add_u32 v{V_RB+2*pp+h}, v{V_X0}, 4, v{V_X1}")
    p(f"  v_lshl_or_b32 v{V_GX}, v{V_M}, 4, v{V_X1}")
    p(f"  v_mov_b32 v{V_RIDX}, 0x44444444")
    p(f"  v_lshlrev_b32 v{V_PK}, 4, v{V_Q}")
    p(f"  v_and_b32 v{V_PV}, 1, v{V_Q}")
    p(f"  v_lshlrev_b32 v{V_PV}, 5, v{V_PV}")
    p(f"  v_lshrrev_b32 v{V_X0}, 1, v{V_Q}")
    p(f"  v_lshl_or_b32 v{V_PV}, v{V_X0}, 3, v{V_PV}")
    p(f"  v_lshrrev_b32 v{V_X0}, 2, v{V_M}")
    p(f"  v_and_b32 v{V_BF2}, 3, v{V_M}")
    p(f"  v_lshl_or_b32 v{V_BF2}, v{V_X0}, 3, v{V_BF2}")
    p(f"  v_lshl_or_b32 v{V_BF2}, v{V_BF2}, 16, v{V_BF2}")
    p("  s_waitcnt lgkmcnt(0)")
    unit_table(P, V_LANE)
    p(f"  s_add_u32 s{S_NG}, s{S_PF}, 16")
    p(f"  s_lshr_b32 s{S_NG}, s{S_NG}, 4")
    p(f"  s_lshl_b32 s{S_LB}, s{S_SLOT}, 18")
    p(f"  s_add_u32 s{S_LB}, s{S_LB}, {LIST_OFF}")
    for g in range(NRES):
        for i in range(4):
            p(f"  ds_bpermute_b32 v{V_AP+8*g+i}, v{V_PK}, v{V_UT} offset:{64*g+4*i}")
            if True:
                p(f"  ds_bpermute_b32 v{V_AP+8*g+4+i}, v{V_PV}, v{V_UT} offset:{64*g+16*(i>>1)+4*(i&1)}")
    p("  s_waitcnt lgkmcnt(0)")
    for g in range(NRES):
        for i in range(4):
            p(f"  buffer_load_dwordx2 v[{V_GB+8*g+2*i}:{V_GB+8*g+2*i+1}], v{V_AP+8*g+i}, s[{S_WS}:{S_WS+3}], s{S_LB} offen",
              vm=("U", g))
            av = V_AP + 8 * g + 4 + i
            p(f"  buffer_load_dwordx2 v[{V_B+8*g+2*i}:{V_B+8*g+2*i+1}], v{av}, s[{S_WS}:{S_WS+3}], s{S_LB} offen offset:8",
              vm=("U", g))
    for ks in range(3, A_PRE):
        P.extend(a_load(ks))
    for part in range(8):
        P.extend(dma_part(part, 1, 1))
    P.extend(dma_advance())
    if TCH:
        P.extend(touch(TCH + 4))
    P.extend(stamp(1))
    P.append(W(wv=("B", 0)))
    for j in range(2):
        for d in range(4):
            fs = 2 * j + (d >> 1)
            r = 2 * (d & 1)
            p(f"  v_lshlrev_b32 v{V_BIAS+4*fs+r}, 16, v{V_GT+4*j+d}")
            p(f"  v_and_b32 v{V_BIAS+4*fs+r+1}, 0xffff0000, v{V_GT+4*j+d}")
    for g in range(NRES):
        P.append(W(wv=("U", g)))
        for jj in range(8):
            p(f"  v_xor_b32 v{V_GB+8*g+jj}, v{V_GB+8*g+jj}, v{V_GX}")
        for i in range(4):
            r = V_B + 8 * g + 2 * i + 1
            p(f"  v_xor_b32 v{r}, v{r}, v{V_BF2}")
        for fs in range(4):
            afrag(P, fs, V_B + 8 * g, V_AP + 16 * g + 4 * fs)
    P.extend(acc_init(V_ACC))
    P.extend(acc_init(V_ACC + 16))
    P.extend(stamp(2))
    P.append(W(wv=("D", 0)))
    p("  s_barrier")
    p(f"  s_lshl_b32 s{S_OOFF}, s{S_SLOT}, 7")
    p(f"  s_add_u32 s{S_OOFF}, s{S_OOFF}, s{S_ROWB}")
    p(f"  s_mov_b32 s{S_CNT}, 0")
    P.extend(rd(0, 0, 0))
    P.extend(rd(1, 0, 0))
    P.extend(rd(2, 0, 0))
    P.extend(stamp(3))

    F = body("f", 0, 0, False, True, first=True)
    F.extend(stamp(4))
    slots = [1, 2, 3, 4, 0]
    bufs = [1, 0, 1, 0, 1]
    LB = []
    for i, (sl, bf) in enumerate(zip(slots, bufs)):
        LB.append(body(f"b{i}", sl, bf, i > 0, i == 4))
    seq = [(P, 0), (F, 0)]
    c = 1
    for it in range(3):
        for blk in LB:
            seq.append((blk, c))
            c += 1
    resolve(seq)
    emit(P)
    emit(F)
    e("Lloop:")
    for blk in LB:
        emit(blk)
    e(f"  s_add_u32 s{S_CNT}, s{S_CNT}, 1")
    e(f"  s_cmp_lt_u32 s{S_CNT}, 3")
    e("  s_cbranch_scc1 Lloop")
    if DBG:
        emit(stamp(5))
        e("  s_waitcnt vmcnt(0)")
        emit(stamp(6))
        e("  s_memrealtime s[100:101]")
        e("  s_load_dwordx2 s[12:13], s[0:1], 32")
        e("  s_waitcnt lgkmcnt(0)")
        e("  s_mov_b32 s84, s12")
        e("  s_mov_b32 s85, s13")
        e("  s_mov_b32 s86, 256")
        e("  s_mov_b32 s87, 0x00020000")
        e("  s_and_b32 s88, s2, 63")
        e("  s_cmp_lg_u32 s88, 0")
        e("  s_cbranch_scc1 Lm_end")
        e(f"  s_cmp_lg_u32 s{S_W}, 0")
        e("  s_cbranch_scc1 Lm_end")
        e("  s_lshr_b32 s88, s2, 6")
        e("  s_lshl_b32 s88, s88, 5")
        e("  v_mov_b32 v1, 0")
        e("  s_mov_b64 exec, 1")
        for i in range(7):
            if i:
                e(f"  s_sub_u32 s68, s{S_STAMP+i}, s{S_STAMP}")
            else:
                e(f"  s_mov_b32 s68, s{S_STAMP}")
            e("  v_mov_b32 v2, s68")
            e(f"  buffer_store_dword v2, v1, s[84:87], s88 offen offset:{4*i}")
        e("  s_sub_u32 s100, s100, s98")
        e("  v_mov_b32 v2, s100")
        e("  buffer_store_dword v2, v1, s[84:87], s88 offen offset:28")
    e("Lm_end:")
    e("  s_endpgm")
    if not NORES:
        emit(slow_path("f", 0, 0, first=True))
        for i, (sl, bf) in enumerate(zip(slots, bufs)):
            emit(slow_path(f"b{i}", sl, bf))


def main():
    e("; Kernarg layout: 0 x, 8 w, 16 b, 24 out, 32 debug, 40 ws")
    e("; @launch kernel=prep_kernel grid=(256,1,1) block=(256,1,1) lds=256")
    e(f"; @launch kernel={KNAME} grid=(256,1,1) block=(256,1,1) lds={16*ROWB}")
    e('.amdgcn_target "amdgcn-amd-amdhsa--gfx950"')
    e(".text")
    gen_prep()
    gen_main()
    e('.section .rodata,"a"')
    e(".p2align 6")
    e(".amdhsa_kernel prep_kernel")
    e("  .amdhsa_next_free_vgpr 64")
    e("  .amdhsa_next_free_sgpr 64")
    e("  .amdhsa_accum_offset 64")
    e("  .amdhsa_group_segment_fixed_size 0")
    e("  .amdhsa_kernarg_size 48")
    e("  .amdhsa_user_sgpr_count 2")
    e("  .amdhsa_user_sgpr_kernarg_segment_ptr 1")
    e("  .amdhsa_system_sgpr_workgroup_id_x 1")
    e(".end_amdhsa_kernel")
    e(".p2align 6")
    e(f".amdhsa_kernel {KNAME}")
    e("  .amdhsa_next_free_vgpr 512")
    e("  .amdhsa_next_free_sgpr 102")
    e("  .amdhsa_accum_offset 256")
    e("  .amdhsa_group_segment_fixed_size 0")
    e("  .amdhsa_kernarg_size 48")
    e("  .amdhsa_user_sgpr_count 2")
    e("  .amdhsa_user_sgpr_kernarg_segment_ptr 1")
    e("  .amdhsa_system_sgpr_workgroup_id_x 1")
    e(".end_amdhsa_kernel")
    path = sys.argv[1] if len(sys.argv) > 1 else "standalone__structured_sparse_n_m__ragged.s"
    open(path, "w").write("\n".join(out) + "\n")


if __name__ == "__main__":
    main()
```

```python
import sys, os

DBG = int(os.environ.get("DBG", "0"))
NODMA = int(os.environ.get("NODMA", "0"))
NORES = int(os.environ.get("NORES", "0"))
NOST = int(os.environ.get("NOST", "0"))
DMAF = os.environ.get("DMAF", " nt")
WLF = os.environ.get("WLF", " nt")
ALF = os.environ.get("ALF", "")
STF = os.environ.get("STF", " nt")
TCH = int(os.environ.get("TCH", "0"))
TCF = os.environ.get("TCF", "")
TD = int(os.environ.get("TD", "0"))
PT0 = int(os.environ.get("PT0", "0"))
PTN = int(os.environ.get("PTN", "0"))

KNAME = "standalone__structured_sparse_n_m__ragged_kernel"

A_OFF = 0
IDX_OFF = 1 << 20
CNT_OFF = (1 << 20) + (128 << 10)
LIST_OFF = 2 << 20
CAPB = 16384
WS_USED = 8 << 20

NSLOT = 5
ROWB = NSLOT * 2048
NCHUNK = 16
OOB = 0x40000000
NRES = 4

out = []


def e(s=""):
    out.append(s)


def gen_prep():
    e(".globl prep_kernel")
    e(".p2align 8")
    e(".type prep_kernel,@function")
    e("prep_kernel:")
    e("  s_cmp_ge_u32 s2, 256")
    e("  s_cbranch_scc1 Lp_end")
    e("  s_load_dwordx2 s[4:5], s[0:1], 8")
    e("  s_load_dwordx2 s[6:7], s[0:1], 40")
    e("  v_lshrrev_b32 v1, 6, v0")
    e("  v_and_b32 v2, 63, v0")
    e("  v_readfirstlane_b32 s3, v1")
    e("  s_lshr_b32 s8, s2, 4")
    e("  s_and_b32 s10, s2, 15")
    e("  s_mov_b32 s11, s3")
    e("  s_lshl_b32 s12, s10, 6")
    e("  s_lshl_b32 s13, s11, 4")
    e("  s_add_u32 s12, s12, s13")
    e("  s_lshl_b32 s13, s12, 11")
    e("  s_lshl_b32 s14, s8, 7")
    e("  s_add_u32 s13, s13, s14")
    e("  v_lshlrev_b32 v3, 1, v2")
    e("  s_waitcnt lgkmcnt(0)")
    e("  s_mov_b32 s16, s4")
    e("  s_mov_b32 s17, s5")
    e("  s_mov_b32 s18, 0x200000")
    e("  s_mov_b32 s19, 0x00020000")
    e("  s_mov_b32 s20, s6")
    e("  s_mov_b32 s21, s7")
    e(f"  s_mov_b32 s22, {WS_USED}")
    e("  s_mov_b32 s23, 0x00020000")
    for i in range(8):
        e(f"  buffer_load_ushort v{4+i}, v3, s[16:19], s13 offen{WLF}")
        e(f"  buffer_load_ushort v{12+i}, v3, s[16:19], s13 offen offset:2048{WLF}")
        if i < 7:
            e("  s_add_u32 s13, s13, 4096")
    if PTN:
        e("  s_load_dwordx2 s[48:49], s[0:1], 0")
        e("  s_and_b32 s52, s2, 7")
        e("  s_lshr_b32 s53, s2, 3")
        e("  s_and_b32 s54, s53, 3")
        e("  s_lshr_b32 s53, s53, 2")
        e("  s_lshl_b32 s53, s53, 3")
        e("  s_add_u32 s53, s53, s52")
        e("  s_lshl_b32 s53, s53, 19")
        e("  s_lshl_b32 s54, s54, 13")
        e("  s_add_u32 s53, s53, s54")
        e("  s_lshl_b32 s54, s3, 15")
        e("  s_add_u32 s53, s53, s54")
        e("  v_lshrrev_b32 v38, 4, v2")
        e("  v_lshlrev_b32 v38, 11, v38")
        e("  v_and_b32 v39, 15, v2")
        e("  v_lshl_or_b32 v38, v39, 7, v38")
        e("  s_waitcnt lgkmcnt(0)")
        e("  s_mov_b32 s50, 0x2000000")
        e("  s_mov_b32 s51, 0x00020000")
        for r in range(PTN):
            e(f"  s_add_u32 s54, s53, {(PT0+4*r)*32768}")
            e(f"  buffer_load_dword v39, v38, s[48:51], s54 offen{TCF}")
    e("  v_lshrrev_b32 v40, 5, v2")
    e("  v_bfe_u32 v41, v2, 2, 1")
    e("  v_lshl_or_b32 v40, v40, 1, v41")
    e("  v_bfe_u32 v41, v2, 3, 2")
    e("  v_and_b32 v42, 3, v2")
    e("  v_lshl_or_b32 v41, v41, 2, v42")
    e("  v_lshlrev_b32 v42, 10, v40")
    e("  v_lshl_add_u32 v42, v41, 4, v42")
    e("  s_lshl_b32 s24, s8, 4")
    e("  s_add_u32 s24, s24, s10")
    e("  s_lshl_b32 s24, s24, 12")
    e("  s_lshr_b32 s25, s11, 1")
    e("  s_lshl_b32 s25, s25, 8")
    e("  s_add_u32 s24, s24, s25")
    e("  s_and_b32 s25, s11, 1")
    e("  s_lshl_b32 s26, s25, 3")
    e("  s_add_u32 s24, s24, s26")
    e("  v_lshlrev_b32 v43, 11, v40")
    e("  v_lshl_add_u32 v43, v41, 4, v43")
    e("  s_lshl_b32 s26, s8, 13")
    e(f"  s_add_u32 s26, s26, {IDX_OFF}")
    e("  s_lshr_b32 s27, s10, 3")
    e("  s_lshl_b32 s27, s27, 10")
    e("  s_add_u32 s26, s26, s27")
    e("  s_lshr_b32 s27, s11, 1")
    e("  s_lshl_b32 s27, s27, 8")
    e("  s_add_u32 s26, s26, s27")
    e("  s_lshr_b32 s27, s10, 1")
    e("  s_and_b32 s27, s27, 3")
    e("  s_lshl_b32 s27, s27, 2")
    e("  s_add_u32 s26, s26, s27")
    e("  s_and_b32 s27, s10, 1")
    e("  s_lshl_b32 s27, s27, 1")
    e("  s_add_u32 s26, s26, s27")
    e("  s_add_u32 s26, s26, s25")
    e("  v_lshlrev_b32 v44, 16, v2")
    for i in range(8):
        e(f"  v_mov_b32 v{28+i}, 0")
    e(f"  s_waitcnt vmcnt({PTN})")
    for i in range(8):
        e(f"  v_lshl_or_b32 v{4+i}, v{12+i}, 16, v{4+i}")
    A, B, C, Dd, H1, L1, H2, L2, T, THR, M, I0, I1, M1, M2, P0 = 46, 47, 48, 49, 50, 51, 52, 53, 54, 55, 56, 57, 58, 59, 60, 62
    for g in range(4):
        lo, hi = 4 + 2 * g, 5 + 2 * g
        e(f"  v_and_b32 v{A}, 0x7fff, v{lo}")
        e(f"  v_bfe_u32 v{B}, v{lo}, 16, 15")
        e(f"  v_and_b32 v{C}, 0x7fff, v{hi}")
        e(f"  v_bfe_u32 v{Dd}, v{hi}, 16, 15")
        e(f"  v_max_u32 v{H1}, v{A}, v{B}")
        e(f"  v_min_u32 v{L1}, v{A}, v{B}")
        e(f"  v_max_u32 v{H2}, v{C}, v{Dd}")
        e(f"  v_min_u32 v{L2}, v{C}, v{Dd}")
        e(f"  v_min_u32 v{T}, v{H1}, v{H2}")
        e(f"  v_max3_u32 v{THR}, v{T}, v{L1}, v{L2}")
        e(f"  v_add_u32 v{THR}, -1, v{THR}")
        e(f"  v_sub_u32 v{A}, v{THR}, v{A}")
        e(f"  v_sub_u32 v{B}, v{THR}, v{B}")
        e(f"  v_sub_u32 v{C}, v{THR}, v{C}")
        e(f"  v_sub_u32 v{Dd}, v{THR}, v{Dd}")
        e(f"  v_lshrrev_b32 v{M}, 31, v{A}")
        e(f"  v_lshrrev_b32 v{B}, 30, v{B}")
        e(f"  v_and_or_b32 v{M}, v{B}, 2, v{M}")
        e(f"  v_lshrrev_b32 v{C}, 29, v{C}")
        e(f"  v_and_or_b32 v{M}, v{C}, 4, v{M}")
        e(f"  v_lshrrev_b32 v{Dd}, 28, v{Dd}")
        e(f"  v_and_or_b32 v{M}, v{Dd}, 8, v{M}")
        e(f"  v_ffbl_b32 v{I0}, v{M}")
        e(f"  v_add_u32 v{T}, -1, v{M}")
        e(f"  v_and_b32 v{M1}, v{M}, v{T}")
        e(f"  v_ffbl_b32 v{I1}, v{M1}")
        e(f"  v_add_u32 v{T}, -1, v{M1}")
        e(f"  v_and_b32 v{M2}, v{M1}, v{T}")
        e(f"  v_cmp_ne_u32 vcc, 0, v{M2}")
        e(f"  v_lshlrev_b32 v{T}, 4, v{I0}")
        e(f"  v_lshrrev_b64 v[{P0}:{P0+1}], v{T}, v[{lo}:{hi}]")
        e(f"  v_and_b32 v{A}, 0xffff, v{P0}")
        e(f"  v_lshlrev_b32 v{T}, 4, v{I1}")
        e(f"  v_lshrrev_b64 v[{P0}:{P0+1}], v{T}, v[{lo}:{hi}]")
        e(f"  v_lshl_or_b32 v{20+g}, v{P0}, 16, v{A}")
        e(f"  v_lshl_or_b32 v{24+g}, v{I1}, 2, v{I0}")
        e("  s_cmp_eq_u64 vcc, 0")
        e(f"  s_cbranch_scc1 Lp_nores{g}")
        mcur = M2
        for which in range(2):
            E = 28 + 2 * g + which
            e(f"  v_ffbl_b32 v{I0}, v{mcur}")
            e(f"  v_lshlrev_b32 v{T}, 4, v{I0}")
            e(f"  v_lshrrev_b64 v[{P0}:{P0+1}], v{T}, v[{lo}:{hi}]")
            e(f"  v_and_b32 v{A}, 0xffff, v{P0}")
            e(f"  v_and_b32 v{B}, 0x7fff, v{P0}")
            e(f"  v_min_u32 v{B}, v{B}, v{mcur}")
            e(f"  v_add_u32 v{C}, s12, v{I0}")
            e(f"  v_add_u32 v{C}, {4*g}, v{C}")
            e(f"  v_lshl_or_b32 v{C}, v{C}, 22, v44")
            e(f"  v_or_b32 v{C}, v{C}, v{A}")
            e(f"  v_cmp_ne_u32 vcc, 0, v{B}")
            if which == 0:
                e(f"  v_add_u32 v{T}, -1, v{M2}")
                e(f"  v_and_b32 v{M1}, v{M2}, v{T}")
            else:
                e("  s_nop 1")
            e(f"  v_cndmask_b32 v{E}, 0, v{C}, vcc")
            mcur = M1
        e(f"Lp_nores{g}:")
    for eh in range(2):
        e(f"  buffer_store_dwordx2 v[{20+2*eh}:{21+2*eh}], v42, s[20:23], s24 offen offset:{512*eh}")
        e(f"  v_lshl_or_b32 v{46+eh}, v{25+2*eh}, 4, v{24+2*eh}")
        e(f"  buffer_store_byte v{46+eh}, v43, s[20:23], s26 offen offset:{512*eh}")
    e("  s_mov_b32 s28, 0")
    for i in range(8):
        e(f"  v_cmp_ne_u32 s[{32+2*i}:{33+2*i}], 0, v{28+i}")
    e("  s_nop 3")
    for i in range(8):
        e(f"  s_bcnt1_i32_b64 s29, s[{32+2*i}:{33+2*i}]")
        e("  s_add_u32 s28, s28, s29")
    e("  v_mov_b32 v46, s28")
    e("  s_lshl_b32 s29, s3, 2")
    e("  v_mov_b32 v47, s29")
    e("  ds_write_b32 v47, v46")
    e("  v_mov_b32 v47, 0")
    e("  s_waitcnt lgkmcnt(0)")
    e("  s_barrier")
    e("  ds_read_b128 v[48:51], v47")
    e("  s_waitcnt lgkmcnt(0)")
    e("  s_mov_b32 s28, 0")
    e("  s_mov_b32 s30, 0")
    for i in range(4):
        e(f"  v_readfirstlane_b32 s29, v{48+i}")
        e("  s_add_u32 s30, s30, s29")
        e(f"  s_cmp_gt_u32 s3, {i}")
        e("  s_cselect_b32 s29, s29, 0")
        e("  s_add_u32 s28, s28, s29")
    e("  s_lshl_b32 s31, s2, 14")
    e(f"  s_add_u32 s31, s31, {LIST_OFF}")
    for i in range(8):
        lo, hi = 32 + 2 * i, 33 + 2 * i
        e(f"  s_cmp_eq_u64 s[{lo}:{hi}], 0")
        e(f"  s_cbranch_scc1 Lp_skip{i}")
        e(f"  v_mbcnt_lo_u32_b32 v46, s{lo}, 0")
        e(f"  v_mbcnt_hi_u32_b32 v46, s{hi}, v46")
        e("  v_add_u32 v46, s28, v46")
        e("  v_lshrrev_b32 v47, 1, v46")
        e("  v_lshlrev_b32 v47, 4, v47")
        e("  v_and_b32 v46, 1, v46")
        e("  v_lshl_add_u32 v48, v46, 2, v47")
        e("  v_lshl_add_u32 v49, v46, 1, v47")
        e(f"  v_lshrrev_b32 v50, 21, v{28+i}")
        e("  v_and_b32 v50, 0x7fe, v50")
        e(f"  v_bfe_u32 v51, v{28+i}, 16, 6")
        e(f"  s_mov_b64 exec, s[{lo}:{hi}]")
        e("  buffer_store_dword v50, v48, s[20:23], s31 offen")
        e(f"  buffer_store_short v{28+i}, v49, s[20:23], s31 offen offset:8")
        e("  buffer_store_short v51, v49, s[20:23], s31 offen offset:12")
        e("  s_mov_b64 exec, -1")
        e(f"  s_bcnt1_i32_b64 s29, s[{lo}:{hi}]")
        e("  s_add_u32 s28, s28, s29")
        e(f"Lp_skip{i}:")
    e("  s_cmp_lg_u32 s3, 0")
    e("  s_cbranch_scc1 Lp_end")
    e("  s_add_u32 s29, s30, 1")
    e("  s_lshr_b32 s29, s29, 1")
    e("  v_mov_b32 v51, s29")
    e("  v_mov_b32 v50, 0")
    e("  s_mov_b64 exec, 1")
    e("  s_bitcmp0_b32 s30, 0")
    e("  s_cbranch_scc1 Lp_nopad")
    e("  s_lshr_b32 s28, s30, 1")
    e("  s_lshl_b32 s28, s28, 4")
    e("  v_mov_b32 v48, s28")
    e("  buffer_store_dword v50, v48, s[20:23], s31 offen offset:4")
    e("  buffer_store_short v50, v48, s[20:23], s31 offen offset:10")
    e("  buffer_store_short v50, v48, s[20:23], s31 offen offset:14")
    e("Lp_nopad:")
    e("  s_lshl_b32 s29, s2, 2")
    e(f"  s_add_u32 s29, s29, {CNT_OFF}")
    e("  buffer_store_dword v51, v50, s[20:23], s29 offen")
    e("Lp_end:")
    e("  s_endpgm")


V_BF2 = 0
V_M, V_Q = 1, 2
V_DMA = 3
V_ST = 7
V_RB = 8
V_GX = 12
V_X0, V_X1, V_X2 = 13, 14, 15
V_IDX = 16
V_BIAS = 48
V_ACC = 64
V_B = 96
V_AP = 128
V_GB = 192
V_GT = 224
V_BP = 232
V_T = 236
V_SV = 244
V_AT = 228
V_LO16 = 232
V_LANE = 233
V_RIDX = 253
V_SVS = 244

S_X, S_OUT, S_WS, S_BIAS = 16, 20, 24, 28
S_W = 32
S_SLOT = 33
S_DGOFF = 36
S_OOFF = 37
S_CNT = 38
S_NG = 39
S_C0 = 80
S_PF, S_DD = 44, 45
S_LB = 51
S_T0, S_T1, S_T2 = 52, 53, 54
S_ROWB = 56
S_G = 57
S_DC = 59
S_M0R = 60
S_K1, S_KM1 = 64, 65
S_EV = 48
S_AOFF = 66
S_STAMP = 70


class I:
    def __init__(self, text, lds=None, vm=None, opt=False, wl=None, wv=None):
        self.text, self.lds, self.vm, self.opt, self.wl, self.wv = text, lds, vm, opt, wl, wv
        self.nl = None
        self.nv = None


def W(wl=None, wv=None):
    return I("WAIT", wl=wl, wv=wv)


def stamp(i):
    if DBG and i == 0:
        return [I("  s_memrealtime s[98:99]"), I(f"  s_memtime s[68:69]"), I("  s_waitcnt lgkmcnt(0)"), I(f"  s_mov_b32 s{S_STAMP+i}, s68")]
    if DBG:
        return [I("  s_memtime s[68:69]"), I("  s_waitcnt lgkmcnt(0)"), I(f"  s_mov_b32 s{S_STAMP+i}, s68")]
    return []


V_UT = 254
V_PK = 252
V_PV = 235


def unit_table(L, vu):
    L.append(I(f"  v_lshlrev_b32 v{V_UT}, 4, v{vu}"))
    L.append(I(f"  s_mov_b32 s{S_PF}, -1"))
    for t in range(1, 16):
        L.append(I(f"  s_add_u32 s{S_PF}, s{S_PF}, s{S_C0+t-1}"))
        L.append(I(f"  s_lshl_b32 s{S_DD}, s{S_C0+t-1}, 4"))
        L.append(I(f"  s_sub_u32 s{S_DD}, {CAPB}, s{S_DD}"))
        L.append(I(f"  v_sub_u32 v{V_X2}, s{S_PF}, v{vu}"))
        L.append(I(f"  v_ashrrev_i32 v{V_X2}, 31, v{V_X2}"))
        L.append(I(f"  v_and_b32 v{V_X2}, s{S_DD}, v{V_X2}"))
        L.append(I(f"  v_add_u32 v{V_UT}, v{V_UT}, v{V_X2}"))
    L.append(I(f"  s_add_u32 s{S_PF}, s{S_PF}, s{S_C0+15}"))
    L.append(I(f"  v_sub_u32 v{V_X2}, s{S_PF}, v{vu}"))
    L.append(I(f"  v_ashrrev_i32 v{V_X2}, 31, v{V_X2}"))
    L.append(I(f"  v_and_b32 v{V_X2}, {OOB}, v{V_X2}"))
    L.append(I(f"  v_or_b32 v{V_UT}, v{V_UT}, v{V_X2}"))


def afrag(L, fs, vvff, dst):
    cst = 32 * (fs >> 1) + 4 * (fs & 1)
    cst2 = cst | (cst << 16)
    for dd in range(4):
        vv, ff = vvff + 2 * dd, vvff + 2 * dd + 1
        d = dst + dd
        if cst2:
            L.append(I(f"  v_xor_b32 v{d}, {cst2}, v{ff}"))
            L.append(I(f"  v_pk_min_u16 v{d}, v{d}, s{S_K1}"))
        else:
            L.append(I(f"  v_pk_min_u16 v{d}, v{ff}, s{S_K1}"))
        L.append(I(f"  v_pk_add_u16 v{d}, v{d}, s{S_KM1}"))
        L.append(I(f"  v_and_b32 v{d}, v{d}, v{vv}"))


def dma_part(part, slot, rel):
    i, hh = part >> 1, part & 1
    L = []
    if hh == 0:
        L.append(I(f"  s_add_u32 m0, s{S_M0R+i}, {slot*2048}"))
        L.append(I("  s_nop 0"))
    L.append(I(f"  buffer_load_dwordx4 v{V_DMA+i}, s[{S_X}:{S_X+3}], s{S_DGOFF} offen offset:{hh*1024}{DMAF} lds",
               vm=("D", rel)))
    return L


def dma_advance():
    return [I(f"  s_add_u32 s{S_DC}, s{S_DC}, 1"),
            I(f"  s_add_u32 s{S_DGOFF}, s{S_DGOFF}, 32768"),
            I(f"  s_cmp_ge_u32 s{S_DC}, {NCHUNK}"),
            I(f"  s_cselect_b32 s{S_DGOFF}, {OOB}, s{S_DGOFF}")]


def rd(ks, slot, rel):
    p = ks & 1
    b = V_B + 8 * (ks & 3)
    off = slot * 2048 + (ks >> 1) * 256
    return [I(f"  ds_read_b128 v[{b}:{b+3}], v{V_RB+2*p} offset:{off}", lds=("R", ks, rel)),
            I(f"  ds_read_b128 v[{b+4}:{b+7}], v{V_RB+2*p+1} offset:{off}", lds=("R", ks, rel))]


def gtb(g):
    return V_GT if g & 1 == 0 else V_SV


def gather(g, slot, rel, opt=False):
    return [I(f"  ds_read_u16 v{gtb(g)+jj}, v{V_GB+8*g+jj} offset:{slot*2048}", lds=("G", g, rel), opt=opt)
            for jj in range(8)]


def res_comb(g):
    return [I(f"  v_lshl_or_b32 v{gtb(g)+2*d}, v{gtb(g)+2*d+1}, 16, v{gtb(g)+2*d}") for d in range(4)]


def res_mfma(g, acc):
    return [I(f"  v_smfmac_f32_16x16x64_bf16 v[{acc+4*fs}:{acc+4*fs+3}], v[{V_AP+16*g+4*fs}:{V_AP+16*g+4*fs+3}], "
              f"v[{gtb(g)}:{gtb(g)+7}], v{V_RIDX}") for fs in range(4)]


def touch(c):
    if c >= 16:
        return []
    return [I(f"  s_add_u32 s47, s46, {c*32768}"),
            I(f"  buffer_load_dword v232, v235, s[{S_X}:{S_X+3}], s47 offen{TCF}", vm=("T", 0))]


def acc_init(acc):
    return [I(f"  v_mov_b32 v{acc+j}, v{V_BIAS+j}") for j in range(16)]


V_SW = 232


def epilogue(acc):
    L = []
    for j in range(2):
        for d in range(4):
            fs = 2 * j + (d >> 1)
            r = 2 * (d & 1)
            L.append(I(f"  v_cvt_pk_bf16_f32 v{V_T+4*j+d}, v{acc+4*fs+r}, v{acc+4*fs+r+1}"))
    L.append(I(f"  s_mov_b64 vcc, s[{S_EV}:{S_EV+1}]"))
    for d in range(4):
        L.append(I(f"  v_cndmask_b32_dpp v{V_SW+d}, v{V_T+4+d}, v{V_T+d}, vcc quad_perm:[1,0,3,2] row_mask:0xf bank_mask:0xf"))
    L.append(I(f"  buffer_store_dwordx4 v[{V_SW}:{V_SW+3}], v{V_ST}, s[{S_OUT}:{S_OUT+3}], s{S_OOFF} offen{STF}", vm=("S", 0)))
    L.append(I(f"  s_not_b64 vcc, s[{S_EV}:{S_EV+1}]"))
    L.append(I("  s_nop 0"))
    for d in range(4):
        L.append(I(f"  v_cndmask_b32_dpp v{V_SW+d}, v{V_T+d}, v{V_T+4+d}, vcc quad_perm:[1,0,3,2] row_mask:0xf bank_mask:0xf"))
    L.append(I(f"  buffer_store_dwordx4 v[{V_SW}:{V_SW+3}], v{V_ST}, s[{S_OUT}:{S_OUT+3}], s{S_OOFF} offen offset:2048{STF}", vm=("S", 0)))
    L.append(I(f"  s_add_u32 s{S_OOFF}, s{S_OOFF}, 32768"))
    return L


def a_load(ks):
    L = []
    for fs in range(4):
        a = (ks * 4 + fs) * 4
        L.append(I(f"  buffer_load_dwordx4 a[{a}:{a+3}], v{V_LO16A}, s[{S_WS}:{S_WS+3}], s{S_AOFF} offen offset:{fs*1024}{ALF}",
                   vm=("A", ks)))
    L.append(I(f"  s_add_u32 s{S_AOFF}, s{S_AOFF}, 4096"))
    return L


V_LO16A = 255
A_PRE = int(os.environ.get("A_PRE","6"))


def body(name, slot, buf, prev_epi, own_epi, first=False):
    X = V_ACC + 16 * buf
    Y = V_ACC + 16 * (1 - buf)
    nslot = (slot + 1) % NSLOT
    L = []
    for ks in range(16):
        pre, fill, post, early = [], [], [], []
        if ks == 1 and not first:
            pre = [I("  s_barrier")]
        if ks == 13:
            pre = [W(wv=("D", 1)), I("  s_barrier")] if not int(os.environ.get("NOWAIT", "0")) else [I("  s_barrier")]
        if ks + 3 < 16:
            fill += rd(ks + 3, slot, 0)
        else:
            fill += rd(ks + 3 - 16, nslot, 1)
        if prev_epi:
            ep = epilogue(Y)
            ini = acc_init(Y)
            if ks == 4:
                fill += ep[:8]
            if ks == 5:
                fill += ep[8:14]
            if ks == 8:
                fill += ep[14:]
            if ks in (11, 14):
                fill += ini[:8] if ks == 11 else ini[8:]
        if not first:
            part = ks - 1
            if 0 <= part < 8 and not NODMA:
                fill += dma_part(part, (slot + 4) % NSLOT, 4)
                if part == 7:
                    fill += dma_advance()
        else:
            if ks + A_PRE < 16:
                fill += a_load(ks + A_PRE)
            if TCH and ks == 6:
                fill += touch(TCH + 8)
            if 4 <= ks < 12:
                c = 2 + (ks - 4) // 4
                for part in (2 * ((ks - 4) % 4), 2 * ((ks - 4) % 4) + 1):
                    fill += dma_part(part, c, c)
                    if part == 7:
                        fill += dma_advance()
            if ks >= 12:
                for part in (2 * (ks - 12), 2 * (ks - 12) + 1):
                    fill += dma_part(part, 4, 4)
                    if part == 7:
                        fill += dma_advance()
        if TD and ks == 10:
            fill += [I(f"  s_cmp_ge_u32 s47, {NCHUNK}"),
                     I(f"  s_cselect_b32 s{S_T0}, {OOB}, s46"),
                     I(f"  buffer_load_dword v{V_X2}, v{V_Q}, s[{S_X}:{S_X+3}], s{S_T0} offen{TCF}", vm=("T", 0)),
                     I("  s_add_u32 s46, s46, 32768"),
                     I("  s_add_u32 s47, s47, 1")]
        if not NORES:
            n, ph = divmod(ks, 3)
            if n < 4 and ph < 2:
                fill += gather(n, slot, 0)[4 * ph:4 * ph + 4]
            if ks >= 3 and ph == 0 and n - 1 < 4:
                early = [W(wl=("G", n - 1, 0))] + res_comb(n - 1)
                post += res_mfma(n - 1, X)
            if ks == 12:
                post += [I(f"  s_cmp_gt_u32 s{S_NG}, 4"), I(f"  s_cbranch_scc1 Lslow_{name}"), I(f"Lslowback_{name}:")]
        L += pre
        L.append(W(wl=("R", ks, 0), wv=("A", ks) if first else None))
        mf = []
        for fs in range(4):
            a = (ks * 4 + fs) * 4
            b = V_B + 8 * (ks & 3)
            mf.append(I(f"  v_smfmac_f32_16x16x64_bf16 v[{X+4*fs}:{X+4*fs+3}], a[{a}:{a+3}], v[{b}:{b+7}], "
                        f"v{V_IDX+fs*8+(ks>>1)}" + (" abid:1" if ks & 1 else "")))
        fill = early + fill
        n_ = len(fill)
        per = [(n_ + 3 - i) // 4 for i in range(4)]
        pos = 0
        for i in range(4):
            L.append(mf[i])
            L += fill[pos:pos + per[i]]
            pos += per[i]
        L += post
    if own_epi:
        ep = epilogue(X)
        L += [I("  s_nop 7")] + ep[:8] + [I("  s_nop 1")] + ep[8:] + acc_init(X) + [I("  s_nop 1")]
    return L


def slow_path(name, slot, buf, first=False):
    X = V_ACC + 16 * buf
    L = []
    L.append(I(f"Lslow_{name}:"))
    L.append(I(f"  s_mov_b32 s{S_G}, {NRES}"))
    L.append(I(f"Lslowloop_{name}:"))
    L.append(I(f"  v_mbcnt_lo_u32_b32 v{V_X0}, -1, 0"))
    L.append(I(f"  v_mbcnt_hi_u32_b32 v{V_X0}, -1, v{V_X0}"))
    L.append(I(f"  s_lshl_b32 s{S_T0}, s{S_G}, 4"))
    L.append(I(f"  v_add_u32 v{V_X0}, s{S_T0}, v{V_X0}"))
    unit_table(L, V_X0)
    for i in range(4):
        L.append(I(f"  ds_bpermute_b32 v{V_GT+i}, v{V_PK}, v{V_UT} offset:{4*i}"))
    L.append(I("  s_waitcnt lgkmcnt(0)"))
    for i in range(4):
        L.append(I(f"  buffer_load_dwordx2 v[{V_T+2*i}:{V_T+2*i+1}], v{V_GT+i}, s[{S_WS}:{S_WS+3}], s{S_LB} offen"))
        L.append(I(f"  buffer_load_dwordx2 v[{V_SVS+2*i}:{V_SVS+2*i+1}], v{V_GT+i}, s[{S_WS}:{S_WS+3}], s{S_LB} offen offset:8"))
    L.append(I("  s_waitcnt vmcnt(0)"))
    for jj in range(8):
        L.append(I(f"  v_xor_b32 v{V_T+jj}, v{V_T+jj}, v{V_GX}"))
    for jj in range(8):
        L.append(I(f"  ds_read_u16 v{V_GT+jj}, v{V_T+jj} offset:{slot*2048}"))
    for i in range(4):
        L.append(I(f"  v_xor_b32 v{V_SVS+2*i+1}, v{V_SVS+2*i+1}, v{V_BF2}"))
    L.append(I("  s_waitcnt lgkmcnt(0)"))
    for d in range(4):
        L.append(I(f"  v_lshl_or_b32 v{V_BP+d}, v{V_GT+2*d+1}, 16, v{V_GT+2*d}"))
    for fs in range(4):
        afrag(L, fs, V_SVS, V_AT)
        L.append(I("  s_nop 1"))
        L.append(I(f"  v_mfma_f32_16x16x32_bf16 v[{X+4*fs}:{X+4*fs+3}], v[{V_AT}:{V_AT+3}], v[{V_BP}:{V_BP+3}], v[{X+4*fs}:{X+4*fs+3}]"))
        L.append(I("  s_nop 7"))
    L.append(I(f"  s_add_u32 s{S_G}, s{S_G}, 1"))
    L.append(I(f"  s_cmp_lt_u32 s{S_G}, s{S_NG}"))
    L.append(I(f"  s_cbranch_scc1 Lslowloop_{name}"))
    L.append(I(f"  s_branch Lslowback_{name}"))
    return L


def resolve(seq):
    lds, vm = [], []
    for blk, c in seq:
        for ins in blk:
            if ins.lds is not None:
                t = ins.lds
                lds.append(((t[0], t[1], c + t[2]), ins.opt))
            if ins.vm is not None:
                t = ins.vm
                vm.append(((t[0], t[1] + (c if t[0] in ("D",) else 0)), ins.opt))
            if ins.text == "WAIT":
                if ins.wl is not None:
                    key = (ins.wl[0], ins.wl[1], c + ins.wl[2])
                    n, found = 0, False
                    for tag, opt in reversed(lds):
                        if tag == key:
                            found = True
                            break
                        if not opt:
                            n += 1
                    assert found, (key, c)
                    n = min(n, 15)
                    ins.nl = n if ins.nl is None else min(ins.nl, n)
                if ins.wv is not None:
                    key = (ins.wv[0], ins.wv[1] + (c if ins.wv[0] in ("D",) else 0))
                    n, found = 0, False
                    for tag, opt in reversed(vm):
                        if tag == key:
                            found = True
                            break
                        if not opt:
                            n += 1
                    assert found or NODMA, (key, c)
                    n = min(n, 63)
                    ins.nv = n if ins.nv is None else min(ins.nv, n)


def emit(blk):
    for ins in blk:
        if ins.text == "WAIT":
            parts = []
            if ins.nv is not None:
                parts.append(f"vmcnt({ins.nv})")
            if ins.nl is not None:
                parts.append(f"lgkmcnt({ins.nl})")
            e("  s_waitcnt " + " ".join(parts))
        else:
            e(ins.text)


def gen_main():
    e(f".globl {KNAME}")
    e(".p2align 8")
    e(f".type {KNAME},@function")
    e(f"{KNAME}:")
    P = []

    def p(t, **kw):
        P.append(I(t, **kw))

    p("  s_cmp_ge_u32 s2, 256")
    p("  s_cbranch_scc1 Lm_end")
    P.extend(stamp(0))
    p("  s_load_dwordx4 s[4:7], s[0:1], 0")
    p("  s_load_dwordx4 s[8:11], s[0:1], 16")
    p("  s_load_dwordx2 s[14:15], s[0:1], 40")
    p("  v_lshrrev_b32 v3, 6, v0")
    p(f"  v_and_b32 v{V_LANE}, 63, v0")
    p(f"  v_readfirstlane_b32 s{S_W}, v3")
    p(f"  v_and_b32 v{V_M}, 15, v{V_LANE}")
    p(f"  v_lshrrev_b32 v{V_Q}, 4, v{V_LANE}")
    p(f"  v_lshlrev_b32 v{V_LO16A}, 4, v{V_LANE}")
    p(f"  s_and_b32 s{S_T0}, s2, 7")
    p(f"  s_lshr_b32 s{S_T1}, s2, 3")
    p(f"  s_and_b32 s{S_T2}, s{S_T1}, 3")
    p(f"  s_lshr_b32 s{S_T1}, s{S_T1}, 2")
    if int(os.environ.get("RBM", "0")):
        p(f"  s_lshl_b32 s{S_T0}, s{S_T0}, 3")
    else:
        p(f"  s_lshl_b32 s{S_T1}, s{S_T1}, 3")
    p(f"  s_add_u32 s{S_T1}, s{S_T1}, s{S_T0}")
    p(f"  s_lshl_b32 s{S_ROWB}, s{S_T1}, 19")
    p(f"  s_lshl_b32 s{S_SLOT}, s{S_T2}, 2")
    p(f"  s_add_u32 s{S_SLOT}, s{S_SLOT}, s{S_W}")
    p(f"  s_mul_i32 s{S_M0R}, s{S_W}, {4*ROWB}")
    for i in range(1, 4):
        p(f"  s_add_u32 s{S_M0R+i}, s{S_M0R}, {i*ROWB}")
    p(f"  s_mov_b32 s{S_K1}, 0x00010001")
    p(f"  s_mov_b32 s{S_KM1}, -1")
    for i in range(4):
        p(f"  s_lshl_b32 s{S_T0}, s{S_W}, 2")
        p(f"  s_add_u32 s{S_T0}, s{S_T0}, {i}")
        p(f"  v_xor_b32 v{V_X0}, s{S_T0}, v{V_LANE}")
        p(f"  v_and_b32 v{V_X0}, 15, v{V_X0}")
        p(f"  v_and_or_b32 v{V_X0}, v{V_LANE}, 48, v{V_X0}")
        p(f"  v_lshlrev_b32 v{V_X0}, 4, v{V_X0}")
        p(f"  s_lshl_b32 s{S_T1}, s{S_T0}, 11")
        p(f"  v_add_u32 v{V_DMA+i}, s{S_T1}, v{V_X0}")
    p("  s_waitcnt lgkmcnt(0)")
    for (srd, lo, size) in ((S_X, 4, 1 << 25), (S_OUT, 10, 1 << 25), (S_WS, 14, WS_USED), (S_BIAS, 8, 2048)):
        p(f"  s_mov_b32 s{srd}, s{lo}")
        p(f"  s_mov_b32 s{srd+1}, s{lo+1}")
        p(f"  s_mov_b32 s{srd+2}, {size}")
        p(f"  s_mov_b32 s{srd+3}, 0x00020000")
    p(f"  s_lshl_b32 s{S_T0}, s{S_SLOT}, 6")
    p(f"  s_add_u32 s{S_T0}, s{S_T0}, {CNT_OFF}")
    p(f"  s_load_dwordx16 s[{S_C0}:{S_C0+15}], s[14:15], s{S_T0}")
    p(f"  s_mov_b32 s{S_DGOFF}, s{S_ROWB}")
    p(f"  s_mov_b32 s{S_DC}, 0")
    for part in range(8):
        P.extend(dma_part(part, 0, 0))
    P.extend(dma_advance())
    if TCH:
        p(f"  v_lshrrev_b32 v{V_X0}, 4, v{V_LANE}")
        p(f"  v_lshlrev_b32 v{V_X0}, 11, v{V_X0}")
        p(f"  v_lshl_or_b32 v{V_X0}, v{V_M}, 7, v{V_X0}")
        p(f"  s_lshr_b32 s{S_T0}, s{S_SLOT}, 2")
        p(f"  s_lshl_b32 s{S_T0}, s{S_T0}, 13")
        p(f"  s_add_u32 s{S_T0}, s{S_T0}, s{S_ROWB}")
        p(f"  s_lshl_b32 s{S_T1}, s{S_W}, 15")
        p(f"  s_add_u32 s{S_T0}, s{S_T0}, s{S_T1}")
        p(f"  v_mov_b32 v235, v{V_X0}")
        p(f"  s_mov_b32 s46, s{S_T0}")
        P.extend(touch(TCH))
    p(f"  s_lshl_b32 s{S_T0}, s{S_SLOT}, 13")
    p(f"  s_add_u32 s{S_T0}, s{S_T0}, {IDX_OFF}")
    for j in range(8):
        if j == 4:
            p(f"  s_add_u32 s{S_T0}, s{S_T0}, 4096")
        p(f"  buffer_load_dwordx4 v[{V_IDX+4*j}:{V_IDX+4*j+3}], v{V_LO16A}, s[{S_WS}:{S_WS+3}], s{S_T0} offen offset:{(j&3)*1024}{ALF}",
          vm=("I", 0))
    p(f"  v_lshlrev_b32 v{V_X0}, 4, v{V_Q}")
    p(f"  s_lshl_b32 s{S_T0}, s{S_SLOT}, 7")
    for j in range(2):
        p(f"  buffer_load_dwordx4 v[{V_GT+4*j}:{V_GT+4*j+3}], v{V_X0}, s[{S_BIAS}:{S_BIAS+3}], s{S_T0} offen offset:{64*j}",
          vm=("B", 0))
    p(f"  s_lshl_b32 s{S_AOFF}, s{S_SLOT}, 16")
    for ks in range(3):
        P.extend(a_load(ks))
    p(f"  v_and_b32 v{V_ST}, 14, v{V_M}")
    p(f"  v_lshlrev_b32 v{V_ST}, 11, v{V_ST}")
    p(f"  v_lshl_add_u32 v{V_ST}, v{V_Q}, 4, v{V_ST}")
    p(f"  v_and_b32 v{V_X0}, 1, v{V_M}")
    p(f"  v_lshl_add_u32 v{V_ST}, v{V_X0}, 6, v{V_ST}")
    p(f"  s_mov_b32 s{S_EV}, 0x55555555")
    p(f"  s_mov_b32 s{S_EV+1}, 0x55555555")
    p(f"  s_movk_i32 s{S_T0}, {ROWB}")
    p(f"  v_mul_lo_u32 v{V_X1}, v{V_M}, s{S_T0}")
    for pp in range(2):
        for h in range(2):
            p(f"  v_lshlrev_b32 v{V_X0}, 1, v{V_Q}")
            p(f"  v_add_u32 v{V_X0}, {pp*8+h}, v{V_X0}")
            p(f"  v_xor_b32 v{V_X0}, v{V_X0}, v{V_M}")
            p(f"  v_lshl_add_u32 v{V_RB+2*pp+h}, v{V_X0}, 4, v{V_X1}")
    p(f"  v_lshl_or_b32 v{V_GX}, v{V_M}, 4, v{V_X1}")
    p(f"  v_mov_b32 v{V_RIDX}, 0x44444444")
    p(f"  v_lshlrev_b32 v{V_PK}, 4, v{V_Q}")
    p(f"  v_and_b32 v{V_PV}, 1, v{V_Q}")
    p(f"  v_lshlrev_b32 v{V_PV}, 5, v{V_PV}")
    p(f"  v_lshrrev_b32 v{V_X0}, 1, v{V_Q}")
    p(f"  v_lshl_or_b32 v{V_PV}, v{V_X0}, 3, v{V_PV}")
    p(f"  v_lshrrev_b32 v{V_X0}, 2, v{V_M}")
    p(f"  v_and_b32 v{V_BF2}, 3, v{V_M}")
    p(f"  v_lshl_or_b32 v{V_BF2}, v{V_X0}, 3, v{V_BF2}")
    p(f"  v_lshl_or_b32 v{V_BF2}, v{V_BF2}, 16, v{V_BF2}")
    p("  s_waitcnt lgkmcnt(0)")
    unit_table(P, V_LANE)
    p(f"  s_add_u32 s{S_NG}, s{S_PF}, 16")
    p(f"  s_lshr_b32 s{S_NG}, s{S_NG}, 4")
    p(f"  s_lshl_b32 s{S_LB}, s{S_SLOT}, 18")
    p(f"  s_add_u32 s{S_LB}, s{S_LB}, {LIST_OFF}")
    for g in range(NRES):
        for i in range(4):
            p(f"  ds_bpermute_b32 v{V_AP+8*g+i}, v{V_PK}, v{V_UT} offset:{64*g+4*i}")
            if True:
                p(f"  ds_bpermute_b32 v{V_AP+8*g+4+i}, v{V_PV}, v{V_UT} offset:{64*g+16*(i>>1)+4*(i&1)}")
    p("  s_waitcnt lgkmcnt(0)")
    for g in range(NRES):
        for i in range(4):
            p(f"  buffer_load_dwordx2 v[{V_GB+8*g+2*i}:{V_GB+8*g+2*i+1}], v{V_AP+8*g+i}, s[{S_WS}:{S_WS+3}], s{S_LB} offen",
              vm=("U", g))
            av = V_AP + 8 * g + 4 + i
            p(f"  buffer_load_dwordx2 v[{V_B+8*g+2*i}:{V_B+8*g+2*i+1}], v{av}, s[{S_WS}:{S_WS+3}], s{S_LB} offen offset:8",
              vm=("U", g))
    for ks in range(3, A_PRE):
        P.extend(a_load(ks))
    for part in range(8):
        P.extend(dma_part(part, 1, 1))
    P.extend(dma_advance())
    if TCH:
        P.extend(touch(TCH + 4))
    P.extend(stamp(1))
    P.append(W(wv=("B", 0)))
    for j in range(2):
        for d in range(4):
            fs = 2 * j + (d >> 1)
            r = 2 * (d & 1)
            p(f"  v_lshlrev_b32 v{V_BIAS+4*fs+r}, 16, v{V_GT+4*j+d}")
            p(f"  v_and_b32 v{V_BIAS+4*fs+r+1}, 0xffff0000, v{V_GT+4*j+d}")
    for g in range(NRES):
        P.append(W(wv=("U", g)))
        for jj in range(8):
            p(f"  v_xor_b32 v{V_GB+8*g+jj}, v{V_GB+8*g+jj}, v{V_GX}")
        for i in range(4):
            r = V_B + 8 * g + 2 * i + 1
            p(f"  v_xor_b32 v{r}, v{r}, v{V_BF2}")
        for fs in range(4):
            afrag(P, fs, V_B + 8 * g, V_AP + 16 * g + 4 * fs)
    P.extend(acc_init(V_ACC))
    P.extend(acc_init(V_ACC + 16))
    if TD:
        p(f"  v_lshlrev_b32 v{V_Q}, 7, v{V_M}")
        p(f"  s_lshl_b32 s46, s{S_SLOT}, 11")
        p(f"  s_add_u32 s46, s46, s{S_ROWB}")
        p(f"  s_add_u32 s46, s46, {TD*32768}")
        p(f"  s_mov_b32 s47, {TD}")
    P.extend(stamp(2))
    P.append(W(wv=("D", 0)))
    p("  s_barrier")
    p(f"  s_lshl_b32 s{S_OOFF}, s{S_SLOT}, 7")
    p(f"  s_add_u32 s{S_OOFF}, s{S_OOFF}, s{S_ROWB}")
    p(f"  s_mov_b32 s{S_CNT}, 0")
    P.extend(rd(0, 0, 0))
    P.extend(rd(1, 0, 0))
    P.extend(rd(2, 0, 0))
    P.extend(stamp(3))

    F = body("f", 0, 0, False, True, first=True)
    F.extend(stamp(4))
    slots = [1, 2, 3, 4, 0]
    bufs = [1, 0, 1, 0, 1]
    LB = []
    for i, (sl, bf) in enumerate(zip(slots, bufs)):
        LB.append(body(f"b{i}", sl, bf, i > 0, i == 4))
    seq = [(P, 0), (F, 0)]
    c = 1
    for it in range(3):
        for blk in LB:
            seq.append((blk, c))
            c += 1
    resolve(seq)
    emit(P)
    emit(F)
    e("Lloop:")
    for blk in LB:
        emit(blk)
    e(f"  s_add_u32 s{S_CNT}, s{S_CNT}, 1")
    e(f"  s_cmp_lt_u32 s{S_CNT}, 3")
    e("  s_cbranch_scc1 Lloop")
    if DBG:
        emit(stamp(5))
        e("  s_waitcnt vmcnt(0)")
        emit(stamp(6))
        e("  s_memrealtime s[100:101]")
        e("  s_load_dwordx2 s[12:13], s[0:1], 32")
        e("  s_waitcnt lgkmcnt(0)")
        e("  s_mov_b32 s84, s12")
        e("  s_mov_b32 s85, s13")
        e("  s_mov_b32 s86, 256")
        e("  s_mov_b32 s87, 0x00020000")
        e("  s_and_b32 s88, s2, 63")
        e("  s_cmp_lg_u32 s88, 0")
        e("  s_cbranch_scc1 Lm_end")
        e(f"  s_cmp_lg_u32 s{S_W}, 0")
        e("  s_cbranch_scc1 Lm_end")
        e("  s_lshr_b32 s88, s2, 6")
        e("  s_lshl_b32 s88, s88, 5")
        e("  v_mov_b32 v1, 0")
        e("  s_mov_b64 exec, 1")
        for i in range(7):
            if i:
                e(f"  s_sub_u32 s68, s{S_STAMP+i}, s{S_STAMP}")
            else:
                e(f"  s_mov_b32 s68, s{S_STAMP}")
            e("  v_mov_b32 v2, s68")
            e(f"  buffer_store_dword v2, v1, s[84:87], s88 offen offset:{4*i}")
        e("  s_sub_u32 s100, s100, s98")
        e("  v_mov_b32 v2, s100")
        e("  buffer_store_dword v2, v1, s[84:87], s88 offen offset:28")
    e("Lm_end:")
    e("  s_endpgm")
    if not NORES:
        emit(slow_path("f", 0, 0, first=True))
        for i, (sl, bf) in enumerate(zip(slots, bufs)):
            emit(slow_path(f"b{i}", sl, bf))


def main():
    e("; Kernarg layout: 0 x, 8 w, 16 b, 24 out, 32 debug, 40 ws")
    e("; @launch kernel=prep_kernel grid=(256,1,1) block=(256,1,1) lds=256")
    e(f"; @launch kernel={KNAME} grid=(256,1,1) block=(256,1,1) lds={16*ROWB}")
    e('.amdgcn_target "amdgcn-amd-amdhsa--gfx950"')
    e(".text")
    gen_prep()
    gen_main()
    e('.section .rodata,"a"')
    e(".p2align 6")
    e(".amdhsa_kernel prep_kernel")
    e("  .amdhsa_next_free_vgpr 64")
    e("  .amdhsa_next_free_sgpr 64")
    e("  .amdhsa_accum_offset 64")
    e("  .amdhsa_group_segment_fixed_size 0")
    e("  .amdhsa_kernarg_size 48")
    e("  .amdhsa_user_sgpr_count 2")
    e("  .amdhsa_user_sgpr_kernarg_segment_ptr 1")
    e("  .amdhsa_system_sgpr_workgroup_id_x 1")
    e(".end_amdhsa_kernel")
    e(".p2align 6")
    e(f".amdhsa_kernel {KNAME}")
    e("  .amdhsa_next_free_vgpr 512")
    e("  .amdhsa_next_free_sgpr 102")
    e("  .amdhsa_accum_offset 256")
    e("  .amdhsa_group_segment_fixed_size 0")
    e("  .amdhsa_kernarg_size 48")
    e("  .amdhsa_user_sgpr_count 2")
    e("  .amdhsa_user_sgpr_kernarg_segment_ptr 1")
    e("  .amdhsa_system_sgpr_workgroup_id_x 1")
    e(".end_amdhsa_kernel")
    path = sys.argv[1] if len(sys.argv) > 1 else "standalone__structured_sparse_n_m__ragged.s"
    open(path, "w").write("\n".join(out) + "\n")


if __name__ == "__main__":
    main()
```

```python
import sys, os

DBG = int(os.environ.get("DBG", "0"))
NODMA = int(os.environ.get("NODMA", "0"))
NORES = int(os.environ.get("NORES", "0"))
NOST = int(os.environ.get("NOST", "0"))
DMAF = os.environ.get("DMAF", " nt")
WLF = os.environ.get("WLF", " nt")
ALF = os.environ.get("ALF", "")
STF = os.environ.get("STF", " nt")
TCH = int(os.environ.get("TCH", "0"))
TCF = os.environ.get("TCF", "")
TD = int(os.environ.get("TD", "0"))
PT0 = int(os.environ.get("PT0", "0"))
PTN = int(os.environ.get("PTN", "0"))

KNAME = "standalone__structured_sparse_n_m__ragged_kernel"

A_OFF = 0
IDX_OFF = 1 << 20
CNT_OFF = (1 << 20) + (128 << 10)
LIST_OFF = 2 << 20
CAPB = 16384
WS_USED = 8 << 20

NSLOT = 5
ROWB = NSLOT * 2048
NCHUNK = 16
OOB = 0x40000000
NRES = 4

out = []


def e(s=""):
    out.append(s)


def gen_prep():
    e(".globl prep_kernel")
    e(".p2align 8")
    e(".type prep_kernel,@function")
    e("prep_kernel:")
    e("  s_cmp_ge_u32 s2, 256")
    e("  s_cbranch_scc1 Lp_end")
    e("  s_load_dwordx2 s[4:5], s[0:1], 8")
    e("  s_load_dwordx2 s[6:7], s[0:1], 40")
    e("  v_lshrrev_b32 v1, 6, v0")
    e("  v_and_b32 v2, 63, v0")
    e("  v_readfirstlane_b32 s3, v1")
    e("  s_lshr_b32 s8, s2, 4")
    e("  s_and_b32 s10, s2, 15")
    e("  s_mov_b32 s11, s3")
    e("  s_lshl_b32 s12, s10, 6")
    e("  s_lshl_b32 s13, s11, 4")
    e("  s_add_u32 s12, s12, s13")
    e("  s_lshl_b32 s13, s12, 11")
    e("  s_lshl_b32 s14, s8, 7")
    e("  s_add_u32 s13, s13, s14")
    e("  v_lshlrev_b32 v3, 1, v2")
    e("  s_waitcnt lgkmcnt(0)")
    e("  s_mov_b32 s16, s4")
    e("  s_mov_b32 s17, s5")
    e("  s_mov_b32 s18, 0x200000")
    e("  s_mov_b32 s19, 0x00020000")
    e("  s_mov_b32 s20, s6")
    e("  s_mov_b32 s21, s7")
    e(f"  s_mov_b32 s22, {WS_USED}")
    e("  s_mov_b32 s23, 0x00020000")
    for i in range(8):
        e(f"  buffer_load_ushort v{4+i}, v3, s[16:19], s13 offen{WLF}")
        e(f"  buffer_load_ushort v{12+i}, v3, s[16:19], s13 offen offset:2048{WLF}")
        if i < 7:
            e("  s_add_u32 s13, s13, 4096")
    if PTN:
        e("  s_load_dwordx2 s[48:49], s[0:1], 0")
        e("  s_and_b32 s52, s2, 7")
        e("  s_lshr_b32 s53, s2, 3")
        e("  s_and_b32 s54, s53, 3")
        e("  s_lshr_b32 s53, s53, 2")
        e("  s_lshl_b32 s53, s53, 3")
        e("  s_add_u32 s53, s53, s52")
        e("  s_lshl_b32 s53, s53, 19")
        e("  s_lshl_b32 s54, s54, 13")
        e("  s_add_u32 s53, s53, s54")
        e("  s_lshl_b32 s54, s3, 15")
        e("  s_add_u32 s53, s53, s54")
        e("  v_lshrrev_b32 v38, 4, v2")
        e("  v_lshlrev_b32 v38, 11, v38")
        e("  v_and_b32 v39, 15, v2")
        e("  v_lshl_or_b32 v38, v39, 7, v38")
        e("  s_waitcnt lgkmcnt(0)")
        e("  s_mov_b32 s50, 0x2000000")
        e("  s_mov_b32 s51, 0x00020000")
        for r in range(PTN):
            e(f"  s_add_u32 s54, s53, {(PT0+4*r)*32768}")
            e(f"  buffer_load_dword v39, v38, s[48:51], s54 offen{TCF}")
    e("  v_lshrrev_b32 v40, 5, v2")
    e("  v_bfe_u32 v41, v2, 2, 1")
    e("  v_lshl_or_b32 v40, v40, 1, v41")
    e("  v_bfe_u32 v41, v2, 3, 2")
    e("  v_and_b32 v42, 3, v2")
    e("  v_lshl_or_b32 v41, v41, 2, v42")
    e("  v_lshlrev_b32 v42, 10, v40")
    e("  v_lshl_add_u32 v42, v41, 4, v42")
    e("  s_lshl_b32 s24, s8, 4")
    e("  s_add_u32 s24, s24, s10")
    e("  s_lshl_b32 s24, s24, 12")
    e("  s_lshr_b32 s25, s11, 1")
    e("  s_lshl_b32 s25, s25, 8")
    e("  s_add_u32 s24, s24, s25")
    e("  s_and_b32 s25, s11, 1")
    e("  s_lshl_b32 s26, s25, 3")
    e("  s_add_u32 s24, s24, s26")
    e("  v_lshlrev_b32 v43, 11, v40")
    e("  v_lshl_add_u32 v43, v41, 4, v43")
    e("  s_lshl_b32 s26, s8, 13")
    e(f"  s_add_u32 s26, s26, {IDX_OFF}")
    e("  s_lshr_b32 s27, s10, 3")
    e("  s_lshl_b32 s27, s27, 10")
    e("  s_add_u32 s26, s26, s27")
    e("  s_lshr_b32 s27, s11, 1")
    e("  s_lshl_b32 s27, s27, 8")
    e("  s_add_u32 s26, s26, s27")
    e("  s_lshr_b32 s27, s10, 1")
    e("  s_and_b32 s27, s27, 3")
    e("  s_lshl_b32 s27, s27, 2")
    e("  s_add_u32 s26, s26, s27")
    e("  s_and_b32 s27, s10, 1")
    e("  s_lshl_b32 s27, s27, 1")
    e("  s_add_u32 s26, s26, s27")
    e("  s_add_u32 s26, s26, s25")
    e("  v_lshlrev_b32 v44, 16, v2")
    for i in range(8):
        e(f"  v_mov_b32 v{28+i}, 0")
    e(f"  s_waitcnt vmcnt({PTN})")
    for i in range(8):
        e(f"  v_lshl_or_b32 v{4+i}, v{12+i}, 16, v{4+i}")
    A, B, C, Dd, H1, L1, H2, L2, T, THR, M, I0, I1, M1, M2, P0 = 46, 47, 48, 49, 50, 51, 52, 53, 54, 55, 56, 57, 58, 59, 60, 62
    for g in range(4):
        lo, hi = 4 + 2 * g, 5 + 2 * g
        e(f"  v_and_b32 v{A}, 0x7fff, v{lo}")
        e(f"  v_bfe_u32 v{B}, v{lo}, 16, 15")
        e(f"  v_and_b32 v{C}, 0x7fff, v{hi}")
        e(f"  v_bfe_u32 v{Dd}, v{hi}, 16, 15")
        e(f"  v_max_u32 v{H1}, v{A}, v{B}")
        e(f"  v_min_u32 v{L1}, v{A}, v{B}")
        e(f"  v_max_u32 v{H2}, v{C}, v{Dd}")
        e(f"  v_min_u32 v{L2}, v{C}, v{Dd}")
        e(f"  v_min_u32 v{T}, v{H1}, v{H2}")
        e(f"  v_max3_u32 v{THR}, v{T}, v{L1}, v{L2}")
        e(f"  v_add_u32 v{THR}, -1, v{THR}")
        e(f"  v_sub_u32 v{A}, v{THR}, v{A}")
        e(f"  v_sub_u32 v{B}, v{THR}, v{B}")
        e(f"  v_sub_u32 v{C}, v{THR}, v{C}")
        e(f"  v_sub_u32 v{Dd}, v{THR}, v{Dd}")
        e(f"  v_lshrrev_b32 v{M}, 31, v{A}")
        e(f"  v_lshrrev_b32 v{B}, 30, v{B}")
        e(f"  v_and_or_b32 v{M}, v{B}, 2, v{M}")
        e(f"  v_lshrrev_b32 v{C}, 29, v{C}")
        e(f"  v_and_or_b32 v{M}, v{C}, 4, v{M}")
        e(f"  v_lshrrev_b32 v{Dd}, 28, v{Dd}")
        e(f"  v_and_or_b32 v{M}, v{Dd}, 8, v{M}")
        e(f"  v_ffbl_b32 v{I0}, v{M}")
        e(f"  v_add_u32 v{T}, -1, v{M}")
        e(f"  v_and_b32 v{M1}, v{M}, v{T}")
        e(f"  v_ffbl_b32 v{I1}, v{M1}")
        e(f"  v_add_u32 v{T}, -1, v{M1}")
        e(f"  v_and_b32 v{M2}, v{M1}, v{T}")
        e(f"  v_cmp_ne_u32 vcc, 0, v{M2}")
        e(f"  v_lshlrev_b32 v{T}, 4, v{I0}")
        e(f"  v_lshrrev_b64 v[{P0}:{P0+1}], v{T}, v[{lo}:{hi}]")
        e(f"  v_and_b32 v{A}, 0xffff, v{P0}")
        e(f"  v_lshlrev_b32 v{T}, 4, v{I1}")
        e(f"  v_lshrrev_b64 v[{P0}:{P0+1}], v{T}, v[{lo}:{hi}]")
        e(f"  v_lshl_or_b32 v{20+g}, v{P0}, 16, v{A}")
        e(f"  v_lshl_or_b32 v{24+g}, v{I1}, 2, v{I0}")
        e("  s_cmp_eq_u64 vcc, 0")
        e(f"  s_cbranch_scc1 Lp_nores{g}")
        mcur = M2
        for which in range(2):
            E = 28 + 2 * g + which
            e(f"  v_ffbl_b32 v{I0}, v{mcur}")
            e(f"  v_lshlrev_b32 v{T}, 4, v{I0}")
            e(f"  v_lshrrev_b64 v[{P0}:{P0+1}], v{T}, v[{lo}:{hi}]")
            e(f"  v_and_b32 v{A}, 0xffff, v{P0}")
            e(f"  v_and_b32 v{B}, 0x7fff, v{P0}")
            e(f"  v_min_u32 v{B}, v{B}, v{mcur}")
            e(f"  v_add_u32 v{C}, s12, v{I0}")
            e(f"  v_add_u32 v{C}, {4*g}, v{C}")
            e(f"  v_lshl_or_b32 v{C}, v{C}, 22, v44")
            e(f"  v_or_b32 v{C}, v{C}, v{A}")
            e(f"  v_cmp_ne_u32 vcc, 0, v{B}")
            if which == 0:
                e(f"  v_add_u32 v{T}, -1, v{M2}")
                e(f"  v_and_b32 v{M1}, v{M2}, v{T}")
            else:
                e("  s_nop 1")
            e(f"  v_cndmask_b32 v{E}, 0, v{C}, vcc")
            mcur = M1
        e(f"Lp_nores{g}:")
    for eh in range(2):
        e(f"  buffer_store_dwordx2 v[{20+2*eh}:{21+2*eh}], v42, s[20:23], s24 offen offset:{512*eh}")
        e(f"  v_lshl_or_b32 v{46+eh}, v{25+2*eh}, 4, v{24+2*eh}")
        e(f"  buffer_store_byte v{46+eh}, v43, s[20:23], s26 offen offset:{512*eh}")
    e("  s_mov_b32 s28, 0")
    for i in range(8):
        e(f"  v_cmp_ne_u32 s[{32+2*i}:{33+2*i}], 0, v{28+i}")
    e("  s_nop 3")
    for i in range(8):
        e(f"  s_bcnt1_i32_b64 s29, s[{32+2*i}:{33+2*i}]")
        e("  s_add_u32 s28, s28, s29")
    e("  v_mov_b32 v46, s28")
    e("  s_lshl_b32 s29, s3, 2")
    e("  v_mov_b32 v47, s29")
    e("  ds_write_b32 v47, v46")
    e("  v_mov_b32 v47, 0")
    e("  s_waitcnt lgkmcnt(0)")
    e("  s_barrier")
    e("  ds_read_b128 v[48:51], v47")
    e("  s_waitcnt lgkmcnt(0)")
    e("  s_mov_b32 s28, 0")
    e("  s_mov_b32 s30, 0")
    for i in range(4):
        e(f"  v_readfirstlane_b32 s29, v{48+i}")
        e("  s_add_u32 s30, s30, s29")
        e(f"  s_cmp_gt_u32 s3, {i}")
        e("  s_cselect_b32 s29, s29, 0")
        e("  s_add_u32 s28, s28, s29")
    e("  s_lshl_b32 s31, s2, 14")
    e(f"  s_add_u32 s31, s31, {LIST_OFF}")
    for i in range(8):
        lo, hi = 32 + 2 * i, 33 + 2 * i
        e(f"  s_cmp_eq_u64 s[{lo}:{hi}], 0")
        e(f"  s_cbranch_scc1 Lp_skip{i}")
        e(f"  v_mbcnt_lo_u32_b32 v46, s{lo}, 0")
        e(f"  v_mbcnt_hi_u32_b32 v46, s{hi}, v46")
        e("  v_add_u32 v46, s28, v46")
        e("  v_lshrrev_b32 v47, 1, v46")
        e("  v_lshlrev_b32 v47, 4, v47")
        e("  v_and_b32 v46, 1, v46")
        e("  v_lshl_add_u32 v48, v46, 2, v47")
        e("  v_lshl_add_u32 v49, v46, 1, v47")
        e(f"  v_lshrrev_b32 v50, 21, v{28+i}")
        e("  v_and_b32 v50, 0x7fe, v50")
        e(f"  v_bfe_u32 v51, v{28+i}, 16, 6")
        e(f"  s_mov_b64 exec, s[{lo}:{hi}]")
        e("  buffer_store_dword v50, v48, s[20:23], s31 offen")
        e(f"  buffer_store_short v{28+i}, v49, s[20:23], s31 offen offset:8")
        e("  buffer_store_short v51, v49, s[20:23], s31 offen offset:12")
        e("  s_mov_b64 exec, -1")
        e(f"  s_bcnt1_i32_b64 s29, s[{lo}:{hi}]")
        e("  s_add_u32 s28, s28, s29")
        e(f"Lp_skip{i}:")
    e("  s_cmp_lg_u32 s3, 0")
    e("  s_cbranch_scc1 Lp_end")
    e("  s_add_u32 s29, s30, 1")
    e("  s_lshr_b32 s29, s29, 1")
    e("  v_mov_b32 v51, s29")
    e("  v_mov_b32 v50, 0")
    e("  s_mov_b64 exec, 1")
    e("  s_bitcmp0_b32 s30, 0")
    e("  s_cbranch_scc1 Lp_nopad")
    e("  s_lshr_b32 s28, s30, 1")
    e("  s_lshl_b32 s28, s28, 4")
    e("  v_mov_b32 v48, s28")
    e("  buffer_store_dword v50, v48, s[20:23], s31 offen offset:4")
    e("  buffer_store_short v50, v48, s[20:23], s31 offen offset:10")
    e("  buffer_store_short v50, v48, s[20:23], s31 offen offset:14")
    e("Lp_nopad:")
    e("  s_lshl_b32 s29, s2, 2")
    e(f"  s_add_u32 s29, s29, {CNT_OFF}")
    e("  buffer_store_dword v51, v50, s[20:23], s29 offen")
    e("Lp_end:")
    e("  s_endpgm")


V_BF2 = 0
V_M, V_Q = 1, 2
V_DMA = 3
V_ST = 7
V_RB = 8
V_GX = 12
V_X0, V_X1, V_X2 = 13, 14, 15
V_IDX = 16
V_BIAS = 48
V_ACC = 64
V_B = 96
V_AP = 128
V_GB = 192
V_GT = 224
V_BP = 232
V_T = 236
V_SV = 244
V_AT = 228
V_LO16 = 232
V_LANE = 233
V_RIDX = 253
V_SVS = 244

S_X, S_OUT, S_WS, S_BIAS = 16, 20, 24, 28
S_W = 32
S_SLOT = 33
S_DGOFF = 36
S_OOFF = 37
S_CNT = 38
S_NG = 39
S_C0 = 80
S_PF, S_DD = 44, 45
S_LB = 51
S_T0, S_T1, S_T2 = 52, 53, 54
S_ROWB = 56
S_G = 57
S_DC = 59
S_M0R = 60
S_K1, S_KM1 = 64, 65
S_EV = 48
S_AOFF = 66
S_STAMP = 70


class I:
    def __init__(self, text, lds=None, vm=None, opt=False, wl=None, wv=None):
        self.text, self.lds, self.vm, self.opt, self.wl, self.wv = text, lds, vm, opt, wl, wv
        self.nl = None
        self.nv = None


def W(wl=None, wv=None):
    return I("WAIT", wl=wl, wv=wv)


def stamp(i):
    if DBG and i == 0:
        return [I("  s_memrealtime s[98:99]"), I(f"  s_memtime s[68:69]"), I("  s_waitcnt lgkmcnt(0)"), I(f"  s_mov_b32 s{S_STAMP+i}, s68")]
    if DBG:
        return [I("  s_memtime s[68:69]"), I("  s_waitcnt lgkmcnt(0)"), I(f"  s_mov_b32 s{S_STAMP+i}, s68")]
    return []


V_UT = 254
V_PK = 252
V_PV = 235


def unit_table(L, vu):
    L.append(I(f"  v_lshlrev_b32 v{V_UT}, 4, v{vu}"))
    L.append(I(f"  s_mov_b32 s{S_PF}, -1"))
    for t in range(1, 16):
        L.append(I(f"  s_add_u32 s{S_PF}, s{S_PF}, s{S_C0+t-1}"))
        L.append(I(f"  s_lshl_b32 s{S_DD}, s{S_C0+t-1}, 4"))
        L.append(I(f"  s_sub_u32 s{S_DD}, {CAPB}, s{S_DD}"))
        L.append(I(f"  v_sub_u32 v{V_X2}, s{S_PF}, v{vu}"))
        L.append(I(f"  v_ashrrev_i32 v{V_X2}, 31, v{V_X2}"))
        L.append(I(f"  v_and_b32 v{V_X2}, s{S_DD}, v{V_X2}"))
        L.append(I(f"  v_add_u32 v{V_UT}, v{V_UT}, v{V_X2}"))
    L.append(I(f"  s_add_u32 s{S_PF}, s{S_PF}, s{S_C0+15}"))
    L.append(I(f"  v_sub_u32 v{V_X2}, s{S_PF}, v{vu}"))
    L.append(I(f"  v_ashrrev_i32 v{V_X2}, 31, v{V_X2}"))
    L.append(I(f"  v_and_b32 v{V_X2}, {OOB}, v{V_X2}"))
    L.append(I(f"  v_or_b32 v{V_UT}, v{V_UT}, v{V_X2}"))


def afrag(L, fs, vvff, dst):
    cst = 32 * (fs >> 1) + 4 * (fs & 1)
    cst2 = cst | (cst << 16)
    for dd in range(4):
        vv, ff = vvff + 2 * dd, vvff + 2 * dd + 1
        d = dst + dd
        if cst2:
            L.append(I(f"  v_xor_b32 v{d}, {cst2}, v{ff}"))
            L.append(I(f"  v_pk_min_u16 v{d}, v{d}, s{S_K1}"))
        else:
            L.append(I(f"  v_pk_min_u16 v{d}, v{ff}, s{S_K1}"))
        L.append(I(f"  v_pk_add_u16 v{d}, v{d}, s{S_KM1}"))
        L.append(I(f"  v_and_b32 v{d}, v{d}, v{vv}"))


def dma_part(part, slot, rel):
    i, hh = part >> 1, part & 1
    L = []
    if hh == 0:
        L.append(I(f"  s_add_u32 m0, s{S_M0R+i}, {slot*2048}"))
        L.append(I("  s_nop 0"))
    L.append(I(f"  buffer_load_dwordx4 v{V_DMA+i}, s[{S_X}:{S_X+3}], s{S_DGOFF} offen offset:{hh*1024}{DMAF} lds",
               vm=("D", rel)))
    return L


def dma_advance():
    return [I(f"  s_add_u32 s{S_DC}, s{S_DC}, 1"),
            I(f"  s_add_u32 s{S_DGOFF}, s{S_DGOFF}, 32768"),
            I(f"  s_cmp_ge_u32 s{S_DC}, {NCHUNK}"),
            I(f"  s_cselect_b32 s{S_DGOFF}, {OOB}, s{S_DGOFF}")]


def rd(ks, slot, rel):
    p = ks & 1
    b = V_B + 8 * (ks & 3)
    off = slot * 2048 + (ks >> 1) * 256
    return [I(f"  ds_read_b128 v[{b}:{b+3}], v{V_RB+2*p} offset:{off}", lds=("R", ks, rel)),
            I(f"  ds_read_b128 v[{b+4}:{b+7}], v{V_RB+2*p+1} offset:{off}", lds=("R", ks, rel))]


def gtb(g):
    return V_GT if g & 1 == 0 else V_SV


def gather(g, slot, rel, opt=False):
    return [I(f"  ds_read_u16 v{gtb(g)+jj}, v{V_GB+8*g+jj} offset:{slot*2048}", lds=("G", g, rel), opt=opt)
            for jj in range(8)]


def res_comb(g):
    return [I(f"  v_lshl_or_b32 v{gtb(g)+2*d}, v{gtb(g)+2*d+1}, 16, v{gtb(g)+2*d}") for d in range(4)]


def res_mfma(g, acc):
    return [I(f"  v_smfmac_f32_16x16x64_bf16 v[{acc+4*fs}:{acc+4*fs+3}], v[{V_AP+16*g+4*fs}:{V_AP+16*g+4*fs+3}], "
              f"v[{gtb(g)}:{gtb(g)+7}], v{V_RIDX}") for fs in range(4)]


def touch(c):
    if c >= 16:
        return []
    return [I(f"  s_add_u32 s47, s46, {c*32768}"),
            I(f"  buffer_load_dword v232, v235, s[{S_X}:{S_X+3}], s47 offen{TCF}", vm=("T", 0))]


def acc_init(acc):
    return [I(f"  v_mov_b32 v{acc+j}, v{V_BIAS+j}") for j in range(16)]


V_SW = 232


def epilogue(acc):
    L = []
    for j in range(2):
        for d in range(4):
            fs = 2 * j + (d >> 1)
            r = 2 * (d & 1)
            L.append(I(f"  v_cvt_pk_bf16_f32 v{V_T+4*j+d}, v{acc+4*fs+r}, v{acc+4*fs+r+1}"))
    L.append(I(f"  s_mov_b64 vcc, s[{S_EV}:{S_EV+1}]"))
    for d in range(4):
        L.append(I(f"  v_cndmask_b32_dpp v{V_SW+d}, v{V_T+4+d}, v{V_T+d}, vcc quad_perm:[1,0,3,2] row_mask:0xf bank_mask:0xf"))
    L.append(I(f"  buffer_store_dwordx4 v[{V_SW}:{V_SW+3}], v{V_ST}, s[{S_OUT}:{S_OUT+3}], s{S_OOFF} offen{STF}", vm=("S", 0)))
    L.append(I(f"  s_not_b64 vcc, s[{S_EV}:{S_EV+1}]"))
    L.append(I("  s_nop 0"))
    for d in range(4):
        L.append(I(f"  v_cndmask_b32_dpp v{V_SW+d}, v{V_T+d}, v{V_T+4+d}, vcc quad_perm:[1,0,3,2] row_mask:0xf bank_mask:0xf"))
    L.append(I(f"  buffer_store_dwordx4 v[{V_SW}:{V_SW+3}], v{V_ST}, s[{S_OUT}:{S_OUT+3}], s{S_OOFF} offen offset:2048{STF}", vm=("S", 0)))
    L.append(I(f"  s_add_u32 s{S_OOFF}, s{S_OOFF}, 32768"))
    return L


def a_load(ks):
    L = []
    for fs in range(4):
        a = (ks * 4 + fs) * 4
        L.append(I(f"  buffer_load_dwordx4 a[{a}:{a+3}], v{V_LO16A}, s[{S_WS}:{S_WS+3}], s{S_AOFF} offen offset:{fs*1024}{ALF}",
                   vm=("A", ks)))
    L.append(I(f"  s_add_u32 s{S_AOFF}, s{S_AOFF}, 4096"))
    return L


V_LO16A = 255
A_PRE = int(os.environ.get("A_PRE","6"))


def body(name, slot, buf, prev_epi, own_epi, first=False):
    X = V_ACC + 16 * buf
    Y = V_ACC + 16 * (1 - buf)
    nslot = (slot + 1) % NSLOT
    L = []
    for ks in range(16):
        pre, fill, post, early = [], [], [], []
        if ks == 13:
            pre = [W(wv=("D", 1)), I("  s_barrier")] if not int(os.environ.get("NOWAIT", "0")) else [I("  s_barrier")]
        if ks + 3 < 16:
            fill += rd(ks + 3, slot, 0)
        else:
            fill += rd(ks + 3 - 16, nslot, 1)
        if prev_epi:
            ep = epilogue(Y)
            ini = acc_init(Y)
            if ks == 4:
                fill += ep[:8]
            if ks == 5:
                fill += ep[8:14]
            if ks == 8:
                fill += ep[14:]
            if ks in (11, 14):
                fill += ini[:8] if ks == 11 else ini[8:]
        if not first:
            part = (ks - 13) % 16
            if part < 8 and not NODMA:
                if ks >= 13:
                    fill += dma_part(part, (slot + 4) % NSLOT, 4)
                else:
                    fill += dma_part(part, (slot + 3) % NSLOT, 3)
                if part == 7:
                    fill += dma_advance()
        else:
            if ks + A_PRE < 16:
                fill += a_load(ks + A_PRE)
            if TCH and ks == 6:
                fill += touch(TCH + 8)
            if 4 <= ks < 12:
                c = 2 + (ks - 4) // 4
                for part in (2 * ((ks - 4) % 4), 2 * ((ks - 4) % 4) + 1):
                    fill += dma_part(part, c, c)
                    if part == 7:
                        fill += dma_advance()
            if ks >= 13:
                fill += dma_part(ks - 13, 4, 4)
        if TD and ks == 10:
            fill += [I(f"  s_cmp_ge_u32 s47, {NCHUNK}"),
                     I(f"  s_cselect_b32 s{S_T0}, {OOB}, s46"),
                     I(f"  buffer_load_dword v{V_X2}, v{V_Q}, s[{S_X}:{S_X+3}], s{S_T0} offen{TCF}", vm=("T", 0)),
                     I("  s_add_u32 s46, s46, 32768"),
                     I("  s_add_u32 s47, s47, 1")]
        if not NORES:
            n, ph = divmod(ks, 3)
            if n < 4 and ph < 2:
                fill += gather(n, slot, 0)[4 * ph:4 * ph + 4]
            if ks >= 3 and ph == 0 and n - 1 < 4:
                early = [W(wl=("G", n - 1, 0))] + res_comb(n - 1)
                post += res_mfma(n - 1, X)
            if ks == 12:
                post += [I(f"  s_cmp_gt_u32 s{S_NG}, 4"), I(f"  s_cbranch_scc1 Lslow_{name}"), I(f"Lslowback_{name}:")]
        L += pre
        L.append(W(wl=("R", ks, 0), wv=("A", ks) if first else None))
        mf = []
        for fs in range(4):
            a = (ks * 4 + fs) * 4
            b = V_B + 8 * (ks & 3)
            mf.append(I(f"  v_smfmac_f32_16x16x64_bf16 v[{X+4*fs}:{X+4*fs+3}], a[{a}:{a+3}], v[{b}:{b+7}], "
                        f"v{V_IDX+fs*8+(ks>>1)}" + (" abid:1" if ks & 1 else "")))
        fill = early + fill
        n_ = len(fill)
        per = [(n_ + 3 - i) // 4 for i in range(4)]
        pos = 0
        for i in range(4):
            L.append(mf[i])
            L += fill[pos:pos + per[i]]
            pos += per[i]
        L += post
    if own_epi:
        ep = epilogue(X)
        L += [I("  s_nop 7")] + ep[:8] + [I("  s_nop 1")] + ep[8:] + acc_init(X) + [I("  s_nop 1")]
    return L


def slow_path(name, slot, buf, first=False):
    X = V_ACC + 16 * buf
    L = []
    L.append(I(f"Lslow_{name}:"))
    L.append(I(f"  s_mov_b32 s{S_G}, {NRES}"))
    L.append(I(f"Lslowloop_{name}:"))
    L.append(I(f"  v_mbcnt_lo_u32_b32 v{V_X0}, -1, 0"))
    L.append(I(f"  v_mbcnt_hi_u32_b32 v{V_X0}, -1, v{V_X0}"))
    L.append(I(f"  s_lshl_b32 s{S_T0}, s{S_G}, 4"))
    L.append(I(f"  v_add_u32 v{V_X0}, s{S_T0}, v{V_X0}"))
    unit_table(L, V_X0)
    for i in range(4):
        L.append(I(f"  ds_bpermute_b32 v{V_GT+i}, v{V_PK}, v{V_UT} offset:{4*i}"))
    L.append(I("  s_waitcnt lgkmcnt(0)"))
    for i in range(4):
        L.append(I(f"  buffer_load_dwordx2 v[{V_T+2*i}:{V_T+2*i+1}], v{V_GT+i}, s[{S_WS}:{S_WS+3}], s{S_LB} offen"))
        L.append(I(f"  buffer_load_dwordx2 v[{V_SVS+2*i}:{V_SVS+2*i+1}], v{V_GT+i}, s[{S_WS}:{S_WS+3}], s{S_LB} offen offset:8"))
    L.append(I("  s_waitcnt vmcnt(0)"))
    for jj in range(8):
        L.append(I(f"  v_xor_b32 v{V_T+jj}, v{V_T+jj}, v{V_GX}"))
    for jj in range(8):
        L.append(I(f"  ds_read_u16 v{V_GT+jj}, v{V_T+jj} offset:{slot*2048}"))
    for i in range(4):
        L.append(I(f"  v_xor_b32 v{V_SVS+2*i+1}, v{V_SVS+2*i+1}, v{V_BF2}"))
    L.append(I("  s_waitcnt lgkmcnt(0)"))
    for d in range(4):
        L.append(I(f"  v_lshl_or_b32 v{V_BP+d}, v{V_GT+2*d+1}, 16, v{V_GT+2*d}"))
    for fs in range(4):
        afrag(L, fs, V_SVS, V_AT)
        L.append(I("  s_nop 1"))
        L.append(I(f"  v_mfma_f32_16x16x32_bf16 v[{X+4*fs}:{X+4*fs+3}], v[{V_AT}:{V_AT+3}], v[{V_BP}:{V_BP+3}], v[{X+4*fs}:{X+4*fs+3}]"))
        L.append(I("  s_nop 7"))
    L.append(I(f"  s_add_u32 s{S_G}, s{S_G}, 1"))
    L.append(I(f"  s_cmp_lt_u32 s{S_G}, s{S_NG}"))
    L.append(I(f"  s_cbranch_scc1 Lslowloop_{name}"))
    L.append(I(f"  s_branch Lslowback_{name}"))
    return L


def resolve(seq):
    lds, vm = [], []
    for blk, c in seq:
        for ins in blk:
            if ins.lds is not None:
                t = ins.lds
                lds.append(((t[0], t[1], c + t[2]), ins.opt))
            if ins.vm is not None:
                t = ins.vm
                vm.append(((t[0], t[1] + (c if t[0] in ("D",) else 0)), ins.opt))
            if ins.text == "WAIT":
                if ins.wl is not None:
                    key = (ins.wl[0], ins.wl[1], c + ins.wl[2])
                    n, found = 0, False
                    for tag, opt in reversed(lds):
                        if tag == key:
                            found = True
                            break
                        if not opt:
                            n += 1
                    assert found, (key, c)
                    n = min(n, 15)
                    ins.nl = n if ins.nl is None else min(ins.nl, n)
                if ins.wv is not None:
                    key = (ins.wv[0], ins.wv[1] + (c if ins.wv[0] in ("D",) else 0))
                    n, found = 0, False
                    for tag, opt in reversed(vm):
                        if tag == key:
                            found = True
                            break
                        if not opt:
                            n += 1
                    assert found or NODMA, (key, c)
                    n = min(n, 63)
                    ins.nv = n if ins.nv is None else min(ins.nv, n)


def emit(blk):
    for ins in blk:
        if ins.text == "WAIT":
            parts = []
            if ins.nv is not None:
                parts.append(f"vmcnt({ins.nv})")
            if ins.nl is not None:
                parts.append(f"lgkmcnt({ins.nl})")
            e("  s_waitcnt " + " ".join(parts))
        else:
            e(ins.text)


def gen_main():
    e(f".globl {KNAME}")
    e(".p2align 8")
    e(f".type {KNAME},@function")
    e(f"{KNAME}:")
    P = []

    def p(t, **kw):
        P.append(I(t, **kw))

    p("  s_cmp_ge_u32 s2, 256")
    p("  s_cbranch_scc1 Lm_end")
    P.extend(stamp(0))
    p("  s_load_dwordx4 s[4:7], s[0:1], 0")
    p("  s_load_dwordx4 s[8:11], s[0:1], 16")
    p("  s_load_dwordx2 s[14:15], s[0:1], 40")
    p("  v_lshrrev_b32 v3, 6, v0")
    p(f"  v_and_b32 v{V_LANE}, 63, v0")
    p(f"  v_readfirstlane_b32 s{S_W}, v3")
    p(f"  v_and_b32 v{V_M}, 15, v{V_LANE}")
    p(f"  v_lshrrev_b32 v{V_Q}, 4, v{V_LANE}")
    p(f"  v_lshlrev_b32 v{V_LO16A}, 4, v{V_LANE}")
    p(f"  s_and_b32 s{S_T0}, s2, 7")
    p(f"  s_lshr_b32 s{S_T1}, s2, 3")
    p(f"  s_and_b32 s{S_T2}, s{S_T1}, 3")
    p(f"  s_lshr_b32 s{S_T1}, s{S_T1}, 2")
    if int(os.environ.get("RBM", "0")):
        p(f"  s_lshl_b32 s{S_T0}, s{S_T0}, 3")
    else:
        p(f"  s_lshl_b32 s{S_T1}, s{S_T1}, 3")
    p(f"  s_add_u32 s{S_T1}, s{S_T1}, s{S_T0}")
    p(f"  s_lshl_b32 s{S_ROWB}, s{S_T1}, 19")
    p(f"  s_lshl_b32 s{S_SLOT}, s{S_T2}, 2")
    p(f"  s_add_u32 s{S_SLOT}, s{S_SLOT}, s{S_W}")
    p(f"  s_mul_i32 s{S_M0R}, s{S_W}, {4*ROWB}")
    for i in range(1, 4):
        p(f"  s_add_u32 s{S_M0R+i}, s{S_M0R}, {i*ROWB}")
    p(f"  s_mov_b32 s{S_K1}, 0x00010001")
    p(f"  s_mov_b32 s{S_KM1}, -1")
    for i in range(4):
        p(f"  s_lshl_b32 s{S_T0}, s{S_W}, 2")
        p(f"  s_add_u32 s{S_T0}, s{S_T0}, {i}")
        p(f"  v_xor_b32 v{V_X0}, s{S_T0}, v{V_LANE}")
        p(f"  v_and_b32 v{V_X0}, 15, v{V_X0}")
        p(f"  v_and_or_b32 v{V_X0}, v{V_LANE}, 48, v{V_X0}")
        p(f"  v_lshlrev_b32 v{V_X0}, 4, v{V_X0}")
        p(f"  s_lshl_b32 s{S_T1}, s{S_T0}, 11")
        p(f"  v_add_u32 v{V_DMA+i}, s{S_T1}, v{V_X0}")
    p("  s_waitcnt lgkmcnt(0)")
    for (srd, lo, size) in ((S_X, 4, 1 << 25), (S_OUT, 10, 1 << 25), (S_WS, 14, WS_USED), (S_BIAS, 8, 2048)):
        p(f"  s_mov_b32 s{srd}, s{lo}")
        p(f"  s_mov_b32 s{srd+1}, s{lo+1}")
        p(f"  s_mov_b32 s{srd+2}, {size}")
        p(f"  s_mov_b32 s{srd+3}, 0x00020000")
    p(f"  s_lshl_b32 s{S_T0}, s{S_SLOT}, 6")
    p(f"  s_add_u32 s{S_T0}, s{S_T0}, {CNT_OFF}")
    p(f"  s_load_dwordx16 s[{S_C0}:{S_C0+15}], s[14:15], s{S_T0}")
    p(f"  s_mov_b32 s{S_DGOFF}, s{S_ROWB}")
    p(f"  s_mov_b32 s{S_DC}, 0")
    for part in range(8):
        P.extend(dma_part(part, 0, 0))
    P.extend(dma_advance())
    if TCH:
        p(f"  v_lshrrev_b32 v{V_X0}, 4, v{V_LANE}")
        p(f"  v_lshlrev_b32 v{V_X0}, 11, v{V_X0}")
        p(f"  v_lshl_or_b32 v{V_X0}, v{V_M}, 7, v{V_X0}")
        p(f"  s_lshr_b32 s{S_T0}, s{S_SLOT}, 2")
        p(f"  s_lshl_b32 s{S_T0}, s{S_T0}, 13")
        p(f"  s_add_u32 s{S_T0}, s{S_T0}, s{S_ROWB}")
        p(f"  s_lshl_b32 s{S_T1}, s{S_W}, 15")
        p(f"  s_add_u32 s{S_T0}, s{S_T0}, s{S_T1}")
        p(f"  v_mov_b32 v235, v{V_X0}")
        p(f"  s_mov_b32 s46, s{S_T0}")
        P.extend(touch(TCH))
    p(f"  s_lshl_b32 s{S_T0}, s{S_SLOT}, 13")
    p(f"  s_add_u32 s{S_T0}, s{S_T0}, {IDX_OFF}")
    for j in range(8):
        if j == 4:
            p(f"  s_add_u32 s{S_T0}, s{S_T0}, 4096")
        p(f"  buffer_load_dwordx4 v[{V_IDX+4*j}:{V_IDX+4*j+3}], v{V_LO16A}, s[{S_WS}:{S_WS+3}], s{S_T0} offen offset:{(j&3)*1024}{ALF}",
          vm=("I", 0))
    p(f"  v_lshlrev_b32 v{V_X0}, 4, v{V_Q}")
    p(f"  s_lshl_b32 s{S_T0}, s{S_SLOT}, 7")
    for j in range(2):
        p(f"  buffer_load_dwordx4 v[{V_GT+4*j}:{V_GT+4*j+3}], v{V_X0}, s[{S_BIAS}:{S_BIAS+3}], s{S_T0} offen offset:{64*j}",
          vm=("B", 0))
    p(f"  s_lshl_b32 s{S_AOFF}, s{S_SLOT}, 16")
    for ks in range(3):
        P.extend(a_load(ks))
    p(f"  v_and_b32 v{V_ST}, 14, v{V_M}")
    p(f"  v_lshlrev_b32 v{V_ST}, 11, v{V_ST}")
    p(f"  v_lshl_add_u32 v{V_ST}, v{V_Q}, 4, v{V_ST}")
    p(f"  v_and_b32 v{V_X0}, 1, v{V_M}")
    p(f"  v_lshl_add_u32 v{V_ST}, v{V_X0}, 6, v{V_ST}")
    p(f"  s_mov_b32 s{S_EV}, 0x55555555")
    p(f"  s_mov_b32 s{S_EV+1}, 0x55555555")
    p(f"  s_movk_i32 s{S_T0}, {ROWB}")
    p(f"  v_mul_lo_u32 v{V_X1}, v{V_M}, s{S_T0}")
    for pp in range(2):
        for h in range(2):
            p(f"  v_lshlrev_b32 v{V_X0}, 1, v{V_Q}")
            p(f"  v_add_u32 v{V_X0}, {pp*8+h}, v{V_X0}")
            p(f"  v_xor_b32 v{V_X0}, v{V_X0}, v{V_M}")
            p(f"  v_lshl_add_u32 v{V_RB+2*pp+h}, v{V_X0}, 4, v{V_X1}")
    p(f"  v_lshl_or_b32 v{V_GX}, v{V_M}, 4, v{V_X1}")
    p(f"  v_mov_b32 v{V_RIDX}, 0x44444444")
    p(f"  v_lshlrev_b32 v{V_PK}, 4, v{V_Q}")
    p(f"  v_and_b32 v{V_PV}, 1, v{V_Q}")
    p(f"  v_lshlrev_b32 v{V_PV}, 5, v{V_PV}")
    p(f"  v_lshrrev_b32 v{V_X0}, 1, v{V_Q}")
    p(f"  v_lshl_or_b32 v{V_PV}, v{V_X0}, 3, v{V_PV}")
    p(f"  v_lshrrev_b32 v{V_X0}, 2, v{V_M}")
    p(f"  v_and_b32 v{V_BF2}, 3, v{V_M}")
    p(f"  v_lshl_or_b32 v{V_BF2}, v{V_X0}, 3, v{V_BF2}")
    p(f"  v_lshl_or_b32 v{V_BF2}, v{V_BF2}, 16, v{V_BF2}")
    p("  s_waitcnt lgkmcnt(0)")
    unit_table(P, V_LANE)
    p(f"  s_add_u32 s{S_NG}, s{S_PF}, 16")
    p(f"  s_lshr_b32 s{S_NG}, s{S_NG}, 4")
    p(f"  s_lshl_b32 s{S_LB}, s{S_SLOT}, 18")
    p(f"  s_add_u32 s{S_LB}, s{S_LB}, {LIST_OFF}")
    for g in range(NRES):
        for i in range(4):
            p(f"  ds_bpermute_b32 v{V_AP+8*g+i}, v{V_PK}, v{V_UT} offset:{64*g+4*i}")
            if True:
                p(f"  ds_bpermute_b32 v{V_AP+8*g+4+i}, v{V_PV}, v{V_UT} offset:{64*g+16*(i>>1)+4*(i&1)}")
    p("  s_waitcnt lgkmcnt(0)")
    for g in range(NRES):
        for i in range(4):
            p(f"  buffer_load_dwordx2 v[{V_GB+8*g+2*i}:{V_GB+8*g+2*i+1}], v{V_AP+8*g+i}, s[{S_WS}:{S_WS+3}], s{S_LB} offen",
              vm=("U", g))
            av = V_AP + 8 * g + 4 + i
            p(f"  buffer_load_dwordx2 v[{V_B+8*g+2*i}:{V_B+8*g+2*i+1}], v{av}, s[{S_WS}:{S_WS+3}], s{S_LB} offen offset:8",
              vm=("U", g))
    for ks in range(3, A_PRE):
        P.extend(a_load(ks))
    for part in range(8):
        P.extend(dma_part(part, 1, 1))
    P.extend(dma_advance())
    if TCH:
        P.extend(touch(TCH + 4))
    P.extend(stamp(1))
    P.append(W(wv=("B", 0)))
    for j in range(2):
        for d in range(4):
            fs = 2 * j + (d >> 1)
            r = 2 * (d & 1)
            p(f"  v_lshlrev_b32 v{V_BIAS+4*fs+r}, 16, v{V_GT+4*j+d}")
            p(f"  v_and_b32 v{V_BIAS+4*fs+r+1}, 0xffff0000, v{V_GT+4*j+d}")
    for g in range(NRES):
        P.append(W(wv=("U", g)))
        for jj in range(8):
            p(f"  v_xor_b32 v{V_GB+8*g+jj}, v{V_GB+8*g+jj}, v{V_GX}")
        for i in range(4):
            r = V_B + 8 * g + 2 * i + 1
            p(f"  v_xor_b32 v{r}, v{r}, v{V_BF2}")
        for fs in range(4):
            afrag(P, fs, V_B + 8 * g, V_AP + 16 * g + 4 * fs)
    P.extend(acc_init(V_ACC))
    P.extend(acc_init(V_ACC + 16))
    if TD:
        p(f"  v_lshlrev_b32 v{V_Q}, 7, v{V_M}")
        p(f"  s_lshl_b32 s46, s{S_SLOT}, 11")
        p(f"  s_add_u32 s46, s46, s{S_ROWB}")
        p(f"  s_add_u32 s46, s46, {TD*32768}")
        p(f"  s_mov_b32 s47, {TD}")
    P.extend(stamp(2))
    P.append(W(wv=("D", 0)))
    p("  s_barrier")
    p(f"  s_lshl_b32 s{S_OOFF}, s{S_SLOT}, 7")
    p(f"  s_add_u32 s{S_OOFF}, s{S_OOFF}, s{S_ROWB}")
    p(f"  s_mov_b32 s{S_CNT}, 0")
    P.extend(rd(0, 0, 0))
    P.extend(rd(1, 0, 0))
    P.extend(rd(2, 0, 0))
    P.extend(stamp(3))

    F = body("f", 0, 0, False, True, first=True)
    F.extend(stamp(4))
    slots = [1, 2, 3, 4, 0]
    bufs = [1, 0, 1, 0, 1]
    LB = []
    for i, (sl, bf) in enumerate(zip(slots, bufs)):
        LB.append(body(f"b{i}", sl, bf, i > 0, i == 4))
    seq = [(P, 0), (F, 0)]
    c = 1
    for it in range(3):
        for blk in LB:
            seq.append((blk, c))
            c += 1
    resolve(seq)
    emit(P)
    emit(F)
    e("Lloop:")
    for blk in LB:
        emit(blk)
    e(f"  s_add_u32 s{S_CNT}, s{S_CNT}, 1")
    e(f"  s_cmp_lt_u32 s{S_CNT}, 3")
    e("  s_cbranch_scc1 Lloop")
    if DBG:
        emit(stamp(5))
        e("  s_waitcnt vmcnt(0)")
        emit(stamp(6))
        e("  s_memrealtime s[100:101]")
        e("  s_load_dwordx2 s[12:13], s[0:1], 32")
        e("  s_waitcnt lgkmcnt(0)")
        e("  s_mov_b32 s84, s12")
        e("  s_mov_b32 s85, s13")
        e("  s_mov_b32 s86, 256")
        e("  s_mov_b32 s87, 0x00020000")
        e("  s_and_b32 s88, s2, 63")
        e("  s_cmp_lg_u32 s88, 0")
        e("  s_cbranch_scc1 Lm_end")
        e(f"  s_cmp_lg_u32 s{S_W}, 0")
        e("  s_cbranch_scc1 Lm_end")
        e("  s_lshr_b32 s88, s2, 6")
        e("  s_lshl_b32 s88, s88, 5")
        e("  v_mov_b32 v1, 0")
        e("  s_mov_b64 exec, 1")
        for i in range(7):
            if i:
                e(f"  s_sub_u32 s68, s{S_STAMP+i}, s{S_STAMP}")
            else:
                e(f"  s_mov_b32 s68, s{S_STAMP}")
            e("  v_mov_b32 v2, s68")
            e(f"  buffer_store_dword v2, v1, s[84:87], s88 offen offset:{4*i}")
        e("  s_sub_u32 s100, s100, s98")
        e("  v_mov_b32 v2, s100")
        e("  buffer_store_dword v2, v1, s[84:87], s88 offen offset:28")
    e("Lm_end:")
    e("  s_endpgm")
    if not NORES:
        emit(slow_path("f", 0, 0, first=True))
        for i, (sl, bf) in enumerate(zip(slots, bufs)):
            emit(slow_path(f"b{i}", sl, bf))


def main():
    e("; Kernarg layout: 0 x, 8 w, 16 b, 24 out, 32 debug, 40 ws")
    e("; @launch kernel=prep_kernel grid=(256,1,1) block=(256,1,1) lds=256")
    e(f"; @launch kernel={KNAME} grid=(256,1,1) block=(256,1,1) lds={16*ROWB}")
    e('.amdgcn_target "amdgcn-amd-amdhsa--gfx950"')
    e(".text")
    gen_prep()
    gen_main()
    e('.section .rodata,"a"')
    e(".p2align 6")
    e(".amdhsa_kernel prep_kernel")
    e("  .amdhsa_next_free_vgpr 64")
    e("  .amdhsa_next_free_sgpr 64")
    e("  .amdhsa_accum_offset 64")
    e("  .amdhsa_group_segment_fixed_size 0")
    e("  .amdhsa_kernarg_size 48")
    e("  .amdhsa_user_sgpr_count 2")
    e("  .amdhsa_user_sgpr_kernarg_segment_ptr 1")
    e("  .amdhsa_system_sgpr_workgroup_id_x 1")
    e(".end_amdhsa_kernel")
    e(".p2align 6")
    e(f".amdhsa_kernel {KNAME}")
    e("  .amdhsa_next_free_vgpr 512")
    e("  .amdhsa_next_free_sgpr 102")
    e("  .amdhsa_accum_offset 256")
    e("  .amdhsa_group_segment_fixed_size 0")
    e("  .amdhsa_kernarg_size 48")
    e("  .amdhsa_user_sgpr_count 2")
    e("  .amdhsa_user_sgpr_kernarg_segment_ptr 1")
    e("  .amdhsa_system_sgpr_workgroup_id_x 1")
    e(".end_amdhsa_kernel")
    path = sys.argv[1] if len(sys.argv) > 1 else "standalone__structured_sparse_n_m__ragged.s"
    open(path, "w").write("\n".join(out) + "\n")


if __name__ == "__main__":
    main()
```

```python
import sys, os

DBG = int(os.environ.get("DBG", "0"))
NODMA = int(os.environ.get("NODMA", "0"))
NORES = int(os.environ.get("NORES", "0"))
NOST = int(os.environ.get("NOST", "0"))
DMAF = os.environ.get("DMAF", " nt")
WLF = os.environ.get("WLF", " nt")
ALF = os.environ.get("ALF", "")
STF = os.environ.get("STF", " nt")
TCH = int(os.environ.get("TCH", "0"))
TCF = os.environ.get("TCF", "")
TD = int(os.environ.get("TD", "0"))
PT0 = int(os.environ.get("PT0", "0"))
PTN = int(os.environ.get("PTN", "0"))

KNAME = "standalone__structured_sparse_n_m__ragged_kernel"

A_OFF = 0
IDX_OFF = 1 << 20
CNT_OFF = (1 << 20) + (128 << 10)
LIST_OFF = 2 << 20
CAPB = 16384
WS_USED = 8 << 20

NSLOT = 5
ROWB = NSLOT * 2048
NCHUNK = 16
OOB = 0x40000000
NRES = 4

out = []


def e(s=""):
    out.append(s)


def gen_prep():
    e(".globl prep_kernel")
    e(".p2align 8")
    e(".type prep_kernel,@function")
    e("prep_kernel:")
    e("  s_cmp_ge_u32 s2, 256")
    e("  s_cbranch_scc1 Lp_end")
    e("  s_load_dwordx2 s[4:5], s[0:1], 8")
    e("  s_load_dwordx2 s[6:7], s[0:1], 40")
    e("  v_lshrrev_b32 v1, 6, v0")
    e("  v_and_b32 v2, 63, v0")
    e("  v_readfirstlane_b32 s3, v1")
    e("  s_lshr_b32 s8, s2, 4")
    e("  s_and_b32 s10, s2, 15")
    e("  s_mov_b32 s11, s3")
    e("  s_lshl_b32 s12, s10, 6")
    e("  s_lshl_b32 s13, s11, 4")
    e("  s_add_u32 s12, s12, s13")
    e("  s_lshl_b32 s13, s12, 11")
    e("  s_lshl_b32 s14, s8, 7")
    e("  s_add_u32 s13, s13, s14")
    e("  v_lshlrev_b32 v3, 1, v2")
    e("  s_waitcnt lgkmcnt(0)")
    e("  s_mov_b32 s16, s4")
    e("  s_mov_b32 s17, s5")
    e("  s_mov_b32 s18, 0x200000")
    e("  s_mov_b32 s19, 0x00020000")
    e("  s_mov_b32 s20, s6")
    e("  s_mov_b32 s21, s7")
    e(f"  s_mov_b32 s22, {WS_USED}")
    e("  s_mov_b32 s23, 0x00020000")
    for i in range(8):
        e(f"  buffer_load_ushort v{4+i}, v3, s[16:19], s13 offen{WLF}")
        e(f"  buffer_load_ushort v{12+i}, v3, s[16:19], s13 offen offset:2048{WLF}")
        if i < 7:
            e("  s_add_u32 s13, s13, 4096")
    if PTN:
        e("  s_load_dwordx2 s[48:49], s[0:1], 0")
        e("  s_and_b32 s52, s2, 7")
        e("  s_lshr_b32 s53, s2, 3")
        e("  s_and_b32 s54, s53, 3")
        e("  s_lshr_b32 s53, s53, 2")
        e("  s_lshl_b32 s53, s53, 3")
        e("  s_add_u32 s53, s53, s52")
        e("  s_lshl_b32 s53, s53, 19")
        e("  s_lshl_b32 s54, s54, 13")
        e("  s_add_u32 s53, s53, s54")
        e("  s_lshl_b32 s54, s3, 15")
        e("  s_add_u32 s53, s53, s54")
        e("  v_lshrrev_b32 v38, 4, v2")
        e("  v_lshlrev_b32 v38, 11, v38")
        e("  v_and_b32 v39, 15, v2")
        e("  v_lshl_or_b32 v38, v39, 7, v38")
        e("  s_waitcnt lgkmcnt(0)")
        e("  s_mov_b32 s50, 0x2000000")
        e("  s_mov_b32 s51, 0x00020000")
        for r in range(PTN):
            e(f"  s_add_u32 s54, s53, {(PT0+4*r)*32768}")
            e(f"  buffer_load_dword v39, v38, s[48:51], s54 offen{TCF}")
    e("  v_lshrrev_b32 v40, 5, v2")
    e("  v_bfe_u32 v41, v2, 2, 1")
    e("  v_lshl_or_b32 v40, v40, 1, v41")
    e("  v_bfe_u32 v41, v2, 3, 2")
    e("  v_and_b32 v42, 3, v2")
    e("  v_lshl_or_b32 v41, v41, 2, v42")
    e("  v_lshlrev_b32 v42, 10, v40")
    e("  v_lshl_add_u32 v42, v41, 4, v42")
    e("  s_lshl_b32 s24, s8, 4")
    e("  s_add_u32 s24, s24, s10")
    e("  s_lshl_b32 s24, s24, 12")
    e("  s_lshr_b32 s25, s11, 1")
    e("  s_lshl_b32 s25, s25, 8")
    e("  s_add_u32 s24, s24, s25")
    e("  s_and_b32 s25, s11, 1")
    e("  s_lshl_b32 s26, s25, 3")
    e("  s_add_u32 s24, s24, s26")
    e("  v_lshlrev_b32 v43, 11, v40")
    e("  v_lshl_add_u32 v43, v41, 4, v43")
    e("  s_lshl_b32 s26, s8, 13")
    e(f"  s_add_u32 s26, s26, {IDX_OFF}")
    e("  s_lshr_b32 s27, s10, 3")
    e("  s_lshl_b32 s27, s27, 10")
    e("  s_add_u32 s26, s26, s27")
    e("  s_lshr_b32 s27, s11, 1")
    e("  s_lshl_b32 s27, s27, 8")
    e("  s_add_u32 s26, s26, s27")
    e("  s_lshr_b32 s27, s10, 1")
    e("  s_and_b32 s27, s27, 3")
    e("  s_lshl_b32 s27, s27, 2")
    e("  s_add_u32 s26, s26, s27")
    e("  s_and_b32 s27, s10, 1")
    e("  s_lshl_b32 s27, s27, 1")
    e("  s_add_u32 s26, s26, s27")
    e("  s_add_u32 s26, s26, s25")
    e("  v_lshlrev_b32 v44, 16, v2")
    for i in range(8):
        e(f"  v_mov_b32 v{28+i}, 0")
    e(f"  s_waitcnt vmcnt({PTN})")
    for i in range(8):
        e(f"  v_lshl_or_b32 v{4+i}, v{12+i}, 16, v{4+i}")
    A, B, C, Dd, H1, L1, H2, L2, T, THR, M, I0, I1, M1, M2, P0 = 46, 47, 48, 49, 50, 51, 52, 53, 54, 55, 56, 57, 58, 59, 60, 62
    for g in range(4):
        lo, hi = 4 + 2 * g, 5 + 2 * g
        e(f"  v_and_b32 v{A}, 0x7fff, v{lo}")
        e(f"  v_bfe_u32 v{B}, v{lo}, 16, 15")
        e(f"  v_and_b32 v{C}, 0x7fff, v{hi}")
        e(f"  v_bfe_u32 v{Dd}, v{hi}, 16, 15")
        e(f"  v_max_u32 v{H1}, v{A}, v{B}")
        e(f"  v_min_u32 v{L1}, v{A}, v{B}")
        e(f"  v_max_u32 v{H2}, v{C}, v{Dd}")
        e(f"  v_min_u32 v{L2}, v{C}, v{Dd}")
        e(f"  v_min_u32 v{T}, v{H1}, v{H2}")
        e(f"  v_max3_u32 v{THR}, v{T}, v{L1}, v{L2}")
        e(f"  v_add_u32 v{THR}, -1, v{THR}")
        e(f"  v_sub_u32 v{A}, v{THR}, v{A}")
        e(f"  v_sub_u32 v{B}, v{THR}, v{B}")
        e(f"  v_sub_u32 v{C}, v{THR}, v{C}")
        e(f"  v_sub_u32 v{Dd}, v{THR}, v{Dd}")
        e(f"  v_lshrrev_b32 v{M}, 31, v{A}")
        e(f"  v_lshrrev_b32 v{B}, 30, v{B}")
        e(f"  v_and_or_b32 v{M}, v{B}, 2, v{M}")
        e(f"  v_lshrrev_b32 v{C}, 29, v{C}")
        e(f"  v_and_or_b32 v{M}, v{C}, 4, v{M}")
        e(f"  v_lshrrev_b32 v{Dd}, 28, v{Dd}")
        e(f"  v_and_or_b32 v{M}, v{Dd}, 8, v{M}")
        e(f"  v_ffbl_b32 v{I0}, v{M}")
        e(f"  v_add_u32 v{T}, -1, v{M}")
        e(f"  v_and_b32 v{M1}, v{M}, v{T}")
        e(f"  v_ffbl_b32 v{I1}, v{M1}")
        e(f"  v_add_u32 v{T}, -1, v{M1}")
        e(f"  v_and_b32 v{M2}, v{M1}, v{T}")
        e(f"  v_cmp_ne_u32 vcc, 0, v{M2}")
        e(f"  v_lshlrev_b32 v{T}, 4, v{I0}")
        e(f"  v_lshrrev_b64 v[{P0}:{P0+1}], v{T}, v[{lo}:{hi}]")
        e(f"  v_and_b32 v{A}, 0xffff, v{P0}")
        e(f"  v_lshlrev_b32 v{T}, 4, v{I1}")
        e(f"  v_lshrrev_b64 v[{P0}:{P0+1}], v{T}, v[{lo}:{hi}]")
        e(f"  v_lshl_or_b32 v{20+g}, v{P0}, 16, v{A}")
        e(f"  v_lshl_or_b32 v{24+g}, v{I1}, 2, v{I0}")
        e("  s_cmp_eq_u64 vcc, 0")
        e(f"  s_cbranch_scc1 Lp_nores{g}")
        mcur = M2
        for which in range(2):
            E = 28 + 2 * g + which
            e(f"  v_ffbl_b32 v{I0}, v{mcur}")
            e(f"  v_lshlrev_b32 v{T}, 4, v{I0}")
            e(f"  v_lshrrev_b64 v[{P0}:{P0+1}], v{T}, v[{lo}:{hi}]")
            e(f"  v_and_b32 v{A}, 0xffff, v{P0}")
            e(f"  v_and_b32 v{B}, 0x7fff, v{P0}")
            e(f"  v_min_u32 v{B}, v{B}, v{mcur}")
            e(f"  v_add_u32 v{C}, s12, v{I0}")
            e(f"  v_add_u32 v{C}, {4*g}, v{C}")
            e(f"  v_lshl_or_b32 v{C}, v{C}, 22, v44")
            e(f"  v_or_b32 v{C}, v{C}, v{A}")
            e(f"  v_cmp_ne_u32 vcc, 0, v{B}")
            if which == 0:
                e(f"  v_add_u32 v{T}, -1, v{M2}")
                e(f"  v_and_b32 v{M1}, v{M2}, v{T}")
            else:
                e("  s_nop 1")
            e(f"  v_cndmask_b32 v{E}, 0, v{C}, vcc")
            mcur = M1
        e(f"Lp_nores{g}:")
    for eh in range(2):
        e(f"  buffer_store_dwordx2 v[{20+2*eh}:{21+2*eh}], v42, s[20:23], s24 offen offset:{512*eh}")
        e(f"  v_lshl_or_b32 v{46+eh}, v{25+2*eh}, 4, v{24+2*eh}")
        e(f"  buffer_store_byte v{46+eh}, v43, s[20:23], s26 offen offset:{512*eh}")
    e("  s_mov_b32 s28, 0")
    for i in range(8):
        e(f"  v_cmp_ne_u32 s[{32+2*i}:{33+2*i}], 0, v{28+i}")
    e("  s_nop 3")
    for i in range(8):
        e(f"  s_bcnt1_i32_b64 s29, s[{32+2*i}:{33+2*i}]")
        e("  s_add_u32 s28, s28, s29")
    e("  v_mov_b32 v46, s28")
    e("  s_lshl_b32 s29, s3, 2")
    e("  v_mov_b32 v47, s29")
    e("  ds_write_b32 v47, v46")
    e("  v_mov_b32 v47, 0")
    e("  s_waitcnt lgkmcnt(0)")
    e("  s_barrier")
    e("  ds_read_b128 v[48:51], v47")
    e("  s_waitcnt lgkmcnt(0)")
    e("  s_mov_b32 s28, 0")
    e("  s_mov_b32 s30, 0")
    for i in range(4):
        e(f"  v_readfirstlane_b32 s29, v{48+i}")
        e("  s_add_u32 s30, s30, s29")
        e(f"  s_cmp_gt_u32 s3, {i}")
        e("  s_cselect_b32 s29, s29, 0")
        e("  s_add_u32 s28, s28, s29")
    e("  s_lshl_b32 s31, s2, 14")
    e(f"  s_add_u32 s31, s31, {LIST_OFF}")
    for i in range(8):
        lo, hi = 32 + 2 * i, 33 + 2 * i
        e(f"  s_cmp_eq_u64 s[{lo}:{hi}], 0")
        e(f"  s_cbranch_scc1 Lp_skip{i}")
        e(f"  v_mbcnt_lo_u32_b32 v46, s{lo}, 0")
        e(f"  v_mbcnt_hi_u32_b32 v46, s{hi}, v46")
        e("  v_add_u32 v46, s28, v46")
        e("  v_lshrrev_b32 v47, 1, v46")
        e("  v_lshlrev_b32 v47, 4, v47")
        e("  v_and_b32 v46, 1, v46")
        e("  v_lshl_add_u32 v48, v46, 2, v47")
        e("  v_lshl_add_u32 v49, v46, 1, v47")
        e(f"  v_lshrrev_b32 v50, 21, v{28+i}")
        e("  v_and_b32 v50, 0x7fe, v50")
        e(f"  v_bfe_u32 v51, v{28+i}, 16, 6")
        e(f"  s_mov_b64 exec, s[{lo}:{hi}]")
        e("  buffer_store_dword v50, v48, s[20:23], s31 offen")
        e(f"  buffer_store_short v{28+i}, v49, s[20:23], s31 offen offset:8")
        e("  buffer_store_short v51, v49, s[20:23], s31 offen offset:12")
        e("  s_mov_b64 exec, -1")
        e(f"  s_bcnt1_i32_b64 s29, s[{lo}:{hi}]")
        e("  s_add_u32 s28, s28, s29")
        e(f"Lp_skip{i}:")
    e("  s_cmp_lg_u32 s3, 0")
    e("  s_cbranch_scc1 Lp_end")
    e("  s_add_u32 s29, s30, 1")
    e("  s_lshr_b32 s29, s29, 1")
    e("  v_mov_b32 v51, s29")
    e("  v_mov_b32 v50, 0")
    e("  s_mov_b64 exec, 1")
    e("  s_bitcmp0_b32 s30, 0")
    e("  s_cbranch_scc1 Lp_nopad")
    e("  s_lshr_b32 s28, s30, 1")
    e("  s_lshl_b32 s28, s28, 4")
    e("  v_mov_b32 v48, s28")
    e("  buffer_store_dword v50, v48, s[20:23], s31 offen offset:4")
    e("  buffer_store_short v50, v48, s[20:23], s31 offen offset:10")
    e("  buffer_store_short v50, v48, s[20:23], s31 offen offset:14")
    e("Lp_nopad:")
    e("  s_lshl_b32 s29, s2, 2")
    e(f"  s_add_u32 s29, s29, {CNT_OFF}")
    e("  buffer_store_dword v51, v50, s[20:23], s29 offen")
    e("Lp_end:")
    e("  s_endpgm")


V_BF2 = 0
V_M, V_Q = 1, 2
V_DMA = 3
V_ST = 7
V_RB = 8
V_GX = 12
V_X0, V_X1, V_X2 = 13, 14, 15
V_IDX = 16
V_BIAS = 48
V_ACC = 64
V_B = 96
V_AP = 128
V_GB = 192
V_GT = 224
V_BP = 232
V_T = 236
V_SV = 244
V_AT = 228
V_LO16 = 232
V_LANE = 233
V_RIDX = 253
V_SVS = 244

S_X, S_OUT, S_WS, S_BIAS = 16, 20, 24, 28
S_W = 32
S_SLOT = 33
S_DGOFF = 36
S_OOFF = 37
S_CNT = 38
S_NG = 39
S_C0 = 80
S_PF, S_DD = 44, 45
S_LB = 51
S_T0, S_T1, S_T2 = 52, 53, 54
S_ROWB = 56
S_G = 57
S_DC = 59
S_M0R = 60
S_K1, S_KM1 = 64, 65
S_DREL, S_OREL, S_OBASE = 40, 41, 42
S_EV = 48
S_AOFF = 66
S_STAMP = 70


class I:
    def __init__(self, text, lds=None, vm=None, opt=False, wl=None, wv=None):
        self.text, self.lds, self.vm, self.opt, self.wl, self.wv = text, lds, vm, opt, wl, wv
        self.nl = None
        self.nv = None


def W(wl=None, wv=None):
    return I("WAIT", wl=wl, wv=wv)


def stamp(i):
    if DBG and i == 0:
        return [I("  s_memrealtime s[98:99]"), I(f"  s_memtime s[68:69]"), I("  s_waitcnt lgkmcnt(0)"), I(f"  s_mov_b32 s{S_STAMP+i}, s68")]
    if DBG:
        return [I("  s_memtime s[68:69]"), I("  s_waitcnt lgkmcnt(0)"), I(f"  s_mov_b32 s{S_STAMP+i}, s68")]
    return []


V_UT = 254
V_PK = 252
V_PV = 235


def unit_table(L, vu):
    L.append(I(f"  v_lshlrev_b32 v{V_UT}, 4, v{vu}"))
    L.append(I(f"  s_mov_b32 s{S_PF}, -1"))
    for t in range(1, 16):
        L.append(I(f"  s_add_u32 s{S_PF}, s{S_PF}, s{S_C0+t-1}"))
        L.append(I(f"  s_lshl_b32 s{S_DD}, s{S_C0+t-1}, 4"))
        L.append(I(f"  s_sub_u32 s{S_DD}, {CAPB}, s{S_DD}"))
        L.append(I(f"  v_sub_u32 v{V_X2}, s{S_PF}, v{vu}"))
        L.append(I(f"  v_ashrrev_i32 v{V_X2}, 31, v{V_X2}"))
        L.append(I(f"  v_and_b32 v{V_X2}, s{S_DD}, v{V_X2}"))
        L.append(I(f"  v_add_u32 v{V_UT}, v{V_UT}, v{V_X2}"))
    L.append(I(f"  s_add_u32 s{S_PF}, s{S_PF}, s{S_C0+15}"))
    L.append(I(f"  v_sub_u32 v{V_X2}, s{S_PF}, v{vu}"))
    L.append(I(f"  v_ashrrev_i32 v{V_X2}, 31, v{V_X2}"))
    L.append(I(f"  v_and_b32 v{V_X2}, {OOB}, v{V_X2}"))
    L.append(I(f"  v_or_b32 v{V_UT}, v{V_UT}, v{V_X2}"))


def afrag(L, fs, vvff, dst):
    cst = 32 * (fs >> 1) + 4 * (fs & 1)
    cst2 = cst | (cst << 16)
    for dd in range(4):
        vv, ff = vvff + 2 * dd, vvff + 2 * dd + 1
        d = dst + dd
        if cst2:
            L.append(I(f"  v_xor_b32 v{d}, {cst2}, v{ff}"))
            L.append(I(f"  v_pk_min_u16 v{d}, v{d}, s{S_K1}"))
        else:
            L.append(I(f"  v_pk_min_u16 v{d}, v{ff}, s{S_K1}"))
        L.append(I(f"  v_pk_add_u16 v{d}, v{d}, s{S_KM1}"))
        L.append(I(f"  v_and_b32 v{d}, v{d}, v{vv}"))


def dma_part(part, slot, rel):
    i, hh = part >> 1, part & 1
    L = []
    if hh == 0:
        L.append(I(f"  s_add_u32 m0, s{S_M0R+i}, {slot*2048}"))
        L.append(I("  s_nop 0"))
    L.append(I(f"  buffer_load_dwordx4 v{V_DMA+i}, s[{S_X}:{S_X+3}], s{S_DGOFF} offen offset:{hh*1024}{DMAF} lds",
               vm=("D", rel)))
    return L


def dma_advance():
    return [I(f"  s_add_u32 s{S_DC}, s{S_DC}, 1"),
            I(f"  s_add_u32 s{S_DREL}, s{S_DREL}, 32768"),
            I(f"  s_and_b32 s{S_DREL}, s{S_DREL}, 0x7ffff"),
            I(f"  s_add_u32 s{S_DGOFF}, s{S_DREL}, s{S_ROWB}"),
            I(f"  s_cmp_ge_u32 s{S_DC}, {NCHUNK}"),
            I(f"  s_cselect_b32 s{S_DGOFF}, {OOB}, s{S_DGOFF}")]


def rd(ks, slot, rel):
    p = ks & 1
    b = V_B + 8 * (ks & 3)
    off = slot * 2048 + (ks >> 1) * 256
    return [I(f"  ds_read_b128 v[{b}:{b+3}], v{V_RB+2*p} offset:{off}", lds=("R", ks, rel)),
            I(f"  ds_read_b128 v[{b+4}:{b+7}], v{V_RB+2*p+1} offset:{off}", lds=("R", ks, rel))]


def gtb(g):
    return V_GT if g & 1 == 0 else V_SV


def gather(g, slot, rel, opt=False):
    return [I(f"  ds_read_u16 v{gtb(g)+jj}, v{V_GB+8*g+jj} offset:{slot*2048}", lds=("G", g, rel), opt=opt)
            for jj in range(8)]


def res_comb(g):
    return [I(f"  v_lshl_or_b32 v{gtb(g)+2*d}, v{gtb(g)+2*d+1}, 16, v{gtb(g)+2*d}") for d in range(4)]


def res_mfma(g, acc):
    return [I(f"  v_smfmac_f32_16x16x64_bf16 v[{acc+4*fs}:{acc+4*fs+3}], v[{V_AP+16*g+4*fs}:{V_AP+16*g+4*fs+3}], "
              f"v[{gtb(g)}:{gtb(g)+7}], v{V_RIDX}") for fs in range(4)]


def touch(c):
    if c >= 16:
        return []
    return [I(f"  s_add_u32 s47, s46, {c*32768}"),
            I(f"  buffer_load_dword v232, v235, s[{S_X}:{S_X+3}], s47 offen{TCF}", vm=("T", 0))]


def acc_init(acc):
    return [I(f"  v_mov_b32 v{acc+j}, v{V_BIAS+j}") for j in range(16)]


V_SW = 232


def epilogue(acc):
    L = []
    for j in range(2):
        for d in range(4):
            fs = 2 * j + (d >> 1)
            r = 2 * (d & 1)
            L.append(I(f"  v_cvt_pk_bf16_f32 v{V_T+4*j+d}, v{acc+4*fs+r}, v{acc+4*fs+r+1}"))
    L.append(I(f"  s_mov_b64 vcc, s[{S_EV}:{S_EV+1}]"))
    for d in range(4):
        L.append(I(f"  v_cndmask_b32_dpp v{V_SW+d}, v{V_T+4+d}, v{V_T+d}, vcc quad_perm:[1,0,3,2] row_mask:0xf bank_mask:0xf"))
    L.append(I(f"  buffer_store_dwordx4 v[{V_SW}:{V_SW+3}], v{V_ST}, s[{S_OUT}:{S_OUT+3}], s{S_OOFF} offen{STF}", vm=("S", 0)))
    L.append(I(f"  s_not_b64 vcc, s[{S_EV}:{S_EV+1}]"))
    L.append(I("  s_nop 0"))
    for d in range(4):
        L.append(I(f"  v_cndmask_b32_dpp v{V_SW+d}, v{V_T+d}, v{V_T+4+d}, vcc quad_perm:[1,0,3,2] row_mask:0xf bank_mask:0xf"))
    L.append(I(f"  buffer_store_dwordx4 v[{V_SW}:{V_SW+3}], v{V_ST}, s[{S_OUT}:{S_OUT+3}], s{S_OOFF} offen offset:2048{STF}", vm=("S", 0)))
    L.append(I(f"  s_add_u32 s{S_OREL}, s{S_OREL}, 32768"))
    L.append(I(f"  s_and_b32 s{S_OREL}, s{S_OREL}, 0x7ffff"))
    L.append(I(f"  s_add_u32 s{S_OOFF}, s{S_OREL}, s{S_OBASE}"))
    return L


def a_load(ks):
    L = []
    for fs in range(4):
        a = (ks * 4 + fs) * 4
        L.append(I(f"  buffer_load_dwordx4 a[{a}:{a+3}], v{V_LO16A}, s[{S_WS}:{S_WS+3}], s{S_AOFF} offen offset:{fs*1024}{ALF}",
                   vm=("A", ks)))
    L.append(I(f"  s_add_u32 s{S_AOFF}, s{S_AOFF}, 4096"))
    return L


V_LO16A = 255
A_PRE = int(os.environ.get("A_PRE","6"))


def body(name, slot, buf, prev_epi, own_epi, first=False):
    X = V_ACC + 16 * buf
    Y = V_ACC + 16 * (1 - buf)
    nslot = (slot + 1) % NSLOT
    L = []
    for ks in range(16):
        pre, fill, post, early = [], [], [], []
        if ks == 13:
            pre = [W(wv=("D", 1)), I("  s_barrier")] if not int(os.environ.get("NOWAIT", "0")) else [I("  s_barrier")]
        if ks + 3 < 16:
            fill += rd(ks + 3, slot, 0)
        else:
            fill += rd(ks + 3 - 16, nslot, 1)
        if prev_epi:
            ep = epilogue(Y)
            ini = acc_init(Y)
            if ks == 4:
                fill += ep[:8]
            if ks == 5:
                fill += ep[8:14]
            if ks == 8:
                fill += ep[14:]
            if ks in (11, 14):
                fill += ini[:8] if ks == 11 else ini[8:]
        if not first:
            part = (ks - 13) % 16
            if part < 8 and not NODMA:
                if ks >= 13:
                    fill += dma_part(part, (slot + 4) % NSLOT, 4)
                else:
                    fill += dma_part(part, (slot + 3) % NSLOT, 3)
                if part == 7:
                    fill += dma_advance()
        else:
            if ks + A_PRE < 16:
                fill += a_load(ks + A_PRE)
            if TCH and ks == 6:
                fill += touch(TCH + 8)
            if 4 <= ks < 12:
                c = 2 + (ks - 4) // 4
                for part in (2 * ((ks - 4) % 4), 2 * ((ks - 4) % 4) + 1):
                    fill += dma_part(part, c, c)
                    if part == 7:
                        fill += dma_advance()
            if ks >= 13:
                fill += dma_part(ks - 13, 4, 4)
        if TD and ks == 10:
            fill += [I(f"  s_cmp_ge_u32 s47, {NCHUNK}"),
                     I(f"  s_cselect_b32 s{S_T0}, {OOB}, s46"),
                     I(f"  buffer_load_dword v{V_X2}, v{V_Q}, s[{S_X}:{S_X+3}], s{S_T0} offen{TCF}", vm=("T", 0)),
                     I("  s_add_u32 s46, s46, 32768"),
                     I("  s_add_u32 s47, s47, 1")]
        if not NORES:
            n, ph = divmod(ks, 3)
            if n < 4 and ph < 2:
                fill += gather(n, slot, 0)[4 * ph:4 * ph + 4]
            if ks >= 3 and ph == 0 and n - 1 < 4:
                early = [W(wl=("G", n - 1, 0))] + res_comb(n - 1)
                post += res_mfma(n - 1, X)
            if ks == 12:
                post += [I(f"  s_cmp_gt_u32 s{S_NG}, 4"), I(f"  s_cbranch_scc1 Lslow_{name}"), I(f"Lslowback_{name}:")]
        L += pre
        L.append(W(wl=("R", ks, 0), wv=("A", ks) if first else None))
        mf = []
        for fs in range(4):
            a = (ks * 4 + fs) * 4
            b = V_B + 8 * (ks & 3)
            mf.append(I(f"  v_smfmac_f32_16x16x64_bf16 v[{X+4*fs}:{X+4*fs+3}], a[{a}:{a+3}], v[{b}:{b+7}], "
                        f"v{V_IDX+fs*8+(ks>>1)}" + (" abid:1" if ks & 1 else "")))
        fill = early + fill
        n_ = len(fill)
        per = [(n_ + 3 - i) // 4 for i in range(4)]
        pos = 0
        for i in range(4):
            L.append(mf[i])
            L += fill[pos:pos + per[i]]
            pos += per[i]
        L += post
    if own_epi:
        ep = epilogue(X)
        L += [I("  s_nop 7")] + ep[:8] + [I("  s_nop 1")] + ep[8:] + acc_init(X) + [I("  s_nop 1")]
    return L


def slow_path(name, slot, buf, first=False):
    X = V_ACC + 16 * buf
    L = []
    L.append(I(f"Lslow_{name}:"))
    L.append(I(f"  s_mov_b32 s{S_G}, {NRES}"))
    L.append(I(f"Lslowloop_{name}:"))
    L.append(I(f"  v_mbcnt_lo_u32_b32 v{V_X0}, -1, 0"))
    L.append(I(f"  v_mbcnt_hi_u32_b32 v{V_X0}, -1, v{V_X0}"))
    L.append(I(f"  s_lshl_b32 s{S_T0}, s{S_G}, 4"))
    L.append(I(f"  v_add_u32 v{V_X0}, s{S_T0}, v{V_X0}"))
    unit_table(L, V_X0)
    for i in range(4):
        L.append(I(f"  ds_bpermute_b32 v{V_GT+i}, v{V_PK}, v{V_UT} offset:{4*i}"))
    L.append(I("  s_waitcnt lgkmcnt(0)"))
    for i in range(4):
        L.append(I(f"  buffer_load_dwordx2 v[{V_T+2*i}:{V_T+2*i+1}], v{V_GT+i}, s[{S_WS}:{S_WS+3}], s{S_LB} offen"))
        L.append(I(f"  buffer_load_dwordx2 v[{V_SVS+2*i}:{V_SVS+2*i+1}], v{V_GT+i}, s[{S_WS}:{S_WS+3}], s{S_LB} offen offset:8"))
    L.append(I("  s_waitcnt vmcnt(0)"))
    for jj in range(8):
        L.append(I(f"  v_xor_b32 v{V_T+jj}, v{V_T+jj}, v{V_GX}"))
    for jj in range(8):
        L.append(I(f"  ds_read_u16 v{V_GT+jj}, v{V_T+jj} offset:{slot*2048}"))
    for i in range(4):
        L.append(I(f"  v_xor_b32 v{V_SVS+2*i+1}, v{V_SVS+2*i+1}, v{V_BF2}"))
    L.append(I("  s_waitcnt lgkmcnt(0)"))
    for d in range(4):
        L.append(I(f"  v_lshl_or_b32 v{V_BP+d}, v{V_GT+2*d+1}, 16, v{V_GT+2*d}"))
    for fs in range(4):
        afrag(L, fs, V_SVS, V_AT)
        L.append(I("  s_nop 1"))
        L.append(I(f"  v_mfma_f32_16x16x32_bf16 v[{X+4*fs}:{X+4*fs+3}], v[{V_AT}:{V_AT+3}], v[{V_BP}:{V_BP+3}], v[{X+4*fs}:{X+4*fs+3}]"))
        L.append(I("  s_nop 7"))
    L.append(I(f"  s_add_u32 s{S_G}, s{S_G}, 1"))
    L.append(I(f"  s_cmp_lt_u32 s{S_G}, s{S_NG}"))
    L.append(I(f"  s_cbranch_scc1 Lslowloop_{name}"))
    L.append(I(f"  s_branch Lslowback_{name}"))
    return L


def resolve(seq):
    lds, vm = [], []
    for blk, c in seq:
        for ins in blk:
            if ins.lds is not None:
                t = ins.lds
                lds.append(((t[0], t[1], c + t[2]), ins.opt))
            if ins.vm is not None:
                t = ins.vm
                vm.append(((t[0], t[1] + (c if t[0] in ("D",) else 0)), ins.opt))
            if ins.text == "WAIT":
                if ins.wl is not None:
                    key = (ins.wl[0], ins.wl[1], c + ins.wl[2])
                    n, found = 0, False
                    for tag, opt in reversed(lds):
                        if tag == key:
                            found = True
                            break
                        if not opt:
                            n += 1
                    assert found, (key, c)
                    n = min(n, 15)
                    ins.nl = n if ins.nl is None else min(ins.nl, n)
                if ins.wv is not None:
                    key = (ins.wv[0], ins.wv[1] + (c if ins.wv[0] in ("D",) else 0))
                    n, found = 0, False
                    for tag, opt in reversed(vm):
                        if tag == key:
                            found = True
                            break
                        if not opt:
                            n += 1
                    assert found or NODMA, (key, c)
                    n = min(n, 63)
                    ins.nv = n if ins.nv is None else min(ins.nv, n)


def emit(blk):
    for ins in blk:
        if ins.text == "WAIT":
            parts = []
            if ins.nv is not None:
                parts.append(f"vmcnt({ins.nv})")
            if ins.nl is not None:
                parts.append(f"lgkmcnt({ins.nl})")
            e("  s_waitcnt " + " ".join(parts))
        else:
            e(ins.text)


def gen_main():
    e(f".globl {KNAME}")
    e(".p2align 8")
    e(f".type {KNAME},@function")
    e(f"{KNAME}:")
    P = []

    def p(t, **kw):
        P.append(I(t, **kw))

    p("  s_cmp_ge_u32 s2, 256")
    p("  s_cbranch_scc1 Lm_end")
    P.extend(stamp(0))
    p("  s_load_dwordx4 s[4:7], s[0:1], 0")
    p("  s_load_dwordx4 s[8:11], s[0:1], 16")
    p("  s_load_dwordx2 s[14:15], s[0:1], 40")
    p("  v_lshrrev_b32 v3, 6, v0")
    p(f"  v_and_b32 v{V_LANE}, 63, v0")
    p(f"  v_readfirstlane_b32 s{S_W}, v3")
    p(f"  v_and_b32 v{V_M}, 15, v{V_LANE}")
    p(f"  v_lshrrev_b32 v{V_Q}, 4, v{V_LANE}")
    p(f"  v_lshlrev_b32 v{V_LO16A}, 4, v{V_LANE}")
    p(f"  s_and_b32 s{S_T0}, s2, 7")
    p(f"  s_lshr_b32 s{S_T1}, s2, 3")
    p(f"  s_and_b32 s{S_T2}, s{S_T1}, 3")
    p(f"  s_lshr_b32 s{S_T1}, s{S_T1}, 2")
    if int(os.environ.get("RBM", "0")):
        p(f"  s_lshl_b32 s{S_T0}, s{S_T0}, 3")
    else:
        p(f"  s_lshl_b32 s{S_T1}, s{S_T1}, 3")
    p(f"  s_add_u32 s{S_T1}, s{S_T1}, s{S_T0}")
    p(f"  s_lshl_b32 s{S_ROWB}, s{S_T1}, 19")
    p(f"  s_lshl_b32 s{S_SLOT}, s{S_T2}, 2")
    p(f"  s_add_u32 s{S_SLOT}, s{S_SLOT}, s{S_W}")
    p(f"  s_mul_i32 s{S_M0R}, s{S_W}, {4*ROWB}")
    for i in range(1, 4):
        p(f"  s_add_u32 s{S_M0R+i}, s{S_M0R}, {i*ROWB}")
    p(f"  s_mov_b32 s{S_K1}, 0x00010001")
    p(f"  s_mov_b32 s{S_KM1}, -1")
    for i in range(4):
        p(f"  s_lshl_b32 s{S_T0}, s{S_W}, 2")
        p(f"  s_add_u32 s{S_T0}, s{S_T0}, {i}")
        p(f"  v_xor_b32 v{V_X0}, s{S_T0}, v{V_LANE}")
        p(f"  v_and_b32 v{V_X0}, 15, v{V_X0}")
        p(f"  v_and_or_b32 v{V_X0}, v{V_LANE}, 48, v{V_X0}")
        p(f"  v_lshlrev_b32 v{V_X0}, 4, v{V_X0}")
        p(f"  s_lshl_b32 s{S_T1}, s{S_T0}, 11")
        p(f"  v_add_u32 v{V_DMA+i}, s{S_T1}, v{V_X0}")
    p("  s_waitcnt lgkmcnt(0)")
    for (srd, lo, size) in ((S_X, 4, 1 << 25), (S_OUT, 10, 1 << 25), (S_WS, 14, WS_USED), (S_BIAS, 8, 2048)):
        p(f"  s_mov_b32 s{srd}, s{lo}")
        p(f"  s_mov_b32 s{srd+1}, s{lo+1}")
        p(f"  s_mov_b32 s{srd+2}, {size}")
        p(f"  s_mov_b32 s{srd+3}, 0x00020000")
    p(f"  s_lshl_b32 s{S_T0}, s{S_SLOT}, 6")
    p(f"  s_add_u32 s{S_T0}, s{S_T0}, {CNT_OFF}")
    p(f"  s_load_dwordx16 s[{S_C0}:{S_C0+15}], s[14:15], s{S_T0}")
    ROTN = int(os.environ.get("ROTN", "2"))
    p(f"  s_lshr_b32 s{S_DREL}, s{S_ROWB}, 19")
    p(f"  s_mul_i32 s{S_DREL}, s{S_DREL}, {ROTN*32768}")
    p(f"  s_and_b32 s{S_DREL}, s{S_DREL}, 0x7ffff")
    p(f"  s_mov_b32 s{S_OREL}, s{S_DREL}")
    p(f"  s_add_u32 s{S_DGOFF}, s{S_ROWB}, s{S_DREL}")
    p(f"  s_mov_b32 s{S_DC}, 0")
    for part in range(8):
        P.extend(dma_part(part, 0, 0))
    P.extend(dma_advance())
    if TCH:
        p(f"  v_lshrrev_b32 v{V_X0}, 4, v{V_LANE}")
        p(f"  v_lshlrev_b32 v{V_X0}, 11, v{V_X0}")
        p(f"  v_lshl_or_b32 v{V_X0}, v{V_M}, 7, v{V_X0}")
        p(f"  s_lshr_b32 s{S_T0}, s{S_SLOT}, 2")
        p(f"  s_lshl_b32 s{S_T0}, s{S_T0}, 13")
        p(f"  s_add_u32 s{S_T0}, s{S_T0}, s{S_ROWB}")
        p(f"  s_lshl_b32 s{S_T1}, s{S_W}, 15")
        p(f"  s_add_u32 s{S_T0}, s{S_T0}, s{S_T1}")
        p(f"  v_mov_b32 v235, v{V_X0}")
        p(f"  s_mov_b32 s46, s{S_T0}")
        P.extend(touch(TCH))
    p(f"  s_lshl_b32 s{S_T0}, s{S_SLOT}, 13")
    p(f"  s_add_u32 s{S_T0}, s{S_T0}, {IDX_OFF}")
    for j in range(8):
        if j == 4:
            p(f"  s_add_u32 s{S_T0}, s{S_T0}, 4096")
        p(f"  buffer_load_dwordx4 v[{V_IDX+4*j}:{V_IDX+4*j+3}], v{V_LO16A}, s[{S_WS}:{S_WS+3}], s{S_T0} offen offset:{(j&3)*1024}{ALF}",
          vm=("I", 0))
    p(f"  v_lshlrev_b32 v{V_X0}, 4, v{V_Q}")
    p(f"  s_lshl_b32 s{S_T0}, s{S_SLOT}, 7")
    for j in range(2):
        p(f"  buffer_load_dwordx4 v[{V_GT+4*j}:{V_GT+4*j+3}], v{V_X0}, s[{S_BIAS}:{S_BIAS+3}], s{S_T0} offen offset:{64*j}",
          vm=("B", 0))
    p(f"  s_lshl_b32 s{S_AOFF}, s{S_SLOT}, 16")
    for ks in range(3):
        P.extend(a_load(ks))
    p(f"  v_and_b32 v{V_ST}, 14, v{V_M}")
    p(f"  v_lshlrev_b32 v{V_ST}, 11, v{V_ST}")
    p(f"  v_lshl_add_u32 v{V_ST}, v{V_Q}, 4, v{V_ST}")
    p(f"  v_and_b32 v{V_X0}, 1, v{V_M}")
    p(f"  v_lshl_add_u32 v{V_ST}, v{V_X0}, 6, v{V_ST}")
    p(f"  s_mov_b32 s{S_EV}, 0x55555555")
    p(f"  s_mov_b32 s{S_EV+1}, 0x55555555")
    p(f"  s_movk_i32 s{S_T0}, {ROWB}")
    p(f"  v_mul_lo_u32 v{V_X1}, v{V_M}, s{S_T0}")
    for pp in range(2):
        for h in range(2):
            p(f"  v_lshlrev_b32 v{V_X0}, 1, v{V_Q}")
            p(f"  v_add_u32 v{V_X0}, {pp*8+h}, v{V_X0}")
            p(f"  v_xor_b32 v{V_X0}, v{V_X0}, v{V_M}")
            p(f"  v_lshl_add_u32 v{V_RB+2*pp+h}, v{V_X0}, 4, v{V_X1}")
    p(f"  v_lshl_or_b32 v{V_GX}, v{V_M}, 4, v{V_X1}")
    p(f"  v_mov_b32 v{V_RIDX}, 0x44444444")
    p(f"  v_lshlrev_b32 v{V_PK}, 4, v{V_Q}")
    p(f"  v_and_b32 v{V_PV}, 1, v{V_Q}")
    p(f"  v_lshlrev_b32 v{V_PV}, 5, v{V_PV}")
    p(f"  v_lshrrev_b32 v{V_X0}, 1, v{V_Q}")
    p(f"  v_lshl_or_b32 v{V_PV}, v{V_X0}, 3, v{V_PV}")
    p(f"  v_lshrrev_b32 v{V_X0}, 2, v{V_M}")
    p(f"  v_and_b32 v{V_BF2}, 3, v{V_M}")
    p(f"  v_lshl_or_b32 v{V_BF2}, v{V_X0}, 3, v{V_BF2}")
    p(f"  v_lshl_or_b32 v{V_BF2}, v{V_BF2}, 16, v{V_BF2}")
    p("  s_waitcnt lgkmcnt(0)")
    unit_table(P, V_LANE)
    p(f"  s_add_u32 s{S_NG}, s{S_PF}, 16")
    p(f"  s_lshr_b32 s{S_NG}, s{S_NG}, 4")
    p(f"  s_lshl_b32 s{S_LB}, s{S_SLOT}, 18")
    p(f"  s_add_u32 s{S_LB}, s{S_LB}, {LIST_OFF}")
    for g in range(NRES):
        for i in range(4):
            p(f"  ds_bpermute_b32 v{V_AP+8*g+i}, v{V_PK}, v{V_UT} offset:{64*g+4*i}")
            if True:
                p(f"  ds_bpermute_b32 v{V_AP+8*g+4+i}, v{V_PV}, v{V_UT} offset:{64*g+16*(i>>1)+4*(i&1)}")
    p("  s_waitcnt lgkmcnt(0)")
    for g in range(NRES):
        for i in range(4):
            p(f"  buffer_load_dwordx2 v[{V_GB+8*g+2*i}:{V_GB+8*g+2*i+1}], v{V_AP+8*g+i}, s[{S_WS}:{S_WS+3}], s{S_LB} offen",
              vm=("U", g))
            av = V_AP + 8 * g + 4 + i
            p(f"  buffer_load_dwordx2 v[{V_B+8*g+2*i}:{V_B+8*g+2*i+1}], v{av}, s[{S_WS}:{S_WS+3}], s{S_LB} offen offset:8",
              vm=("U", g))
    for ks in range(3, A_PRE):
        P.extend(a_load(ks))
    for part in range(8):
        P.extend(dma_part(part, 1, 1))
    P.extend(dma_advance())
    if TCH:
        P.extend(touch(TCH + 4))
    P.extend(stamp(1))
    P.append(W(wv=("B", 0)))
    for j in range(2):
        for d in range(4):
            fs = 2 * j + (d >> 1)
            r = 2 * (d & 1)
            p(f"  v_lshlrev_b32 v{V_BIAS+4*fs+r}, 16, v{V_GT+4*j+d}")
            p(f"  v_and_b32 v{V_BIAS+4*fs+r+1}, 0xffff0000, v{V_GT+4*j+d}")
    for g in range(NRES):
        P.append(W(wv=("U", g)))
        for jj in range(8):
            p(f"  v_xor_b32 v{V_GB+8*g+jj}, v{V_GB+8*g+jj}, v{V_GX}")
        for i in range(4):
            r = V_B + 8 * g + 2 * i + 1
            p(f"  v_xor_b32 v{r}, v{r}, v{V_BF2}")
        for fs in range(4):
            afrag(P, fs, V_B + 8 * g, V_AP + 16 * g + 4 * fs)
    P.extend(acc_init(V_ACC))
    P.extend(acc_init(V_ACC + 16))
    if TD:
        p(f"  v_lshlrev_b32 v{V_Q}, 7, v{V_M}")
        p(f"  s_lshl_b32 s46, s{S_SLOT}, 11")
        p(f"  s_add_u32 s46, s46, s{S_ROWB}")
        p(f"  s_add_u32 s46, s46, {TD*32768}")
        p(f"  s_mov_b32 s47, {TD}")
    P.extend(stamp(2))
    P.append(W(wv=("D", 0)))
    p("  s_barrier")
    p(f"  s_lshl_b32 s{S_OBASE}, s{S_SLOT}, 7")
    p(f"  s_add_u32 s{S_OBASE}, s{S_OBASE}, s{S_ROWB}")
    p(f"  s_add_u32 s{S_OOFF}, s{S_OBASE}, s{S_OREL}")
    p(f"  s_mov_b32 s{S_CNT}, 0")
    P.extend(rd(0, 0, 0))
    P.extend(rd(1, 0, 0))
    P.extend(rd(2, 0, 0))
    P.extend(stamp(3))

    F = body("f", 0, 0, False, True, first=True)
    F.extend(stamp(4))
    slots = [1, 2, 3, 4, 0]
    bufs = [1, 0, 1, 0, 1]
    LB = []
    for i, (sl, bf) in enumerate(zip(slots, bufs)):
        LB.append(body(f"b{i}", sl, bf, i > 0, i == 4))
    seq = [(P, 0), (F, 0)]
    c = 1
    for it in range(3):
        for blk in LB:
            seq.append((blk, c))
            c += 1
    resolve(seq)
    emit(P)
    emit(F)
    e("Lloop:")
    for blk in LB:
        emit(blk)
    e(f"  s_add_u32 s{S_CNT}, s{S_CNT}, 1")
    e(f"  s_cmp_lt_u32 s{S_CNT}, 3")
    e("  s_cbranch_scc1 Lloop")
    if DBG:
        emit(stamp(5))
        e("  s_waitcnt vmcnt(0)")
        emit(stamp(6))
        e("  s_memrealtime s[100:101]")
        e("  s_load_dwordx2 s[12:13], s[0:1], 32")
        e("  s_waitcnt lgkmcnt(0)")
        e("  s_mov_b32 s84, s12")
        e("  s_mov_b32 s85, s13")
        e("  s_mov_b32 s86, 256")
        e("  s_mov_b32 s87, 0x00020000")
        e("  s_and_b32 s88, s2, 63")
        e("  s_cmp_lg_u32 s88, 0")
        e("  s_cbranch_scc1 Lm_end")
        e(f"  s_cmp_lg_u32 s{S_W}, 0")
        e("  s_cbranch_scc1 Lm_end")
        e("  s_lshr_b32 s88, s2, 6")
        e("  s_lshl_b32 s88, s88, 5")
        e("  v_mov_b32 v1, 0")
        e("  s_mov_b64 exec, 1")
        for i in range(7):
            if i:
                e(f"  s_sub_u32 s68, s{S_STAMP+i}, s{S_STAMP}")
            else:
                e(f"  s_mov_b32 s68, s{S_STAMP}")
            e("  v_mov_b32 v2, s68")
            e(f"  buffer_store_dword v2, v1, s[84:87], s88 offen offset:{4*i}")
        e("  s_sub_u32 s100, s100, s98")
        e("  v_mov_b32 v2, s100")
        e("  buffer_store_dword v2, v1, s[84:87], s88 offen offset:28")
    e("Lm_end:")
    e("  s_endpgm")
    if not NORES:
        emit(slow_path("f", 0, 0, first=True))
        for i, (sl, bf) in enumerate(zip(slots, bufs)):
            emit(slow_path(f"b{i}", sl, bf))


def main():
    e("; Kernarg layout: 0 x, 8 w, 16 b, 24 out, 32 debug, 40 ws")
    e("; @launch kernel=prep_kernel grid=(256,1,1) block=(256,1,1) lds=256")
    e(f"; @launch kernel={KNAME} grid=(256,1,1) block=(256,1,1) lds={16*ROWB}")
    e('.amdgcn_target "amdgcn-amd-amdhsa--gfx950"')
    e(".text")
    gen_prep()
    gen_main()
    e('.section .rodata,"a"')
    e(".p2align 6")
    e(".amdhsa_kernel prep_kernel")
    e("  .amdhsa_next_free_vgpr 64")
    e("  .amdhsa_next_free_sgpr 64")
    e("  .amdhsa_accum_offset 64")
    e("  .amdhsa_group_segment_fixed_size 0")
    e("  .amdhsa_kernarg_size 48")
    e("  .amdhsa_user_sgpr_count 2")
    e("  .amdhsa_user_sgpr_kernarg_segment_ptr 1")
    e("  .amdhsa_system_sgpr_workgroup_id_x 1")
    e(".end_amdhsa_kernel")
    e(".p2align 6")
    e(f".amdhsa_kernel {KNAME}")
    e("  .amdhsa_next_free_vgpr 512")
    e("  .amdhsa_next_free_sgpr 102")
    e("  .amdhsa_accum_offset 256")
    e("  .amdhsa_group_segment_fixed_size 0")
    e("  .amdhsa_kernarg_size 48")
    e("  .amdhsa_user_sgpr_count 2")
    e("  .amdhsa_user_sgpr_kernarg_segment_ptr 1")
    e("  .amdhsa_system_sgpr_workgroup_id_x 1")
    e(".end_amdhsa_kernel")
    path = sys.argv[1] if len(sys.argv) > 1 else "standalone__structured_sparse_n_m__ragged.s"
    open(path, "w").write("\n".join(out) + "\n")


if __name__ == "__main__":
    main()
```

```python
import sys, os

DBG = int(os.environ.get("DBG", "0"))
NODMA = int(os.environ.get("NODMA", "0"))
NORES = int(os.environ.get("NORES", "0"))
NOST = int(os.environ.get("NOST", "0"))
DMAF = os.environ.get("DMAF", " nt")
WLF = os.environ.get("WLF", " nt")
ALF = os.environ.get("ALF", "")
STF = os.environ.get("STF", " nt")
TCH = int(os.environ.get("TCH", "0"))
TCF = os.environ.get("TCF", "")
TD = int(os.environ.get("TD", "0"))
PT0 = int(os.environ.get("PT0", "0"))
PTN = int(os.environ.get("PTN", "0"))

KNAME = "standalone__structured_sparse_n_m__ragged_kernel"

A_OFF = 0
IDX_OFF = 1 << 20
CNT_OFF = (1 << 20) + (128 << 10)
LIST_OFF = 2 << 20
CAPB = 16384
WS_USED = 8 << 20

NSLOT = 5
ROWB = NSLOT * 2048
NCHUNK = 16
OOB = 0x40000000
NRES = 4

out = []


def e(s=""):
    out.append(s)


def gen_prep():
    e(".globl prep_kernel")
    e(".p2align 8")
    e(".type prep_kernel,@function")
    e("prep_kernel:")
    e("  s_cmp_ge_u32 s2, 256")
    e("  s_cbranch_scc1 Lp_end")
    e("  s_load_dwordx2 s[4:5], s[0:1], 8")
    e("  s_load_dwordx2 s[6:7], s[0:1], 40")
    e("  v_lshrrev_b32 v1, 6, v0")
    e("  v_and_b32 v2, 63, v0")
    e("  v_readfirstlane_b32 s3, v1")
    e("  s_lshr_b32 s8, s2, 4")
    e("  s_and_b32 s10, s2, 15")
    e("  s_mov_b32 s11, s3")
    e("  s_lshl_b32 s12, s10, 6")
    e("  s_lshl_b32 s13, s11, 4")
    e("  s_add_u32 s12, s12, s13")
    e("  s_lshl_b32 s13, s12, 11")
    e("  s_lshl_b32 s14, s8, 7")
    e("  s_add_u32 s13, s13, s14")
    e("  v_lshlrev_b32 v3, 1, v2")
    e("  s_waitcnt lgkmcnt(0)")
    e("  s_mov_b32 s16, s4")
    e("  s_mov_b32 s17, s5")
    e("  s_mov_b32 s18, 0x200000")
    e("  s_mov_b32 s19, 0x00020000")
    e("  s_mov_b32 s20, s6")
    e("  s_mov_b32 s21, s7")
    e(f"  s_mov_b32 s22, {WS_USED}")
    e("  s_mov_b32 s23, 0x00020000")
    for i in range(8):
        e(f"  buffer_load_ushort v{4+i}, v3, s[16:19], s13 offen{WLF}")
        e(f"  buffer_load_ushort v{12+i}, v3, s[16:19], s13 offen offset:2048{WLF}")
        if i < 7:
            e("  s_add_u32 s13, s13, 4096")
    if PTN:
        e("  s_load_dwordx2 s[48:49], s[0:1], 0")
        e("  s_and_b32 s52, s2, 7")
        e("  s_lshr_b32 s53, s2, 3")
        e("  s_and_b32 s54, s53, 3")
        e("  s_lshr_b32 s53, s53, 2")
        e("  s_lshl_b32 s53, s53, 3")
        e("  s_add_u32 s53, s53, s52")
        e("  s_lshl_b32 s53, s53, 19")
        e("  s_lshl_b32 s54, s54, 13")
        e("  s_add_u32 s53, s53, s54")
        e("  s_lshl_b32 s54, s3, 15")
        e("  s_add_u32 s53, s53, s54")
        e("  v_lshrrev_b32 v38, 4, v2")
        e("  v_lshlrev_b32 v38, 11, v38")
        e("  v_and_b32 v39, 15, v2")
        e("  v_lshl_or_b32 v38, v39, 7, v38")
        e("  s_waitcnt lgkmcnt(0)")
        e("  s_mov_b32 s50, 0x2000000")
        e("  s_mov_b32 s51, 0x00020000")
        for r in range(PTN):
            e(f"  s_add_u32 s54, s53, {(PT0+4*r)*32768}")
            e(f"  buffer_load_dword v39, v38, s[48:51], s54 offen{TCF}")
    e("  v_lshrrev_b32 v40, 5, v2")
    e("  v_bfe_u32 v41, v2, 2, 1")
    e("  v_lshl_or_b32 v40, v40, 1, v41")
    e("  v_bfe_u32 v41, v2, 3, 2")
    e("  v_and_b32 v42, 3, v2")
    e("  v_lshl_or_b32 v41, v41, 2, v42")
    e("  v_lshlrev_b32 v42, 10, v40")
    e("  v_lshl_add_u32 v42, v41, 4, v42")
    e("  s_lshl_b32 s24, s8, 4")
    e("  s_add_u32 s24, s24, s10")
    e("  s_lshl_b32 s24, s24, 12")
    e("  s_lshr_b32 s25, s11, 1")
    e("  s_lshl_b32 s25, s25, 8")
    e("  s_add_u32 s24, s24, s25")
    e("  s_and_b32 s25, s11, 1")
    e("  s_lshl_b32 s26, s25, 3")
    e("  s_add_u32 s24, s24, s26")
    e("  v_lshlrev_b32 v43, 11, v40")
    e("  v_lshl_add_u32 v43, v41, 4, v43")
    e("  s_lshl_b32 s26, s8, 13")
    e(f"  s_add_u32 s26, s26, {IDX_OFF}")
    e("  s_lshr_b32 s27, s10, 3")
    e("  s_lshl_b32 s27, s27, 10")
    e("  s_add_u32 s26, s26, s27")
    e("  s_lshr_b32 s27, s11, 1")
    e("  s_lshl_b32 s27, s27, 8")
    e("  s_add_u32 s26, s26, s27")
    e("  s_lshr_b32 s27, s10, 1")
    e("  s_and_b32 s27, s27, 3")
    e("  s_lshl_b32 s27, s27, 2")
    e("  s_add_u32 s26, s26, s27")
    e("  s_and_b32 s27, s10, 1")
    e("  s_lshl_b32 s27, s27, 1")
    e("  s_add_u32 s26, s26, s27")
    e("  s_add_u32 s26, s26, s25")
    e("  v_lshlrev_b32 v44, 16, v2")
    for i in range(8):
        e(f"  v_mov_b32 v{28+i}, 0")
    e(f"  s_waitcnt vmcnt({PTN})")
    for i in range(8):
        e(f"  v_lshl_or_b32 v{4+i}, v{12+i}, 16, v{4+i}")
    A, B, C, Dd, H1, L1, H2, L2, T, THR, M, I0, I1, M1, M2, P0 = 46, 47, 48, 49, 50, 51, 52, 53, 54, 55, 56, 57, 58, 59, 60, 62
    for g in range(4):
        lo, hi = 4 + 2 * g, 5 + 2 * g
        e(f"  v_and_b32 v{A}, 0x7fff, v{lo}")
        e(f"  v_bfe_u32 v{B}, v{lo}, 16, 15")
        e(f"  v_and_b32 v{C}, 0x7fff, v{hi}")
        e(f"  v_bfe_u32 v{Dd}, v{hi}, 16, 15")
        e(f"  v_max_u32 v{H1}, v{A}, v{B}")
        e(f"  v_min_u32 v{L1}, v{A}, v{B}")
        e(f"  v_max_u32 v{H2}, v{C}, v{Dd}")
        e(f"  v_min_u32 v{L2}, v{C}, v{Dd}")
        e(f"  v_min_u32 v{T}, v{H1}, v{H2}")
        e(f"  v_max3_u32 v{THR}, v{T}, v{L1}, v{L2}")
        e(f"  v_add_u32 v{THR}, -1, v{THR}")
        e(f"  v_sub_u32 v{A}, v{THR}, v{A}")
        e(f"  v_sub_u32 v{B}, v{THR}, v{B}")
        e(f"  v_sub_u32 v{C}, v{THR}, v{C}")
        e(f"  v_sub_u32 v{Dd}, v{THR}, v{Dd}")
        e(f"  v_lshrrev_b32 v{M}, 31, v{A}")
        e(f"  v_lshrrev_b32 v{B}, 30, v{B}")
        e(f"  v_and_or_b32 v{M}, v{B}, 2, v{M}")
        e(f"  v_lshrrev_b32 v{C}, 29, v{C}")
        e(f"  v_and_or_b32 v{M}, v{C}, 4, v{M}")
        e(f"  v_lshrrev_b32 v{Dd}, 28, v{Dd}")
        e(f"  v_and_or_b32 v{M}, v{Dd}, 8, v{M}")
        e(f"  v_ffbl_b32 v{I0}, v{M}")
        e(f"  v_add_u32 v{T}, -1, v{M}")
        e(f"  v_and_b32 v{M1}, v{M}, v{T}")
        e(f"  v_ffbl_b32 v{I1}, v{M1}")
        e(f"  v_add_u32 v{T}, -1, v{M1}")
        e(f"  v_and_b32 v{M2}, v{M1}, v{T}")
        e(f"  v_cmp_ne_u32 vcc, 0, v{M2}")
        e(f"  v_lshlrev_b32 v{T}, 4, v{I0}")
        e(f"  v_lshrrev_b64 v[{P0}:{P0+1}], v{T}, v[{lo}:{hi}]")
        e(f"  v_and_b32 v{A}, 0xffff, v{P0}")
        e(f"  v_lshlrev_b32 v{T}, 4, v{I1}")
        e(f"  v_lshrrev_b64 v[{P0}:{P0+1}], v{T}, v[{lo}:{hi}]")
        e(f"  v_lshl_or_b32 v{20+g}, v{P0}, 16, v{A}")
        e(f"  v_lshl_or_b32 v{24+g}, v{I1}, 2, v{I0}")
        e("  s_cmp_eq_u64 vcc, 0")
        e(f"  s_cbranch_scc1 Lp_nores{g}")
        mcur = M2
        for which in range(2):
            E = 28 + 2 * g + which
            e(f"  v_ffbl_b32 v{I0}, v{mcur}")
            e(f"  v_lshlrev_b32 v{T}, 4, v{I0}")
            e(f"  v_lshrrev_b64 v[{P0}:{P0+1}], v{T}, v[{lo}:{hi}]")
            e(f"  v_and_b32 v{A}, 0xffff, v{P0}")
            e(f"  v_and_b32 v{B}, 0x7fff, v{P0}")
            e(f"  v_min_u32 v{B}, v{B}, v{mcur}")
            e(f"  v_add_u32 v{C}, s12, v{I0}")
            e(f"  v_add_u32 v{C}, {4*g}, v{C}")
            e(f"  v_lshl_or_b32 v{C}, v{C}, 22, v44")
            e(f"  v_or_b32 v{C}, v{C}, v{A}")
            e(f"  v_cmp_ne_u32 vcc, 0, v{B}")
            if which == 0:
                e(f"  v_add_u32 v{T}, -1, v{M2}")
                e(f"  v_and_b32 v{M1}, v{M2}, v{T}")
            else:
                e("  s_nop 1")
            e(f"  v_cndmask_b32 v{E}, 0, v{C}, vcc")
            mcur = M1
        e(f"Lp_nores{g}:")
    for eh in range(2):
        e(f"  buffer_store_dwordx2 v[{20+2*eh}:{21+2*eh}], v42, s[20:23], s24 offen offset:{512*eh}")
        e(f"  v_lshl_or_b32 v{46+eh}, v{25+2*eh}, 4, v{24+2*eh}")
        e(f"  buffer_store_byte v{46+eh}, v43, s[20:23], s26 offen offset:{512*eh}")
    e("  s_mov_b32 s28, 0")
    for i in range(8):
        e(f"  v_cmp_ne_u32 s[{32+2*i}:{33+2*i}], 0, v{28+i}")
    e("  s_nop 3")
    for i in range(8):
        e(f"  s_bcnt1_i32_b64 s29, s[{32+2*i}:{33+2*i}]")
        e("  s_add_u32 s28, s28, s29")
    e("  v_mov_b32 v46, s28")
    e("  s_lshl_b32 s29, s3, 2")
    e("  v_mov_b32 v47, s29")
    e("  ds_write_b32 v47, v46")
    e("  v_mov_b32 v47, 0")
    e("  s_waitcnt lgkmcnt(0)")
    e("  s_barrier")
    e("  ds_read_b128 v[48:51], v47")
    e("  s_waitcnt lgkmcnt(0)")
    e("  s_mov_b32 s28, 0")
    e("  s_mov_b32 s30, 0")
    for i in range(4):
        e(f"  v_readfirstlane_b32 s29, v{48+i}")
        e("  s_add_u32 s30, s30, s29")
        e(f"  s_cmp_gt_u32 s3, {i}")
        e("  s_cselect_b32 s29, s29, 0")
        e("  s_add_u32 s28, s28, s29")
    e("  s_lshl_b32 s31, s2, 14")
    e(f"  s_add_u32 s31, s31, {LIST_OFF}")
    for i in range(8):
        lo, hi = 32 + 2 * i, 33 + 2 * i
        e(f"  s_cmp_eq_u64 s[{lo}:{hi}], 0")
        e(f"  s_cbranch_scc1 Lp_skip{i}")
        e(f"  v_mbcnt_lo_u32_b32 v46, s{lo}, 0")
        e(f"  v_mbcnt_hi_u32_b32 v46, s{hi}, v46")
        e("  v_add_u32 v46, s28, v46")
        e("  v_lshrrev_b32 v47, 1, v46")
        e("  v_lshlrev_b32 v47, 4, v47")
        e("  v_and_b32 v46, 1, v46")
        e("  v_lshl_add_u32 v48, v46, 2, v47")
        e("  v_lshl_add_u32 v49, v46, 1, v47")
        e(f"  v_lshrrev_b32 v50, 21, v{28+i}")
        e("  v_and_b32 v50, 0x7fe, v50")
        e(f"  v_bfe_u32 v51, v{28+i}, 16, 6")
        e(f"  s_mov_b64 exec, s[{lo}:{hi}]")
        e("  buffer_store_dword v50, v48, s[20:23], s31 offen")
        e(f"  buffer_store_short v{28+i}, v49, s[20:23], s31 offen offset:8")
        e("  buffer_store_short v51, v49, s[20:23], s31 offen offset:12")
        e("  s_mov_b64 exec, -1")
        e(f"  s_bcnt1_i32_b64 s29, s[{lo}:{hi}]")
        e("  s_add_u32 s28, s28, s29")
        e(f"Lp_skip{i}:")
    e("  s_cmp_lg_u32 s3, 0")
    e("  s_cbranch_scc1 Lp_end")
    e("  s_add_u32 s29, s30, 1")
    e("  s_lshr_b32 s29, s29, 1")
    e("  v_mov_b32 v51, s29")
    e("  v_mov_b32 v50, 0")
    e("  s_mov_b64 exec, 1")
    e("  s_bitcmp0_b32 s30, 0")
    e("  s_cbranch_scc1 Lp_nopad")
    e("  s_lshr_b32 s28, s30, 1")
    e("  s_lshl_b32 s28, s28, 4")
    e("  v_mov_b32 v48, s28")
    e("  buffer_store_dword v50, v48, s[20:23], s31 offen offset:4")
    e("  buffer_store_short v50, v48, s[20:23], s31 offen offset:10")
    e("  buffer_store_short v50, v48, s[20:23], s31 offen offset:14")
    e("Lp_nopad:")
    e("  s_lshl_b32 s29, s2, 2")
    e(f"  s_add_u32 s29, s29, {CNT_OFF}")
    e("  buffer_store_dword v51, v50, s[20:23], s29 offen")
    e("Lp_end:")
    e("  s_endpgm")


V_BF2 = 0
V_M, V_Q = 1, 2
V_DMA = 3
V_ST = 7
V_RB = 8
V_GX = 12
V_X0, V_X1, V_X2 = 13, 14, 15
V_IDX = 16
V_BIAS = 48
V_ACC = 64
V_B = 96
V_AP = 128
V_GB = 192
V_GT = 224
V_BP = 232
V_T = 236
V_SV = 244
V_AT = 228
V_LO16 = 232
V_LANE = 233
V_RIDX = 253
V_SVS = 244

S_X, S_OUT, S_WS, S_BIAS = 16, 20, 24, 28
S_W = 32
S_SLOT = 33
S_DGOFF = 36
S_OOFF = 37
S_CNT = 38
S_NG = 39
S_C0 = 80
S_PF, S_DD = 44, 45
S_LB = 51
S_T0, S_T1, S_T2 = 52, 53, 54
S_ROWB = 56
S_G = 57
S_DC = 59
S_M0R = 60
S_K1, S_KM1 = 64, 65
S_DREL, S_OREL, S_OBASE = 40, 41, 42
S_EV = 48
S_AOFF = 66
S_STAMP = 70


class I:
    def __init__(self, text, lds=None, vm=None, opt=False, wl=None, wv=None):
        self.text, self.lds, self.vm, self.opt, self.wl, self.wv = text, lds, vm, opt, wl, wv
        self.nl = None
        self.nv = None


def W(wl=None, wv=None):
    return I("WAIT", wl=wl, wv=wv)


def stamp(i):
    if DBG and i == 0:
        return [I("  s_memrealtime s[98:99]"), I(f"  s_memtime s[68:69]"), I("  s_waitcnt lgkmcnt(0)"), I(f"  s_mov_b32 s{S_STAMP+i}, s68")]
    if DBG:
        return [I("  s_memtime s[68:69]"), I("  s_waitcnt lgkmcnt(0)"), I(f"  s_mov_b32 s{S_STAMP+i}, s68")]
    return []


V_UT = 254
V_PK = 252
V_PV = 235


def unit_table(L, vu):
    L.append(I(f"  v_lshlrev_b32 v{V_UT}, 4, v{vu}"))
    L.append(I(f"  s_mov_b32 s{S_PF}, -1"))
    for t in range(1, 16):
        L.append(I(f"  s_add_u32 s{S_PF}, s{S_PF}, s{S_C0+t-1}"))
        L.append(I(f"  s_lshl_b32 s{S_DD}, s{S_C0+t-1}, 4"))
        L.append(I(f"  s_sub_u32 s{S_DD}, {CAPB}, s{S_DD}"))
        L.append(I(f"  v_sub_u32 v{V_X2}, s{S_PF}, v{vu}"))
        L.append(I(f"  v_ashrrev_i32 v{V_X2}, 31, v{V_X2}"))
        L.append(I(f"  v_and_b32 v{V_X2}, s{S_DD}, v{V_X2}"))
        L.append(I(f"  v_add_u32 v{V_UT}, v{V_UT}, v{V_X2}"))
    L.append(I(f"  s_add_u32 s{S_PF}, s{S_PF}, s{S_C0+15}"))
    L.append(I(f"  v_sub_u32 v{V_X2}, s{S_PF}, v{vu}"))
    L.append(I(f"  v_ashrrev_i32 v{V_X2}, 31, v{V_X2}"))
    L.append(I(f"  v_and_b32 v{V_X2}, {OOB}, v{V_X2}"))
    L.append(I(f"  v_or_b32 v{V_UT}, v{V_UT}, v{V_X2}"))


def afrag(L, fs, vvff, dst):
    cst = 32 * (fs >> 1) + 4 * (fs & 1)
    cst2 = cst | (cst << 16)
    for dd in range(4):
        vv, ff = vvff + 2 * dd, vvff + 2 * dd + 1
        d = dst + dd
        if cst2:
            L.append(I(f"  v_xor_b32 v{d}, {cst2}, v{ff}"))
            L.append(I(f"  v_pk_min_u16 v{d}, v{d}, s{S_K1}"))
        else:
            L.append(I(f"  v_pk_min_u16 v{d}, v{ff}, s{S_K1}"))
        L.append(I(f"  v_pk_add_u16 v{d}, v{d}, s{S_KM1}"))
        L.append(I(f"  v_and_b32 v{d}, v{d}, v{vv}"))


def dma_part(part, slot, rel):
    i, hh = part >> 1, part & 1
    L = []
    if hh == 0:
        L.append(I(f"  s_add_u32 m0, s{S_M0R+i}, {slot*2048}"))
        L.append(I("  s_nop 0"))
    L.append(I(f"  buffer_load_dwordx4 v{V_DMA+i}, s[{S_X}:{S_X+3}], s{S_DGOFF} offen offset:{hh*1024}{DMAF} lds",
               vm=("D", rel)))
    return L


def dma_advance():
    return [I(f"  s_add_u32 s{S_DC}, s{S_DC}, 1"),
            I(f"  s_add_u32 s{S_DREL}, s{S_DREL}, 32768"),
            I(f"  s_and_b32 s{S_DREL}, s{S_DREL}, 0x7ffff"),
            I(f"  s_add_u32 s{S_DGOFF}, s{S_DREL}, s{S_ROWB}"),
            I(f"  s_cmp_ge_u32 s{S_DC}, {NCHUNK}"),
            I(f"  s_cselect_b32 s{S_DGOFF}, {OOB}, s{S_DGOFF}")]


def rd(ks, slot, rel):
    p = ks & 1
    b = V_B + 8 * (ks & 3)
    off = slot * 2048 + (ks >> 1) * 256
    return [I(f"  ds_read_b128 v[{b}:{b+3}], v{V_RB+2*p} offset:{off}", lds=("R", ks, rel)),
            I(f"  ds_read_b128 v[{b+4}:{b+7}], v{V_RB+2*p+1} offset:{off}", lds=("R", ks, rel))]


def gtb(g):
    return V_GT if g & 1 == 0 else V_SV


def gather(g, slot, rel, opt=False):
    return [I(f"  ds_read_u16 v{gtb(g)+jj}, v{V_GB+8*g+jj} offset:{slot*2048}", lds=("G", g, rel), opt=opt)
            for jj in range(8)]


def res_comb(g):
    return [I(f"  v_lshl_or_b32 v{gtb(g)+2*d}, v{gtb(g)+2*d+1}, 16, v{gtb(g)+2*d}") for d in range(4)]


def res_mfma(g, acc):
    return [I(f"  v_smfmac_f32_16x16x64_bf16 v[{acc+4*fs}:{acc+4*fs+3}], v[{V_AP+16*g+4*fs}:{V_AP+16*g+4*fs+3}], "
              f"v[{gtb(g)}:{gtb(g)+7}], v{V_RIDX}") for fs in range(int(os.environ.get("RFS", "4")))]


def touch(c):
    if c >= 16:
        return []
    return [I(f"  s_add_u32 s47, s46, {c*32768}"),
            I(f"  buffer_load_dword v232, v235, s[{S_X}:{S_X+3}], s47 offen{TCF}", vm=("T", 0))]


def acc_init(acc):
    return [I(f"  v_mov_b32 v{acc+j}, v{V_BIAS+j}") for j in range(16)]


V_SW = 232


def epilogue(acc):
    L = []
    for j in range(2):
        for d in range(4):
            fs = 2 * j + (d >> 1)
            r = 2 * (d & 1)
            L.append(I(f"  v_cvt_pk_bf16_f32 v{V_T+4*j+d}, v{acc+4*fs+r}, v{acc+4*fs+r+1}"))
    L.append(I(f"  s_mov_b64 vcc, s[{S_EV}:{S_EV+1}]"))
    for d in range(4):
        L.append(I(f"  v_cndmask_b32_dpp v{V_SW+d}, v{V_T+4+d}, v{V_T+d}, vcc quad_perm:[1,0,3,2] row_mask:0xf bank_mask:0xf"))
    L.append(I(f"  buffer_store_dwordx4 v[{V_SW}:{V_SW+3}], v{V_ST}, s[{S_OUT}:{S_OUT+3}], s{S_OOFF} offen{STF}", vm=("S", 0)))
    L.append(I(f"  s_not_b64 vcc, s[{S_EV}:{S_EV+1}]"))
    L.append(I("  s_nop 0"))
    for d in range(4):
        L.append(I(f"  v_cndmask_b32_dpp v{V_SW+d}, v{V_T+d}, v{V_T+4+d}, vcc quad_perm:[1,0,3,2] row_mask:0xf bank_mask:0xf"))
    L.append(I(f"  buffer_store_dwordx4 v[{V_SW}:{V_SW+3}], v{V_ST}, s[{S_OUT}:{S_OUT+3}], s{S_OOFF} offen offset:2048{STF}", vm=("S", 0)))
    L.append(I(f"  s_add_u32 s{S_OREL}, s{S_OREL}, 32768"))
    L.append(I(f"  s_and_b32 s{S_OREL}, s{S_OREL}, 0x7ffff"))
    L.append(I(f"  s_add_u32 s{S_OOFF}, s{S_OREL}, s{S_OBASE}"))
    return L


def a_load(ks):
    L = []
    for fs in range(4):
        a = (ks * 4 + fs) * 4
        L.append(I(f"  buffer_load_dwordx4 a[{a}:{a+3}], v{V_LO16A}, s[{S_WS}:{S_WS+3}], s{S_AOFF} offen offset:{fs*1024}{ALF}",
                   vm=("A", ks)))
    L.append(I(f"  s_add_u32 s{S_AOFF}, s{S_AOFF}, 4096"))
    return L


V_LO16A = 255
A_PRE = int(os.environ.get("A_PRE","6"))


def body(name, slot, buf, prev_epi, own_epi, first=False):
    X = V_ACC + 16 * buf
    Y = V_ACC + 16 * (1 - buf)
    nslot = (slot + 1) % NSLOT
    L = []
    for ks in range(16):
        pre, fill, post, early = [], [], [], []
        if ks == 13:
            pre = [W(wv=("D", 1)), I("  s_barrier")] if not int(os.environ.get("NOWAIT", "0")) else [I("  s_barrier")]
        if ks + 3 < 16:
            fill += rd(ks + 3, slot, 0)
        else:
            fill += rd(ks + 3 - 16, nslot, 1)
        if prev_epi:
            ep = epilogue(Y)
            ini = acc_init(Y)
            if ks == 4:
                fill += ep[:8]
            if ks == 5:
                fill += ep[8:14]
            if ks == 8:
                fill += ep[14:]
            if ks in (11, 14):
                fill += ini[:8] if ks == 11 else ini[8:]
        if not first:
            part = (ks - 13) % 16
            if part < 8 and not NODMA:
                if ks >= 13:
                    fill += dma_part(part, (slot + 4) % NSLOT, 4)
                else:
                    fill += dma_part(part, (slot + 3) % NSLOT, 3)
                if part == 7:
                    fill += dma_advance()
        else:
            if ks + A_PRE < 16:
                fill += a_load(ks + A_PRE)
            if TCH and ks == 6:
                fill += touch(TCH + 8)
            if 4 <= ks < 12:
                c = 2 + (ks - 4) // 4
                for part in (2 * ((ks - 4) % 4), 2 * ((ks - 4) % 4) + 1):
                    fill += dma_part(part, c, c)
                    if part == 7:
                        fill += dma_advance()
            if ks >= 13:
                fill += dma_part(ks - 13, 4, 4)
        if TD and ks == 10:
            fill += [I(f"  s_cmp_ge_u32 s47, {NCHUNK}"),
                     I(f"  s_cselect_b32 s{S_T0}, {OOB}, s46"),
                     I(f"  buffer_load_dword v{V_X2}, v{V_Q}, s[{S_X}:{S_X+3}], s{S_T0} offen{TCF}", vm=("T", 0)),
                     I("  s_add_u32 s46, s46, 32768"),
                     I("  s_add_u32 s47, s47, 1")]
        if not NORES:
            n, ph = divmod(ks, 3)
            if n < 4 and ph < 2:
                fill += gather(n, slot, 0)[4 * ph:4 * ph + 4]
            if ks >= 3 and ph == 0 and n - 1 < 4:
                early = [W(wl=("G", n - 1, 0))] + res_comb(n - 1)
                post += res_mfma(n - 1, X)
            if ks == 12:
                post += [I(f"  s_cmp_gt_u32 s{S_NG}, 4"), I(f"  s_cbranch_scc1 Lslow_{name}"), I(f"Lslowback_{name}:")]
        L += pre
        L.append(W(wl=("R", ks, 0), wv=("A", ks) if first else None))
        mf = []
        for fs in range(4):
            a = (ks * 4 + fs) * 4
            b = V_B + 8 * (ks & 3)
            mf.append(I(f"  v_smfmac_f32_16x16x64_bf16 v[{X+4*fs}:{X+4*fs+3}], a[{a}:{a+3}], v[{b}:{b+7}], "
                        f"v{V_IDX+fs*8+(ks>>1)}" + (" abid:1" if ks & 1 else "")))
        fill = early + fill
        n_ = len(fill)
        per = [(n_ + 3 - i) // 4 for i in range(4)]
        pos = 0
        for i in range(4):
            L.append(mf[i])
            L += fill[pos:pos + per[i]]
            pos += per[i]
        L += post
    if own_epi:
        ep = epilogue(X)
        L += [I("  s_nop 7")] + ep[:8] + [I("  s_nop 1")] + ep[8:] + acc_init(X) + [I("  s_nop 1")]
    return L


def slow_path(name, slot, buf, first=False):
    X = V_ACC + 16 * buf
    L = []
    L.append(I(f"Lslow_{name}:"))
    L.append(I(f"  s_mov_b32 s{S_G}, {NRES}"))
    L.append(I(f"Lslowloop_{name}:"))
    L.append(I(f"  v_mbcnt_lo_u32_b32 v{V_X0}, -1, 0"))
    L.append(I(f"  v_mbcnt_hi_u32_b32 v{V_X0}, -1, v{V_X0}"))
    L.append(I(f"  s_lshl_b32 s{S_T0}, s{S_G}, 4"))
    L.append(I(f"  v_add_u32 v{V_X0}, s{S_T0}, v{V_X0}"))
    unit_table(L, V_X0)
    for i in range(4):
        L.append(I(f"  ds_bpermute_b32 v{V_GT+i}, v{V_PK}, v{V_UT} offset:{4*i}"))
    L.append(I("  s_waitcnt lgkmcnt(0)"))
    for i in range(4):
        L.append(I(f"  buffer_load_dwordx2 v[{V_T+2*i}:{V_T+2*i+1}], v{V_GT+i}, s[{S_WS}:{S_WS+3}], s{S_LB} offen"))
        L.append(I(f"  buffer_load_dwordx2 v[{V_SVS+2*i}:{V_SVS+2*i+1}], v{V_GT+i}, s[{S_WS}:{S_WS+3}], s{S_LB} offen offset:8"))
    L.append(I("  s_waitcnt vmcnt(0)"))
    for jj in range(8):
        L.append(I(f"  v_xor_b32 v{V_T+jj}, v{V_T+jj}, v{V_GX}"))
    for jj in range(8):
        L.append(I(f"  ds_read_u16 v{V_GT+jj}, v{V_T+jj} offset:{slot*2048}"))
    for i in range(4):
        L.append(I(f"  v_xor_b32 v{V_SVS+2*i+1}, v{V_SVS+2*i+1}, v{V_BF2}"))
    L.append(I("  s_waitcnt lgkmcnt(0)"))
    for d in range(4):
        L.append(I(f"  v_lshl_or_b32 v{V_BP+d}, v{V_GT+2*d+1}, 16, v{V_GT+2*d}"))
    for fs in range(4):
        afrag(L, fs, V_SVS, V_AT)
        L.append(I("  s_nop 1"))
        L.append(I(f"  v_mfma_f32_16x16x32_bf16 v[{X+4*fs}:{X+4*fs+3}], v[{V_AT}:{V_AT+3}], v[{V_BP}:{V_BP+3}], v[{X+4*fs}:{X+4*fs+3}]"))
        L.append(I("  s_nop 7"))
    L.append(I(f"  s_add_u32 s{S_G}, s{S_G}, 1"))
    L.append(I(f"  s_cmp_lt_u32 s{S_G}, s{S_NG}"))
    L.append(I(f"  s_cbranch_scc1 Lslowloop_{name}"))
    L.append(I(f"  s_branch Lslowback_{name}"))
    return L


def resolve(seq):
    lds, vm = [], []
    for blk, c in seq:
        for ins in blk:
            if ins.lds is not None:
                t = ins.lds
                lds.append(((t[0], t[1], c + t[2]), ins.opt))
            if ins.vm is not None:
                t = ins.vm
                vm.append(((t[0], t[1] + (c if t[0] in ("D",) else 0)), ins.opt))
            if ins.text == "WAIT":
                if ins.wl is not None:
                    key = (ins.wl[0], ins.wl[1], c + ins.wl[2])
                    n, found = 0, False
                    for tag, opt in reversed(lds):
                        if tag == key:
                            found = True
                            break
                        if not opt:
                            n += 1
                    assert found, (key, c)
                    n = min(n, 15)
                    ins.nl = n if ins.nl is None else min(ins.nl, n)
                if ins.wv is not None:
                    key = (ins.wv[0], ins.wv[1] + (c if ins.wv[0] in ("D",) else 0))
                    n, found = 0, False
                    for tag, opt in reversed(vm):
                        if tag == key:
                            found = True
                            break
                        if not opt:
                            n += 1
                    assert found or NODMA, (key, c)
                    n = min(n, 63)
                    ins.nv = n if ins.nv is None else min(ins.nv, n)


def emit(blk):
    for ins in blk:
        if ins.text == "WAIT":
            parts = []
            if ins.nv is not None:
                parts.append(f"vmcnt({ins.nv})")
            if ins.nl is not None:
                parts.append(f"lgkmcnt({ins.nl})")
            e("  s_waitcnt " + " ".join(parts))
        else:
            e(ins.text)


def gen_main():
    e(f".globl {KNAME}")
    e(".p2align 8")
    e(f".type {KNAME},@function")
    e(f"{KNAME}:")
    P = []

    def p(t, **kw):
        P.append(I(t, **kw))

    p("  s_cmp_ge_u32 s2, 256")
    p("  s_cbranch_scc1 Lm_end")
    P.extend(stamp(0))
    p("  s_load_dwordx4 s[4:7], s[0:1], 0")
    p("  s_load_dwordx4 s[8:11], s[0:1], 16")
    p("  s_load_dwordx2 s[14:15], s[0:1], 40")
    p("  v_lshrrev_b32 v3, 6, v0")
    p(f"  v_and_b32 v{V_LANE}, 63, v0")
    p(f"  v_readfirstlane_b32 s{S_W}, v3")
    p(f"  v_and_b32 v{V_M}, 15, v{V_LANE}")
    p(f"  v_lshrrev_b32 v{V_Q}, 4, v{V_LANE}")
    p(f"  v_lshlrev_b32 v{V_LO16A}, 4, v{V_LANE}")
    p(f"  s_and_b32 s{S_T0}, s2, 7")
    p(f"  s_lshr_b32 s{S_T1}, s2, 3")
    p(f"  s_and_b32 s{S_T2}, s{S_T1}, 3")
    p(f"  s_lshr_b32 s{S_T1}, s{S_T1}, 2")
    if int(os.environ.get("RBM", "0")):
        p(f"  s_lshl_b32 s{S_T0}, s{S_T0}, 3")
    else:
        p(f"  s_lshl_b32 s{S_T1}, s{S_T1}, 3")
    p(f"  s_add_u32 s{S_T1}, s{S_T1}, s{S_T0}")
    p(f"  s_lshl_b32 s{S_ROWB}, s{S_T1}, 19")
    p(f"  s_lshl_b32 s{S_SLOT}, s{S_T2}, 2")
    p(f"  s_add_u32 s{S_SLOT}, s{S_SLOT}, s{S_W}")
    p(f"  s_mul_i32 s{S_M0R}, s{S_W}, {4*ROWB}")
    for i in range(1, 4):
        p(f"  s_add_u32 s{S_M0R+i}, s{S_M0R}, {i*ROWB}")
    p(f"  s_mov_b32 s{S_K1}, 0x00010001")
    p(f"  s_mov_b32 s{S_KM1}, -1")
    for i in range(4):
        p(f"  s_lshl_b32 s{S_T0}, s{S_W}, 2")
        p(f"  s_add_u32 s{S_T0}, s{S_T0}, {i}")
        p(f"  v_xor_b32 v{V_X0}, s{S_T0}, v{V_LANE}")
        p(f"  v_and_b32 v{V_X0}, 15, v{V_X0}")
        p(f"  v_and_or_b32 v{V_X0}, v{V_LANE}, 48, v{V_X0}")
        p(f"  v_lshlrev_b32 v{V_X0}, 4, v{V_X0}")
        p(f"  s_lshl_b32 s{S_T1}, s{S_T0}, 11")
        p(f"  v_add_u32 v{V_DMA+i}, s{S_T1}, v{V_X0}")
    p("  s_waitcnt lgkmcnt(0)")
    for (srd, lo, size) in ((S_X, 4, 1 << 25), (S_OUT, 10, 1 << 25), (S_WS, 14, WS_USED), (S_BIAS, 8, 2048)):
        p(f"  s_mov_b32 s{srd}, s{lo}")
        p(f"  s_mov_b32 s{srd+1}, s{lo+1}")
        p(f"  s_mov_b32 s{srd+2}, {size}")
        p(f"  s_mov_b32 s{srd+3}, 0x00020000")
    p(f"  s_lshl_b32 s{S_T0}, s{S_SLOT}, 6")
    p(f"  s_add_u32 s{S_T0}, s{S_T0}, {CNT_OFF}")
    p(f"  s_load_dwordx16 s[{S_C0}:{S_C0+15}], s[14:15], s{S_T0}")
    ROTN = int(os.environ.get("ROTN", "1"))
    p(f"  s_lshr_b32 s{S_DREL}, s{S_ROWB}, 19")
    p(f"  s_mul_i32 s{S_DREL}, s{S_DREL}, {ROTN*32768}")
    p(f"  s_and_b32 s{S_DREL}, s{S_DREL}, 0x7ffff")
    p(f"  s_mov_b32 s{S_OREL}, s{S_DREL}")
    p(f"  s_add_u32 s{S_DGOFF}, s{S_ROWB}, s{S_DREL}")
    p(f"  s_mov_b32 s{S_DC}, 0")
    for part in range(8):
        P.extend(dma_part(part, 0, 0))
    P.extend(dma_advance())
    if TCH:
        p(f"  v_lshrrev_b32 v{V_X0}, 4, v{V_LANE}")
        p(f"  v_lshlrev_b32 v{V_X0}, 11, v{V_X0}")
        p(f"  v_lshl_or_b32 v{V_X0}, v{V_M}, 7, v{V_X0}")
        p(f"  s_lshr_b32 s{S_T0}, s{S_SLOT}, 2")
        p(f"  s_lshl_b32 s{S_T0}, s{S_T0}, 13")
        p(f"  s_add_u32 s{S_T0}, s{S_T0}, s{S_ROWB}")
        p(f"  s_lshl_b32 s{S_T1}, s{S_W}, 15")
        p(f"  s_add_u32 s{S_T0}, s{S_T0}, s{S_T1}")
        p(f"  v_mov_b32 v235, v{V_X0}")
        p(f"  s_mov_b32 s46, s{S_T0}")
        P.extend(touch(TCH))
    p(f"  s_lshl_b32 s{S_T0}, s{S_SLOT}, 13")
    p(f"  s_add_u32 s{S_T0}, s{S_T0}, {IDX_OFF}")
    for j in range(8):
        if j == 4:
            p(f"  s_add_u32 s{S_T0}, s{S_T0}, 4096")
        p(f"  buffer_load_dwordx4 v[{V_IDX+4*j}:{V_IDX+4*j+3}], v{V_LO16A}, s[{S_WS}:{S_WS+3}], s{S_T0} offen offset:{(j&3)*1024}{ALF}",
          vm=("I", 0))
    p(f"  v_lshlrev_b32 v{V_X0}, 4, v{V_Q}")
    p(f"  s_lshl_b32 s{S_T0}, s{S_SLOT}, 7")
    for j in range(2):
        p(f"  buffer_load_dwordx4 v[{V_GT+4*j}:{V_GT+4*j+3}], v{V_X0}, s[{S_BIAS}:{S_BIAS+3}], s{S_T0} offen offset:{64*j}",
          vm=("B", 0))
    p(f"  s_lshl_b32 s{S_AOFF}, s{S_SLOT}, 16")
    A_EARLY = int(os.environ.get("A_EARLY", "3"))
    for ks in range(A_EARLY):
        P.extend(a_load(ks))
    p(f"  v_and_b32 v{V_ST}, 14, v{V_M}")
    p(f"  v_lshlrev_b32 v{V_ST}, 11, v{V_ST}")
    p(f"  v_lshl_add_u32 v{V_ST}, v{V_Q}, 4, v{V_ST}")
    p(f"  v_and_b32 v{V_X0}, 1, v{V_M}")
    p(f"  v_lshl_add_u32 v{V_ST}, v{V_X0}, 6, v{V_ST}")
    p(f"  s_mov_b32 s{S_EV}, 0x55555555")
    p(f"  s_mov_b32 s{S_EV+1}, 0x55555555")
    p(f"  s_movk_i32 s{S_T0}, {ROWB}")
    p(f"  v_mul_lo_u32 v{V_X1}, v{V_M}, s{S_T0}")
    for pp in range(2):
        for h in range(2):
            p(f"  v_lshlrev_b32 v{V_X0}, 1, v{V_Q}")
            p(f"  v_add_u32 v{V_X0}, {pp*8+h}, v{V_X0}")
            p(f"  v_xor_b32 v{V_X0}, v{V_X0}, v{V_M}")
            p(f"  v_lshl_add_u32 v{V_RB+2*pp+h}, v{V_X0}, 4, v{V_X1}")
    p(f"  v_lshl_or_b32 v{V_GX}, v{V_M}, 4, v{V_X1}")
    p(f"  v_mov_b32 v{V_RIDX}, 0x44444444")
    p(f"  v_lshlrev_b32 v{V_PK}, 4, v{V_Q}")
    p(f"  v_and_b32 v{V_PV}, 1, v{V_Q}")
    p(f"  v_lshlrev_b32 v{V_PV}, 5, v{V_PV}")
    p(f"  v_lshrrev_b32 v{V_X0}, 1, v{V_Q}")
    p(f"  v_lshl_or_b32 v{V_PV}, v{V_X0}, 3, v{V_PV}")
    p(f"  v_lshrrev_b32 v{V_X0}, 2, v{V_M}")
    p(f"  v_and_b32 v{V_BF2}, 3, v{V_M}")
    p(f"  v_lshl_or_b32 v{V_BF2}, v{V_X0}, 3, v{V_BF2}")
    p(f"  v_lshl_or_b32 v{V_BF2}, v{V_BF2}, 16, v{V_BF2}")
    p("  s_waitcnt lgkmcnt(0)")
    unit_table(P, V_LANE)
    p(f"  s_add_u32 s{S_NG}, s{S_PF}, 16")
    p(f"  s_lshr_b32 s{S_NG}, s{S_NG}, 4")
    p(f"  s_lshl_b32 s{S_LB}, s{S_SLOT}, 18")
    p(f"  s_add_u32 s{S_LB}, s{S_LB}, {LIST_OFF}")
    for g in range(NRES):
        for i in range(4):
            p(f"  ds_bpermute_b32 v{V_AP+8*g+i}, v{V_PK}, v{V_UT} offset:{64*g+4*i}")
            if True:
                p(f"  ds_bpermute_b32 v{V_AP+8*g+4+i}, v{V_PV}, v{V_UT} offset:{64*g+16*(i>>1)+4*(i&1)}")
    p("  s_waitcnt lgkmcnt(0)")
    for g in range(NRES):
        for i in range(4):
            p(f"  buffer_load_dwordx2 v[{V_GB+8*g+2*i}:{V_GB+8*g+2*i+1}], v{V_AP+8*g+i}, s[{S_WS}:{S_WS+3}], s{S_LB} offen",
              vm=("U", g))
            av = V_AP + 8 * g + 4 + i
            p(f"  buffer_load_dwordx2 v[{V_B+8*g+2*i}:{V_B+8*g+2*i+1}], v{av}, s[{S_WS}:{S_WS+3}], s{S_LB} offen offset:8",
              vm=("U", g))
    for ks in range(A_EARLY, A_PRE):
        P.extend(a_load(ks))
    for part in range(8):
        P.extend(dma_part(part, 1, 1))
    P.extend(dma_advance())
    if TCH:
        P.extend(touch(TCH + 4))
    P.extend(stamp(1))
    P.append(W(wv=("B", 0)))
    for j in range(2):
        for d in range(4):
            fs = 2 * j + (d >> 1)
            r = 2 * (d & 1)
            p(f"  v_lshlrev_b32 v{V_BIAS+4*fs+r}, 16, v{V_GT+4*j+d}")
            p(f"  v_and_b32 v{V_BIAS+4*fs+r+1}, 0xffff0000, v{V_GT+4*j+d}")
    for g in range(NRES):
        P.append(W(wv=("U", g)))
        for jj in range(8):
            p(f"  v_xor_b32 v{V_GB+8*g+jj}, v{V_GB+8*g+jj}, v{V_GX}")
        for i in range(4):
            r = V_B + 8 * g + 2 * i + 1
            p(f"  v_xor_b32 v{r}, v{r}, v{V_BF2}")
        for fs in range(4):
            afrag(P, fs, V_B + 8 * g, V_AP + 16 * g + 4 * fs)
    P.extend(acc_init(V_ACC))
    P.extend(acc_init(V_ACC + 16))
    if TD:
        p(f"  v_lshlrev_b32 v{V_Q}, 7, v{V_M}")
        p(f"  s_lshl_b32 s46, s{S_SLOT}, 11")
        p(f"  s_add_u32 s46, s46, s{S_ROWB}")
        p(f"  s_add_u32 s46, s46, {TD*32768}")
        p(f"  s_mov_b32 s47, {TD}")
    P.extend(stamp(2))
    P.append(W(wv=("D", 0)))
    p("  s_barrier")
    p(f"  s_lshl_b32 s{S_OBASE}, s{S_SLOT}, 7")
    p(f"  s_add_u32 s{S_OBASE}, s{S_OBASE}, s{S_ROWB}")
    p(f"  s_add_u32 s{S_OOFF}, s{S_OBASE}, s{S_OREL}")
    p(f"  s_mov_b32 s{S_CNT}, 0")
    P.extend(rd(0, 0, 0))
    P.extend(rd(1, 0, 0))
    P.extend(rd(2, 0, 0))
    P.extend(stamp(3))

    F = body("f", 0, 0, False, True, first=True)
    F.extend(stamp(4))
    slots = [1, 2, 3, 4, 0]
    bufs = [1, 0, 1, 0, 1]
    LB = []
    for i, (sl, bf) in enumerate(zip(slots, bufs)):
        LB.append(body(f"b{i}", sl, bf, i > 0, i == 4))
    seq = [(P, 0), (F, 0)]
    c = 1
    for it in range(3):
        for blk in LB:
            seq.append((blk, c))
            c += 1
    resolve(seq)
    emit(P)
    emit(F)
    e("Lloop:")
    for blk in LB:
        emit(blk)
    e(f"  s_add_u32 s{S_CNT}, s{S_CNT}, 1")
    e(f"  s_cmp_lt_u32 s{S_CNT}, 3")
    e("  s_cbranch_scc1 Lloop")
    if DBG:
        emit(stamp(5))
        e("  s_waitcnt vmcnt(0)")
        emit(stamp(6))
        e("  s_memrealtime s[100:101]")
        e("  s_load_dwordx2 s[12:13], s[0:1], 32")
        e("  s_waitcnt lgkmcnt(0)")
        e("  s_mov_b32 s84, s12")
        e("  s_mov_b32 s85, s13")
        e("  s_mov_b32 s86, 256")
        e("  s_mov_b32 s87, 0x00020000")
        e("  s_and_b32 s88, s2, 63")
        e("  s_cmp_lg_u32 s88, 0")
        e("  s_cbranch_scc1 Lm_end")
        e(f"  s_cmp_lg_u32 s{S_W}, 0")
        e("  s_cbranch_scc1 Lm_end")
        e("  s_lshr_b32 s88, s2, 6")
        e("  s_lshl_b32 s88, s88, 5")
        e("  v_mov_b32 v1, 0")
        e("  s_mov_b64 exec, 1")
        for i in range(7):
            if i:
                e(f"  s_sub_u32 s68, s{S_STAMP+i}, s{S_STAMP}")
            else:
                e(f"  s_mov_b32 s68, s{S_STAMP}")
            e("  v_mov_b32 v2, s68")
            e(f"  buffer_store_dword v2, v1, s[84:87], s88 offen offset:{4*i}")
        e("  s_sub_u32 s100, s100, s98")
        e("  v_mov_b32 v2, s100")
        e("  buffer_store_dword v2, v1, s[84:87], s88 offen offset:28")
    e("Lm_end:")
    e("  s_endpgm")
    if not NORES:
        emit(slow_path("f", 0, 0, first=True))
        for i, (sl, bf) in enumerate(zip(slots, bufs)):
            emit(slow_path(f"b{i}", sl, bf))


def main():
    e("; Kernarg layout: 0 x, 8 w, 16 b, 24 out, 32 debug, 40 ws   (x: 16384x1024 bf16, w: 1024x1024 bf16, b: 1024 bf16)")
    e("; @launch kernel=prep_kernel grid=(256,1,1) block=(256,1,1) lds=256")
    e(f"; @launch kernel={KNAME} grid=(256,1,1) block=(256,1,1) lds={16*ROWB}")
    e('.amdgcn_target "amdgcn-amd-amdhsa--gfx950"')
    e(".text")
    gen_prep()
    gen_main()
    e('.section .rodata,"a"')
    e(".p2align 6")
    e(".amdhsa_kernel prep_kernel")
    e("  .amdhsa_next_free_vgpr 64")
    e("  .amdhsa_next_free_sgpr 64")
    e("  .amdhsa_accum_offset 64")
    e("  .amdhsa_group_segment_fixed_size 0")
    e("  .amdhsa_kernarg_size 48")
    e("  .amdhsa_user_sgpr_count 2")
    e("  .amdhsa_user_sgpr_kernarg_segment_ptr 1")
    e("  .amdhsa_system_sgpr_workgroup_id_x 1")
    e(".end_amdhsa_kernel")
    e(".p2align 6")
    e(f".amdhsa_kernel {KNAME}")
    e("  .amdhsa_next_free_vgpr 512")
    e("  .amdhsa_next_free_sgpr 102")
    e("  .amdhsa_accum_offset 256")
    e("  .amdhsa_group_segment_fixed_size 0")
    e("  .amdhsa_kernarg_size 48")
    e("  .amdhsa_user_sgpr_count 2")
    e("  .amdhsa_user_sgpr_kernarg_segment_ptr 1")
    e("  .amdhsa_system_sgpr_workgroup_id_x 1")
    e(".end_amdhsa_kernel")
    path = sys.argv[1] if len(sys.argv) > 1 else "standalone__structured_sparse_n_m__ragged.s"
    open(path, "w").write("\n".join(out) + "\n")


if __name__ == "__main__":
    main()
```
